```python
import torch

def _softmax(x, axis=-1):
    return torch.softmax(x, dim=axis)
def _gelu(x):
    return torch.nn.functional.gelu(x, approximate="tanh")
def _silu(x):
    return torch.nn.functional.silu(x)
def _sigmoid(x):
    return torch.sigmoid(x)
def _layernorm(x, axis=-1, eps=1e-5):
    m = x.mean(dim=axis, keepdim=True)
    v = x.var(dim=axis, keepdim=True, unbiased=False)
    return (x - m) / torch.sqrt(v + eps)
def _scatter_add(tgt, idx, src, axis=0):
    return tgt.clone().index_add_(axis, idx, src)
def _segment_sum(src, seg, n):
    out = torch.zeros((n,) + src.shape[1:], dtype=src.dtype)
    return out.index_add_(0, seg, src)
def _pad(x, pw):
    flat = tuple(v for pair in reversed(pw) for v in pair)
    return torch.nn.functional.pad(x, flat)

kernel_name = 'standalone__mha_block_cached__decode'

def setup_inputs():

    _w = (lambda a: (lambda t: t.to(torch.bfloat16) if t.is_floating_point() else t)(torch.as_tensor(a)))
    B, Sq, D = 2, 1, 448
    H, Sk, Dh = 16, 8192, 256
    return {
        "x": _w((lambda *s: torch.randn(*s, dtype=torch.bfloat16) * 0.8)(B, Sq, D)),
        "k_cache": _w((lambda *s: torch.randn(*s, dtype=torch.bfloat16) * 0.8)(B, H, Sk, Dh)),
        "v_cache": _w((lambda *s: torch.randn(*s, dtype=torch.bfloat16) * 0.05)(B, H, Sk, Dh)),
        "wq": _w((lambda *s: torch.randn(*s, dtype=torch.bfloat16) * 0.8)(D, H * Dh) * (D ** -0.5)),
        "wo": _w((lambda *s: torch.randn(*s, dtype=torch.bfloat16) * 0.05)(H * Dh, D) * ((H * Dh) ** -0.5)),
    }

def reference(x, k_cache, v_cache, wq, wo):
    B, Sq, D = x.shape
    H, Dh = 16, 256
    q = (lambda x, *d: x.permute(*d))((x @ wq).reshape(B, Sq, H, Dh), 0, 2, 1, 3)
    scores = torch.einsum("bhqd,bhkd->bhqk", q, k_cache) * (Dh ** -0.5)
    p = _softmax(scores, axis=-1)
    o = torch.einsum("bhqk,bhkd->bhqd", p, v_cache)
    return (lambda x, *d: x.permute(*d))(o, 0, 2, 1, 3).reshape(B, Sq, H * Dh) @ wo
```

```python
import sys
from asm import build
MAIN="standalone__mha_block_cached__decode_kernel"
HDR=open("standalone__mha_block_cached__decode.s.ref").read().split("; Override")[0] if False else ""
C_SCALE=0x3db8aa3b
WS_QP=0
WS_OP=1<<20
WS_ML=2<<20
WS_Y =3<<20

def desc(name,nv,ns=64):
    return f""".amdhsa_kernel {name}
  .amdhsa_next_free_vgpr {nv}
  .amdhsa_next_free_sgpr {ns}
  .amdhsa_accum_offset {min(256,(nv+3)//4*4)}
  .amdhsa_group_segment_fixed_size 0
  .amdhsa_kernarg_size 64
  .amdhsa_user_sgpr_count 2
  .amdhsa_user_sgpr_kernarg_segment_ptr 1
  .amdhsa_system_sgpr_workgroup_id_x 1
.end_amdhsa_kernel"""

def head(a,name):
    a(f".globl {name}\n.p2align 8\n.type {name},@function\n{name}:")

def decode_wg(a):
    a("s_and_b32 s12, s2, 7\ns_lshl_b32 s12, s12, 1\ns_bfe_u32 s15, s2, 0x10003\ns_or_b32 s12, s12, s15")
    a("s_bfe_u32 s13, s2, 0x10004")
    a("s_lshr_b32 s14, s2, 5")

def masks(a, vm, vl, vt):
    a(f"v_and_b32 v{vt}, 1, v{vl}")
    a(f"v_lshlrev_b32 v{vt}, 4, v{vt}")
    a(f"v_mov_b32 v{vt+1}, 0xffff")
    a(f"v_lshlrev_b32 v{vt}, v{vt}, v{vt+1}")
    a(f"v_bfe_u32 v{vt+1}, v{vl}, 1, 2")
    for k in range(4):
        a(f"v_cmp_eq_u32 vcc, {k}, v{vt+1}")
        a("s_nop 1")
        a(f"v_cndmask_b32 v{vm+k}, 0, v{vt}, vcc")

def gen(name, W=8, R=8, flags="nt", pattern="A"):
    o=[]; a=o.append
    a(f"; @launch kernel=qpart_kernel grid=(256,1,1) block=(64,1,1) lds=0")
    a(f"; @launch kernel={MAIN} grid=(256,1,1) block=({W*64},1,1) lds={W*1024+W*8+512}")
    a(f"; @launch kernel=oproj_kernel grid=(256,1,1) block=(448,1,1) lds=0")
    a(f"; @launch kernel=final_kernel grid=(224,1,1) block=(64,1,1) lds=0")
    a('.amdgcn_target "amdgcn-amd-amdhsa--gfx950"\n.text')
    head(a,"qpart_kernel")
    a("s_cmp_ge_u32 s2, 256\ns_cbranch_scc1 Lq_end")
    a("s_load_dwordx2 s[4:5], s[0:1], 0\ns_load_dwordx2 s[6:7], s[0:1], 24\ns_load_dwordx2 s[8:9], s[0:1], 56")
    decode_wg(a)
    a("s_lshl_b32 s15, s13, 3\ns_add_u32 s15, s15, s14")
    a("s_mul_i32 s16, s15, 28")
    a("v_lshrrev_b32 v1, 4, v0\nv_and_b32 v2, 15, v0")
    a("v_add_u32 v3, s16, v1\nv_lshlrev_b32 v4, 13, v3\nv_lshl_add_u32 v4, v2, 4, v4")
    a("s_lshl_b32 s17, s12, 9\nv_add_u32 v4, s17, v4")
    a("v_lshrrev_b32 v5, 3, v2\nv_mul_u32_u24 v5, 896, v5\nv_lshl_add_u32 v5, v3, 1, v5")
    a("s_waitcnt lgkmcnt(0)")
    for t in range(7):
        a(f"global_load_ushort v{10+t}, v5, s[4:5] offset:{t*8}")
    for t in range(7):
        a(f"global_load_dwordx4 v[{32+t*8}:{35+t*8}], v4, s[6:7]")
        a(f"global_load_dwordx4 v[{36+t*8}:{39+t*8}], v4, s[6:7] offset:256")
        a("v_add_u32 v4, 0x8000, v4")
    masks(a,20,0,6)
    for t in range(7):
        a(f"s_waitcnt vmcnt({12-2*t})")
        a(f"v_lshl_or_b32 v6, v{10+t}, 16, v{10+t}")
        for k in range(4): a(f"v_and_b32 v{24+k}, v6, v{20+k}")
        a("s_nop 1")
        c0="0" if t==0 else "v[88:91]"; c1="0" if t==0 else "v[92:95]"
        a(f"v_mfma_f32_16x16x32_bf16 v[88:91], v[24:27], v[{32+t*8}:{35+t*8}], {c0}")
        a(f"v_mfma_f32_16x16x32_bf16 v[92:95], v[24:27], v[{36+t*8}:{39+t*8}], {c1}")
    a("s_lshl_b32 s17, s12, 15\ns_lshl_b32 s18, s15, 10\ns_add_u32 s17, s17, s18")
    a("v_lshrrev_b32 v5, 1, v1\nv_lshlrev_b32 v5, 14, v5\nv_lshl_add_u32 v5, v2, 5, v5")
    a("v_and_b32 v6, 1, v1\nv_lshl_add_u32 v5, v6, 4, v5\nv_add_u32 v5, s17, v5")
    a("s_nop 7")
    a(f"global_store_dwordx4 v5, v[88:91], s[8:9]")
    a(f"global_store_dwordx4 v5, v[92:95], s[8:9] offset:512")
    a("Lq_end:\ns_endpgm")
    head(a,MAIN)
    keys_wave=1024//W; ngroups=keys_wave//4; iters=ngroups//R; assert iters*R==ngroups
    RB=48
    SB=RB+R*8
    NV=SB+R
    Q=8
    MK=16
    PB=20
    ACC=28
    M=36; L=37; T=38
    a("s_cmp_ge_u32 s2, 256\ns_cbranch_scc1 Lm_end")
    a("s_load_dwordx4 s[4:7], s[0:1], 8\ns_load_dwordx2 s[8:9], s[0:1], 56")
    decode_wg(a)
    a("v_lshrrev_b32 v1, 6, v0\nv_and_b32 v2, 63, v0")
    a("v_lshrrev_b32 v3, 4, v2\nv_and_b32 v4, 15, v2")
    a("v_lshlrev_b32 v5, 9, v3\nv_lshl_add_u32 v5, v4, 4, v5")
    if pattern=="A":
        wsh={4:17,8:16,16:15}[W]; gstride=2048
    else:
        wsh=11; gstride=2048*W
    a(f"v_lshl_add_u32 v5, v1, {wsh}, v5")
    a("s_lshl_b32 s15, s13, 4\ns_add_u32 s15, s15, s12")
    a("s_lshl_b32 s16, s15, 3\ns_add_u32 s16, s16, s14")
    a("s_lshl_b32 s17, s16, 19")
    a("s_lshl_b32 s18, s12, 1\ns_add_u32 s18, s18, s13\ns_lshl_b32 s18, s18, 14")
    a("v_lshl_add_u32 v6, v2, 4, s18")
    a("v_readfirstlane_b32 s19, v1")
    a("s_waitcnt lgkmcnt(0)")
    a("s_add_u32 s4, s4, s17\ns_addc_u32 s5, s5, 0\ns_add_u32 s6, s6, s17\ns_addc_u32 s7, s7, 0")
    def loadgrp(slot, sp):
        r=RB+slot*8
        a(f"global_load_dwordx4 v[{r}:{r+3}], v5, s[{sp}:{sp+1}] {flags}")
        a(f"global_load_dwordx4 v[{r+4}:{r+7}], v5, s[{sp}:{sp+1}] offset:256 {flags}")
        a(f"s_add_u32 s{sp}, s{sp}, {gstride}\ns_addc_u32 s{sp+1}, s{sp+1}, 0")
    QL=W*1024+W*8
    a("s_cmp_lg_u32 s19, 0\ns_cbranch_scc1 Lm_noq")
    assert R*8>=64
    for j in range(16):
        if j%4==0 and j: a("v_add_u32 v6, 0x1000, v6")
        a(f"global_load_dwordx4 v[{RB+j*4}:{RB+j*4+3}], v6, s[8:9] offset:{(j%4)*1024}")
    a("s_waitcnt vmcnt(0)")
    for j in range(1,16):
        for r in range(4): a(f"v_add_f32 v{RB+r}, v{RB+r}, v{RB+j*4+r}")
    a(f"v_cvt_pk_bf16_f32 v{RB}, v{RB}, v{RB+1}\nv_cvt_pk_bf16_f32 v{RB+1}, v{RB+2}, v{RB+3}")
    a(f"v_lshlrev_b32 v6, 3, v2")
    a(f"ds_write_b64 v6, v[{RB}:{RB+1}] offset:{QL}")
    a("s_waitcnt lgkmcnt(0)")
    a("Lm_noq:")
    for s in range(R): loadgrp(s,4)
    masks(a,MK,2,T)
    for r in range(8): a(f"v_mov_b32 v{ACC+r}, 0")
    a(f"v_mov_b32 v{M}, 0xff800000\nv_mov_b32 v{L}, 0")
    a(f"s_mov_b32 s20, {C_SCALE}")
    a("s_barrier")
    a(f"v_lshlrev_b32 v6, 4, v4")
    a(f"ds_read_b128 v[{Q}:{Q+3}], v6 offset:{QL}\nds_read_b128 v[{Q+4}:{Q+7}], v6 offset:{QL+256}")
    a(f"s_mov_b32 s10, {iters}")
    a("s_waitcnt lgkmcnt(0)")
    a("Lm_loop:")
    for s in range(R):
        r=RB+s*8
        a(f"s_waitcnt vmcnt({2*R-2})")
        a(f"v_dot2_f32_bf16 v{SB+s}, v{r}, v{Q}, 0")
        for k in range(1,8): a(f"v_dot2_f32_bf16 v{SB+s}, v{r+k}, v{Q+k}, v{SB+s}")
        loadgrp(s,6)
    a("s_nop 1")
    for dpp in ["quad_perm:[1,0,3,2]","quad_perm:[2,3,0,1]","row_half_mirror","row_mirror"]:
        for s in range(R):
            a(f"v_add_f32_dpp v{SB+s}, v{SB+s}, v{SB+s} {dpp} row_mask:0xf bank_mask:0xf")
    a(f"v_max3_f32 v{T}, v{SB}, v{SB+1}, v{M}")
    for s in range(2,R,2): a(f"v_max3_f32 v{T}, v{SB+s}, v{SB+s+1}, v{T}")
    a(f"v_mov_b32 v{T+1}, v{T}\ns_nop 1\nv_permlane16_swap_b32 v{T}, v{T+1}\ns_nop 1\nv_max_f32 v{T}, v{T}, v{T+1}")
    a(f"v_mov_b32 v{T+1}, v{T}\ns_nop 1\nv_permlane32_swap_b32 v{T}, v{T+1}\ns_nop 1\nv_max_f32 v{T}, v{T}, v{T+1}")
    a(f"v_sub_f32 v{T+1}, v{M}, v{T}\nv_mul_f32 v{T+1}, s20, v{T+1}\nv_exp_f32 v{T+1}, v{T+1}")
    a(f"v_mov_b32 v{M}, v{T}\nv_mul_f32 v{T+2}, s20, v{T}")
    for s in range(R): a(f"v_fma_f32 v{SB+s}, v{SB+s}, s20, -v{T+2}")
    for s in range(R): a(f"v_exp_f32 v{SB+s}, v{SB+s}")
    a(f"v_mul_f32 v{L}, v{L}, v{T+1}")
    for r in range(8): a(f"v_mul_f32 v{ACC+r}, v{ACC+r}, v{T+1}")
    for s in range(R): a(f"v_add_f32 v{L}, v{L}, v{SB+s}")
    for s in range(R): a(f"v_cvt_pk_bf16_f32 v{SB+s}, v{SB+s}, v{SB+s}")
    a("s_sub_u32 s10, s10, 1\ns_cmp_eq_u32 s10, 0\ns_cbranch_scc1 Lm_last")
    def vgrp(s, wait, refill):
        r=RB+s*8; pb=PB+(s&1)*4
        for k in range(4): a(f"v_and_b32 v{pb+k}, v{SB+s}, v{MK+k}")
        a(f"s_waitcnt vmcnt({wait})\ns_nop 0")
        a(f"v_mfma_f32_16x16x32_bf16 v[{ACC}:{ACC+3}], v[{pb}:{pb+3}], v[{r}:{r+3}], v[{ACC}:{ACC+3}]")
        a(f"v_mfma_f32_16x16x32_bf16 v[{ACC+4}:{ACC+7}], v[{pb}:{pb+3}], v[{r+4}:{r+7}], v[{ACC+4}:{ACC+7}]")
        if refill: loadgrp(s,4)
    for s in range(R): vgrp(s,2*R-2,True)
    a("s_branch Lm_loop")
    a("Lm_last:")
    for s in range(R): vgrp(s,2*(R-1-s),False)
    a(f"v_mov_b32 v{T+1}, v{L}\ns_nop 1\nv_permlane16_swap_b32 v{L}, v{T+1}\ns_nop 1\nv_add_f32 v{L}, v{L}, v{T+1}")
    a(f"v_mov_b32 v{T+1}, v{L}\ns_nop 1\nv_permlane32_swap_b32 v{L}, v{T+1}\ns_nop 1\nv_add_f32 v{L}, v{L}, v{T+1}")
    a(f"v_mul_f32 v{M}, s20, v{M}")
    a("v_cmp_gt_u32 vcc, 32, v2\ns_nop 1")
    for r in range(4): a(f"v_cndmask_b32 v{ACC+r}, v{ACC+4+r}, v{ACC+r}, vcc")
    a("v_lshrrev_b32 v6, 1, v3\nv_lshlrev_b32 v6, 9, v6\nv_lshl_add_u32 v6, v4, 5, v6\nv_and_b32 v7, 1, v3\nv_lshl_add_u32 v6, v7, 4, v6\nv_lshl_add_u32 v6, v1, 10, v6")
    a(f"ds_write_b128 v6, v[{ACC}:{ACC+3}]")
    a(f"v_lshlrev_b32 v7, 3, v1\nds_write_b64 v7, v[{M}:{L}] offset:{W*1024}")
    a("s_waitcnt lgkmcnt(0)\ns_barrier")
    a("s_cmp_lg_u32 s19, 0\ns_cbranch_scc1 Lm_end")
    a("v_mov_b32 v7, 0\nv_lshlrev_b32 v6, 4, v2")
    ML=8
    for w in range(0,W,2): a(f"ds_read_b128 v[{ML+2*w}:{ML+2*w+3}], v7 offset:{W*1024+w*8}")
    for w in range(W): a(f"ds_read_b128 v[{RB+4*w}:{RB+4*w+3}], v6 offset:{w*1024}")
    a("s_waitcnt lgkmcnt(0)")
    TT=44
    a(f"v_max_f32 v{TT}, v{ML}, v{ML+2}")
    for w in range(2,W): a(f"v_max_f32 v{TT}, v{TT}, v{ML+2*w}")
    for w in range(W): a(f"v_sub_f32 v{ML+2*w}, v{ML+2*w}, v{TT}")
    for w in range(W): a(f"v_exp_f32 v{ML+2*w}, v{ML+2*w}")
    a("s_nop 0")
    a(f"v_mul_f32 v{TT+1}, v{ML}, v{ML+1}")
    for w in range(1,W): a(f"v_fmac_f32 v{TT+1}, v{ML+2*w}, v{ML+2*w+1}")
    for r in range(4): a(f"v_mul_f32 v{RB+r}, v{RB+r}, v{ML}")
    for w in range(1,W):
        for r in range(4): a(f"v_fmac_f32 v{RB+r}, v{RB+4*w+r}, v{ML+2*w}")
    a(f"s_lshl_b32 s17, s16, 10\ns_add_u32 s17, s17, {WS_OP}\nv_add_u32 v6, s17, v6")
    a(f"global_store_dwordx4 v6, v[{RB}:{RB+3}], s[8:9]")
    a(f"s_lshl_b32 s17, s16, 3\ns_add_u32 s17, s17, {WS_ML}\nv_mov_b32 v7, s17")
    a(f"global_store_dwordx2 v7, v[{TT}:{TT+1}], s[8:9]")
    a("Lm_end:\ns_endpgm")
    head(a,"oproj_kernel")
    a("s_cmp_ge_u32 s2, 256\ns_cbranch_scc1 Lo_end")
    a("s_load_dwordx2 s[4:5], s[0:1], 32\ns_load_dwordx2 s[8:9], s[0:1], 56")
    decode_wg(a)
    a("v_lshrrev_b32 v1, 6, v0\nv_and_b32 v2, 63, v0\nv_lshrrev_b32 v3, 4, v2\nv_and_b32 v4, 15, v2")
    a("s_lshl_b32 s15, s13, 4\ns_add_u32 s15, s15, s12")
    a("v_lshrrev_b32 v5, 3, v2")
    a("v_and_b32 v6, 7, v2")
    a(f"s_lshl_b32 s17, s15, 13\ns_lshl_b32 s18, s14, 7\ns_add_u32 s17, s17, s18\ns_add_u32 s17, s17, {WS_OP}")
    a("v_lshlrev_b32 v7, 10, v6\nv_lshl_add_u32 v7, v5, 4, v7\nv_add_u32 v7, s17, v7")
    a(f"s_lshl_b32 s17, s15, 6\ns_add_u32 s17, s17, {WS_ML}\nv_lshl_add_u32 v8, v6, 3, s17")
    a("s_lshl_b32 s17, s12, 8\ns_lshl_b32 s18, s14, 5\ns_add_u32 s17, s17, s18")
    a("v_lshl_add_u32 v9, v5, 2, s17\nv_mul_u32_u24 v9, 896, v9\nv_lshl_add_u32 v9, v1, 7, v9\nv_lshl_add_u32 v9, v6, 4, v9")
    a("s_waitcnt lgkmcnt(0)")
    a("global_load_dwordx4 v[12:15], v7, s[8:9]\nglobal_load_dwordx2 v[10:11], v8, s[8:9]")
    for t in range(4): a(f"global_load_dwordx4 v[{32+4*t}:{35+4*t}], v9, s[4:5] offset:{t*896}")
    masks(a,16,2,24)
    a("s_waitcnt vmcnt(4)")
    DP=["quad_perm:[1,0,3,2]","quad_perm:[2,3,0,1]","row_half_mirror"]
    a("v_mov_b32 v24, v10\ns_nop 1")
    for d in DP: a(f"v_max_f32_dpp v24, v24, v24 {d} row_mask:0xf bank_mask:0xf\ns_nop 1")
    a("v_sub_f32 v10, v10, v24\nv_exp_f32 v10, v10\ns_nop 0")
    for r in range(5): a(f"v_mul_f32 v{11+r}, v{11+r}, v10")
    for d in DP:
        for r in range(5): a(f"v_add_f32_dpp v{11+r}, v{11+r}, v{11+r} {d} row_mask:0xf bank_mask:0xf")
    a("v_rcp_f32 v11, v11\ns_nop 0")
    for r in range(4): a(f"v_mul_f32 v{12+r}, v{12+r}, v11")
    for r in range(4): a(f"v_cvt_pk_bf16_f32 v{12+r}, v{12+r}, v{12+r}")
    for t in range(4):
        for k in range(4): a(f"v_and_b32 v{20+k}, v{12+t}, v{16+k}")
        a(f"s_waitcnt vmcnt({3-t})\ns_nop 0")
        c="0" if t==0 else "v[28:31]"
        a(f"v_mfma_f32_16x16x32_bf16 v[28:31], v[20:23], v[{32+4*t}:{35+4*t}], {c}")
    a("s_nop 7")
    for r in range(4): a(f"v_mov_b32_dpp v{24+r}, v{28+r} row_ror:8 row_mask:0xf bank_mask:0xf")
    a("s_nop 1")
    for r in range(4): a(f"v_permlane32_swap_b32 v{24+r}, v{32+r}")
    a("s_nop 1")
    for r in range(4): a(f"v_add_f32 v{28+r}, v{28+r}, v{32+r}")
    a(f"s_lshl_b32 s17, s15, 3\ns_add_u32 s17, s17, s14\ns_mul_i32 s17, s17, 1792\ns_add_u32 s17, s17, {WS_Y}")
    a("v_lshlrev_b32 v7, 8, v1\nv_lshl_add_u32 v7, v6, 5, v7\nv_lshl_add_u32 v7, v3, 4, v7\nv_add_u32 v7, s17, v7")
    a("s_mov_b32 exec_lo, 0x00ff00ff\ns_mov_b32 exec_hi, 0")
    a("global_store_dwordx4 v7, v[28:31], s[8:9]")
    a("Lo_end:\ns_endpgm")
    head(a,"final_kernel")
    a("s_cmp_ge_u32 s2, 224\ns_cbranch_scc1 Lf_end")
    a("s_load_dwordx2 s[4:5], s[0:1], 40\ns_load_dwordx2 s[8:9], s[0:1], 56")
    a("s_cmp_ge_u32 s2, 112\ns_cselect_b32 s12, 1, 0\ns_mul_i32 s13, s12, 112\ns_sub_u32 s13, s2, s13")
    a(f"s_mul_i32 s14, s12, {128*1792}\ns_lshl_b32 s15, s13, 4\ns_add_u32 s14, s14, s15\ns_add_u32 s14, s14, {WS_Y}")
    a(f"v_mul_u32_u24 v1, 1792, v0\nv_add_u32 v1, s14, v1\nv_add_u32 v2, {64*1792}, v1")
    a("s_waitcnt lgkmcnt(0)")
    a("global_load_dwordx4 v[4:7], v1, s[8:9]\nglobal_load_dwordx4 v[8:11], v2, s[8:9]")
    a("s_waitcnt vmcnt(0)")
    for r in range(4): a(f"v_add_f32 v{4+r}, v{4+r}, v{8+r}")
    for d in DP+["row_mirror"]:
        for r in range(4): a(f"v_add_f32_dpp v{4+r}, v{4+r}, v{4+r} {d} row_mask:0xf bank_mask:0xf")
    for sw in ("16","32"):
        for r in range(4): a(f"v_mov_b32 v{8+r}, v{4+r}")
        a("s_nop 1")
        for r in range(4): a(f"v_permlane{sw}_swap_b32 v{4+r}, v{8+r}")
        a("s_nop 1")
        for r in range(4): a(f"v_add_f32 v{4+r}, v{4+r}, v{8+r}")
    a("v_cvt_pk_bf16_f32 v4, v4, v5\nv_cvt_pk_bf16_f32 v5, v6, v7")
    a("s_lshl_b32 s14, s2, 3\nv_mov_b32 v1, s14")
    a("s_mov_b64 exec, 1")
    a("global_store_dwordx2 v1, v[4:5], s[4:5]")
    a("Lf_end:\ns_endpgm")
    a('.section .rodata,"a"')
    for nm,nv in (("qpart_kernel",96),(MAIN,NV),("oproj_kernel",48),("final_kernel",12)):
        a(".p2align 6"); a(desc(nm,nv))
    open(name,"w").write("\n".join(o)+"\n")
    return build(name)
if __name__=="__main__":
    specs=[gen("v1_w8r8.s",W=8,R=8), gen("v1_w8r16.s",W=8,R=16), gen("v1_w16r8.s",W=16,R=8), gen("v1_w8r8_def.s",W=8,R=8,flags="")]
    print(" ".join(specs))
```

```python
import sys
from asm import build
MAIN="standalone__mha_block_cached__decode_kernel"
C_SCALE=0x3db8aa3b
TAGM=0x3ff
WS_CNT=0x10000
CSTR=4096+256
WS_QP=0x80000
WS_OP=0x100000
WS_Y =0x200000
L_TK=0; L_Q=1024; L_ML=1536; L_O=2048; L_WQ=6144; LDS_SZ=L_WQ+14336
SPIN=1<<16

def gen(name, U=4, cap=8, nstatic=26, rot=8192, flags="nt", stamps=False, ahead=1, dyn=True, hdr=""):
    o=[]; a=o.append
    NCH=256
    a(hdr+f"; @launch grid=(256,1,1) block=(512,1,1) lds={LDS_SZ}")
    a('.amdgcn_target "amdgcn-amd-amdhsa--gfx950"\n.text')
    a(f".globl {MAIN}\n.p2align 8\n.type {MAIN},@function\n{MAIN}:")
    sW=20; sBH=21; sS=22; sROT=23; sTK=24; sK=25; sC=26; sT=27; sT2=28; sAT=29; sPULL=30; sST=31; sTAG=32; sE=33; sCNT=34; sSP=36; sH=37; sB=38; sXT=39
    def stamp(i):
        if stamps: a(f"s_memrealtime s[{40+2*i}:{41+2*i}]")
    def dumpstamps(n):
        if not stamps: return
        a("s_mov_b64 exec, -1\ns_waitcnt lgkmcnt(0)")
        a("v_mov_b32 v10, 0")
        for i in range(n): a(f"v_writelane_b32 v10, s{40+2*i}, {i}")
        a(f"v_writelane_b32 v10, s{sK}, 14")
        a("s_getreg_b32 s27, hwreg(HW_REG_XCC_ID)\nv_writelane_b32 v10, s27, 15")
        a(f"s_lshl_b32 s27, s2, 3\ns_add_u32 s27, s27, s{sW}\ns_lshl_b32 s27, s27, 6\ns_add_u32 s27, s27, 0x10000000")
        a("v_lshl_add_u32 v11, v2, 2, s27\ns_mov_b64 exec, 0xffff")
        a("global_store_dword v11, v10, s[18:19]")
    a("s_cmp_ge_u32 s2, 256\ns_cbranch_scc1 L_end")
    a("s_load_dwordx16 s[4:19], s[0:1], 0")
    stamp(0)
    a("v_lshrrev_b32 v1, 6, v0\nv_and_b32 v2, 63, v0")
    a(f"v_readfirstlane_b32 s{sW}, v1")
    a("v_lshrrev_b32 v3, 4, v2\nv_and_b32 v4, 15, v2")
    a(f"s_lshr_b32 s{sBH}, s2, 3\ns_and_b32 s{sS}, s2, 7")
    a(f"s_mul_i32 s{sCNT}, s{sBH}, {CSTR}\ns_add_u32 s{sCNT}, s{sCNT}, {WS_CNT}")
    a(f"s_cmp_ge_u32 s{sW}, 4\ns_cbranch_scc1 L_helper")
    Q=8; MK=16; PB=20; ACC=28; M=36; L=37; MC=38; S0=39; S1=40; T=41; VA=46; VL=7
    RB=48; NV=RB+U*32
    a(f"v_lshlrev_b32 v{VL}, 9, v3\nv_lshl_add_u32 v{VL}, v4, 4, v{VL}\nv_lshl_add_u32 v{VL}, v1, 11, v{VL}")
    a(f"s_mul_i32 s{sROT}, s{sBH}, {rot}\ns_lshl_b32 s{sT}, s{sBH}, 22\ns_mov_b32 s{sTK}, s{sS}")
    def setaddr():
        a(f"s_lshl_b32 s{sT}, s{sTK}, 14\ns_add_u32 s{sT}, s{sT}, s{sROT}\ns_and_b32 s{sT}, s{sT}, 0x3fffff")
        a(f"v_add_u32 v{VA}, s{sT}, v{VL}")
        a(f"s_add_u32 s{sT}, s{sT}, 0x2000\ns_and_b32 s{sT}, s{sT}, 0x3fffff")
        a(f"v_add_u32 v{VA+1}, s{sT}, v{VL}")
    def loadgrp(slot,g):
        r=RB+slot*32+g*8; sp=6 if g<2 else 8
        a(f"global_load_dwordx4 v[{r}:{r+3}], v{VA+(g&1)}, s[{sp}:{sp+1}] {flags}")
        a(f"global_load_dwordx4 v[{r+4}:{r+7}], v{VA+(g&1)}, s[{sp}:{sp+1}] offset:256 {flags}")
    a("s_waitcnt lgkmcnt(0)")
    a(f"s_add_u32 s6, s6, s{sT}\ns_addc_u32 s7, s7, 0\ns_add_u32 s8, s8, s{sT}\ns_addc_u32 s9, s9, 0")
    n=0
    def masks(vm,vt):
        a(f"v_and_b32 v{vt}, 1, v2\nv_lshlrev_b32 v{vt}, 4, v{vt}\nv_mov_b32 v{vt+1}, 0xffff\nv_lshlrev_b32 v{vt}, v{vt}, v{vt+1}\nv_bfe_u32 v{vt+1}, v2, 1, 2")
        for k in range(4):
            a(f"v_cmp_eq_u32 vcc, {k}, v{vt+1}\ns_nop 1\nv_cndmask_b32 v{vm+k}, 0, v{vt}, vcc")
    for u in range(U):
        setaddr()
        a(f"s_add_u32 s{sTK}, s{sTK}, 8")
        for g in range(4):
            if n+2>cap: a(f"s_waitcnt vmcnt({cap-2})")
            loadgrp(u,g); n+=2
        if u==0:
            masks(MK,T)
            for r in range(8): a(f"v_mov_b32 v{ACC+r}, 0")
            a(f"s_mov_b32 s{sC}, {C_SCALE}\nv_mov_b32 v{M}, 0xff7fffff\nv_mov_b32 v{L}, 0\nv_mul_f32 v{MC}, s{sC}, v{M}")
            a(f"s_add_u32 s{sCNT}, s18, s{sCNT}\ns_addc_u32 s{sCNT+1}, s19, 0")
            a(f"s_mov_b32 s{sK}, {U}\ns_mov_b32 s{sST}, 0\ns_mov_b32 s{sXT}, 0\nv_lshlrev_b32 v5, 4, v4")
    stamp(1)
    a("s_barrier")
    a(f"ds_read_b128 v[{Q}:{Q+3}], v5 offset:{L_Q}\nds_read_b128 v[{Q+4}:{Q+7}], v5 offset:{L_Q+256}")
    stamp(2)
    a("s_waitcnt lgkmcnt(0)")
    def chunk(slot, loop):
        lb=f"{slot}"
        def wait(g):
            if not loop: return
            a(f"s_waitcnt vmcnt({cap-2})")
            if 6-2*g < cap-2:
                a(f"s_cmp_lg_u32 s{sST}, 2\ns_cbranch_scc1 L_w{lb}_{g}\ns_waitcnt vmcnt({6-2*g})\nL_w{lb}_{g}:")
        def refill(g):
            if not loop: return
            a(f"s_cmp_lg_u32 s{sST}, 0\ns_cbranch_scc1 L_r{lb}_{g}")
            loadgrp(slot,g)
            a(f"L_r{lb}_{g}:")
        for g in range(2):
            r=RB+slot*32+g*8
            wait(g)
            a(f"v_dot2_f32_bf16 v{S0+g}, v{r}, v{Q}, 0")
            for k in range(1,8): a(f"v_dot2_f32_bf16 v{S0+g}, v{r+k}, v{Q+k}, v{S0+g}")
            refill(g)
        a("s_nop 1")
        for dpp in ["quad_perm:[1,0,3,2]","quad_perm:[2,3,0,1]","row_half_mirror","row_mirror"]:
            a(f"v_add_f32_dpp v{S0}, v{S0}, v{S0} {dpp} row_mask:0xf bank_mask:0xf")
            a(f"v_add_f32_dpp v{S1}, v{S1}, v{S1} {dpp} row_mask:0xf bank_mask:0xf")
            if dpp!="row_mirror": a("s_nop 0")
        a(f"v_max_f32 v{T}, v{S0}, v{S1}\nv_cmp_gt_f32 vcc, v{T}, v{M}\ns_cbranch_vccz L_sk{lb}")
        a(f"v_mov_b32 v{T+1}, v{T}\ns_nop 1\nv_permlane16_swap_b32 v{T}, v{T+1}\nv_max_f32 v{T}, v{T}, v{T+1}")
        a(f"v_mov_b32 v{T+1}, v{T}\ns_nop 1\nv_permlane32_swap_b32 v{T}, v{T+1}\nv_max_f32 v{T}, v{T}, v{T+1}")
        a(f"v_sub_f32 v{T+1}, v{M}, v{T}\nv_mul_f32 v{T+1}, s{sC}, v{T+1}\nv_exp_f32 v{T+1}, v{T+1}")
        a(f"v_mov_b32 v{M}, v{T}\nv_mul_f32 v{MC}, s{sC}, v{T}")
        a(f"v_mul_f32 v{L}, v{L}, v{T+1}")
        for r in range(8): a(f"v_mul_f32 v{ACC+r}, v{ACC+r}, v{T+1}")
        a(f"L_sk{lb}:")
        for g in range(2): a(f"v_fma_f32 v{S0+g}, v{S0+g}, s{sC}, -v{MC}")
        for g in range(2): a(f"v_exp_f32 v{S0+g}, v{S0+g}")
        a(f"v_add_f32 v{L}, v{L}, v{S0}\nv_cvt_pk_bf16_f32 v{S0}, v{S0}, v{S0}")
        a(f"v_add_f32 v{L}, v{L}, v{S1}\nv_cvt_pk_bf16_f32 v{S1}, v{S1}, v{S1}")
        for g in range(2):
            for k in range(4): a(f"v_and_b32 v{PB+4*g+k}, v{S0+g}, v{MK+k}")
        for g in range(2):
            r=RB+slot*32+16+g*8; pb=PB+4*g
            wait(2+g)
            a(f"v_mfma_f32_16x16x32_bf16 v[{ACC}:{ACC+3}], v[{pb}:{pb+3}], v[{r}:{r+3}], v[{ACC}:{ACC+3}]")
            a(f"v_mfma_f32_16x16x32_bf16 v[{ACC+4}:{ACC+7}], v[{pb}:{pb+3}], v[{r+4}:{r+7}], v[{ACC+4}:{ACC+7}]")
            refill(2+g)
            if loop and dyn and g==1-ahead:
                a(f"s_cmp_lg_u32 s{sPULL}, 0\ns_cbranch_scc1 L_nw{lb}")
                a(f"s_waitcnt lgkmcnt(0)\ns_add_u32 s{sAT}, s{sAT}, {nstatic*8}\ns_lshl_b32 s{sT}, s{sK}, 2\nv_mov_b32 v{T}, s{sT}\nv_mov_b32 v{T+1}, s{sAT}\nds_write_b32 v{T}, v{T+1} offset:{L_TK+4}")
                a(f"L_nw{lb}:")
    assert cap<=10
    a("L_loop:")
    for u in range(2):
        a(f"s_mov_b32 s{sPULL}, 1")
        a(f"s_cmp_lg_u32 s{sST}, 0\ns_cbranch_scc1 L_dr{u}")
        if dyn:
            a(f"s_cmp_lt_u32 s{sK}, {nstatic}\ns_cbranch_scc1 L_have{u}")
            a(f"s_lshl_b32 s{sT}, s{sK}, 2\nv_mov_b32 v{T}, s{sT}\ns_mov_b32 s{sSP}, {SPIN}")
            a(f"L_poll{u}:")
            a(f"ds_read_b32 v{T+1}, v{T} offset:{L_TK}\ns_sub_u32 s{sSP}, s{sSP}, 1\ns_cbranch_scc1 L_dr{u}\ns_waitcnt lgkmcnt(0)\nv_readfirstlane_b32 s{sTK}, v{T+1}")
            a(f"s_cmp_eq_u32 s{sTK}, -1\ns_cbranch_scc1 L_poll{u}")
            a(f"L_have{u}:")
        a(f"s_cmp_ge_u32 s{sTK}, {NCH}\ns_cbranch_scc1 L_dr{u}")
        setaddr()
        a(f"s_add_u32 s{sTK}, s{sTK}, 8")
        if dyn:
            a(f"s_cmp_ge_u32 s{sK}, {nstatic-1}\ns_cselect_b32 s{sPULL}, s{sW}, 1\ns_cmp_lg_u32 s{sPULL}, 0\ns_cbranch_scc1 L_go{u}")
            a(f"s_mov_b32 s{sAT}, 1\ns_atomic_add s{sAT}, s[{sCNT}:{sCNT+1}], 0 glc")
        a(f"s_branch L_go{u}")
        a(f"L_dr{u}:\ns_add_u32 s{sST}, s{sST}, 1")
        a(f"L_go{u}:")
        chunk(u,True)
        a(f"s_cmp_eq_u32 s{sST}, 2\ns_cbranch_scc1 L_done")
        a(f"s_add_u32 s{sK}, s{sK}, 1")
        xs=[x for x in range(2,U) if (x-2+1)%2==u]
        for x in xs:
            a(f"s_cmp_eq_u32 s{sK}, {U+x}\ns_cbranch_scc1 L_x{x}")
        a(f"L_xr{u}:")
    a("s_branch L_loop")
    a("L_done:")
    stamp(3)
    a(f"v_mov_b32 v{T+1}, v{L}\nv_lshrrev_b32 v6, 1, v3\nv_lshlrev_b32 v6, 9, v6\nv_permlane16_swap_b32 v{L}, v{T+1}\nv_add_f32 v{L}, v{L}, v{T+1}")
    a(f"v_mov_b32 v{T+1}, v{L}\nv_lshl_add_u32 v6, v4, 5, v6\nv_and_b32 v5, 1, v3\nv_permlane32_swap_b32 v{L}, v{T+1}\nv_add_f32 v{L}, v{L}, v{T+1}")
    a(f"v_cmp_gt_u32 vcc, 32, v2\nv_mov_b32 v{M}, v{MC}\nv_lshl_add_u32 v6, v5, 4, v6\nv_lshl_add_u32 v6, v1, 10, v6\nv_lshlrev_b32 v5, 3, v1")
    for r in range(4): a(f"v_cndmask_b32 v{ACC+r}, v{ACC+4+r}, v{ACC+r}, vcc")
    a(f"ds_write_b64 v5, v[{M}:{L}] offset:{L_ML}")
    a(f"ds_write_b128 v6, v[{ACC}:{ACC+3}] offset:{L_O}")
    a("s_waitcnt lgkmcnt(0)\ns_barrier")
    stamp(4)
    dumpstamps(5)
    a("s_endpgm")
    for x in range(2,U):
        a(f"L_x{x}:")
        chunk(x,False)
        a(f"s_branch L_xr{(x-2+1)%2}")
    a("L_helper:")
    a(f"s_and_b32 s{sH}, s{sBH}, 15\ns_lshr_b32 s{sB}, s{sBH}, 4")
    a("s_waitcnt lgkmcnt(0)")
    a(f"s_load_dword s{sE}, s[18:19], 0")
    a(f"s_cmp_lg_u32 s{sW}, 4\ns_cbranch_scc1 L_noq")
    a("s_setprio 3")
    a(f"s_lshl_b32 s{sT}, s{sB}, 1\ns_lshr_b32 s{sT2}, s{sS}, 2\ns_add_u32 s{sTK}, s{sT}, s{sT2}")
    a(f"s_mul_i32 s{sT}, s{sTK}, 112")
    a(f"v_lshrrev_b32 v5, 3, v2\nv_add_u32 v5, s{sT}, v5\nv_lshlrev_b32 v5, 13, v5\nv_and_b32 v6, 7, v2\nv_lshl_add_u32 v5, v6, 4, v5")
    a(f"s_and_b32 s{sK}, s{sS}, 3\ns_lshl_b32 s{sT2}, s{sH}, 2\ns_add_u32 s{sT2}, s{sT2}, s{sK}\ns_lshl_b32 s{sT2}, s{sT2}, 7\nv_add_u32 v5, s{sT2}, v5")
    a(f"v_and_b32 v6, 1, v2\nv_mul_u32_u24 v6, 896, v6\nv_lshl_add_u32 v6, v3, 3, v6\ns_lshl_b32 s{sT}, s{sT}, 1\nv_add_u32 v6, s{sT}, v6")
    for t in range(14):
        a(f"s_mov_b32 m0, {L_WQ+t*1024}")
        if t==0: a("s_nop 0")
        else: a("v_add_u32 v5, 0x10000, v5")
        a(f"global_load_lds_dwordx4 v5, s[10:11] nt")
    for u in range(7): a(f"global_load_dwordx2 v[{16+2*u}:{17+2*u}], v6, s[4:5] offset:{u*32}")
    if dyn:
        a(f"s_cmp_lg_u32 s{sS}, 0\ns_cbranch_scc1 L_noinit")
        a(f"v_mov_b32 v8, s{sCNT}\nv_mov_b32 v9, 0\nglobal_store_dword v8, v9, s[18:19] sc1")
        a("L_noinit:")
    a("v_lshrrev_b32 v7, 2, v2\nv_lshlrev_b32 v7, 7, v7\nv_and_b32 v8, 3, v2\nv_lshl_add_u32 v7, v8, 3, v7")
    a(f"s_lshl_b32 s{sT}, s{sH}, 13\ns_lshl_b32 s{sT2}, s{sTK}, 10\ns_add_u32 s{sT2}, s{sT2}, s{sT}\ns_lshl_b32 s{sK}, s{sK}, 8\ns_add_u32 s{sT2}, s{sT2}, s{sK}\ns_add_u32 s{sT2}, s{sT2}, {WS_QP+2048}")
    a(f"v_lshl_add_u32 v8, v2, 2, s{sT2}")
    a(f"s_lshl_b32 s{sT2}, s{sB}, 12\ns_add_u32 s{sT}, s{sT}, s{sT2}\ns_add_u32 s{sT}, s{sT}, {WS_QP}\nv_lshl_add_u32 v9, v2, 4, s{sT}")
    a(f"v_cmp_eq_u32 s[60:61], 1, v3\nv_cmp_eq_u32 s[62:63], 2, v3\nv_cmp_eq_u32 s[64:65], 3, v3")
    a(f"s_waitcnt lgkmcnt(0)\ns_add_u32 s{sE}, s{sE}, 1\ns_and_b32 s{sTAG}, s{sE}, {TAGM}\nv_mov_b32 v10, s{sTAG}\ns_movk_i32 s{sC}, {TAGM}")
    a("s_waitcnt vmcnt(0)")
    stamp(1)
    B0=48; D0=32
    def trs(u):
        for c in range(4): a(f"ds_read_b64_tr_b16 v[{B0+u*8+2*c}:{B0+u*8+2*c+1}], v7 offset:{L_WQ+u*2048+c*32}")
    if stamps: a("s_waitcnt lgkmcnt(0)")
    trs(0); trs(1); trs(2)
    for u in range(7):
        if u+3<7:
            a("s_waitcnt lgkmcnt(8)"); trs(u+3)
        else: a(f"s_waitcnt lgkmcnt({4*(6-u)})")
        for c in range(4):
            cc="0" if u==0 else f"v[{D0+4*c}:{D0+4*c+3}]"
            a(f"v_mfma_f32_16x16x16_bf16 v[{D0+4*c}:{D0+4*c+3}], v[{16+2*u}:{17+2*u}], v[{B0+u*8+2*c}:{B0+u*8+2*c+1}], {cc}")
    a("s_nop 5")
    for bb in range(2):
        a(f"v_cndmask_b32 v{12+bb}, v{D0+bb}, v{D0+4+bb}, s[60:61]")
    for bb in range(2):
        a(f"v_cndmask_b32 v{12+bb}, v{12+bb}, v{D0+8+bb}, s[62:63]")
    for bb in range(2):
        a(f"v_cndmask_b32 v{12+bb}, v{12+bb}, v{D0+12+bb}, s[64:65]")
    for bb in range(2):
        a(f"v_bfi_b32 v{12+bb}, s{sC}, v10, v{12+bb}")
    a("global_store_dword v8, v12, s[18:19] offset:-2048 sc1\nglobal_store_dword v8, v13, s[18:19] offset:2048 sc1")
    stamp(2)
    a(f"s_mov_b32 s{sSP}, {SPIN}")
    a("L_qpoll:")
    for k in range(4): a(f"global_load_dwordx4 v[{16+4*k}:{19+4*k}], v9, s[18:19] offset:{k*1024} sc1")
    a(f"s_sub_u32 s{sSP}, s{sSP}, 1\ns_cbranch_scc1 L_qgo")
    a("s_waitcnt vmcnt(0)")
    for k in range(16): a(f"v_xor_b32 v{16+k}, s{sTAG}, v{16+k}")
    a("v_or3_b32 v12, v16, v17, v18")
    for k in range(3,15,2): a(f"v_or3_b32 v12, v12, v{16+k}, v{17+k}")
    a(f"v_or_b32 v12, v12, v31\nv_and_b32 v12, s{sC}, v12\nv_cmp_ne_u32 vcc, 0, v12\ns_cbranch_vccnz L_qpoll")
    a("L_qgo:")
    for r in range(4): a(f"v_add_f32 v{16+r}, v{16+r}, v{20+r}\nv_add_f32 v{24+r}, v{24+r}, v{28+r}")
    for r in range(4): a(f"v_add_f32 v{16+r}, v{16+r}, v{24+r}")
    a(f"v_cvt_pk_bf16_f32 v16, v16, v17\nv_cvt_pk_bf16_f32 v17, v18, v19\nv_lshlrev_b32 v5, 3, v2\nds_write_b64 v5, v[16:17] offset:{L_Q}")
    a("s_setprio 0\ns_branch L_hbar")
    a("L_noq:")
    a(f"v_mov_b32 v8, -1\nv_mov_b32 v9, -1\nv_mov_b32 v10, -1\nv_mov_b32 v11, -1\nv_lshlrev_b32 v5, 4, v2\nds_write_b128 v5, v[8:11] offset:{L_TK}")
    a(f"s_waitcnt lgkmcnt(0)\ns_add_u32 s{sE}, s{sE}, 1\ns_and_b32 s{sTAG}, s{sE}, {TAGM}\ns_movk_i32 s{sC}, {TAGM}")
    a("L_hbar:")
    a("s_waitcnt lgkmcnt(0)")
    stamp(3)
    a("s_barrier")
    WO=64
    a(f"s_sub_u32 s{sK}, s{sW}, 4")
    a(f"s_lshl_b32 s{sT}, s{sH}, 8\ns_lshl_b32 s{sT2}, s{sS}, 5\ns_add_u32 s{sT}, s{sT}, s{sT2}\nv_lshl_add_u32 v5, v3, 3, s{sT}\nv_mul_u32_u24 v5, 896, v5")
    a(f"v_min_u32 v6, 13, v4\nv_lshl_add_u32 v5, v6, 4, v5\ns_mul_i32 s{sT}, s{sK}, 224\ns_add_u32 s{sT}, s{sT}, 3584\nv_add_u32 v5, s{sT}, v5")
    for t in range(8): a(f"global_load_dwordx4 v[{WO+4*t}:{WO+4*t+3}], v5, s[12:13] offset:{(t-4)*896}")
    masks(16,8)
    a(f"v_mov_b32 v15, s{sTAG}")
    a(f"s_lshl_b32 s{sT}, s{sBH}, 14\ns_add_u32 s{sT}, s{sT}, {WS_OP}\nv_and_b32 v6, 7, v2\nv_lshlrev_b32 v6, 11, v6\nv_add_u32 v21, s{sT}, v6")
    a(f"v_lshrrev_b32 v6, 3, v2\nv_lshl_add_u32 v20, v6, 4, v21\ns_lshl_b32 s{sT}, s{sS}, 7\nv_add_u32 v20, s{sT}, v20")
    a(f"s_lshl_b32 s{sT}, s2, 11\ns_add_u32 s{sT2}, s{sT}, {WS_OP}\nv_lshl_add_u32 v22, v2, 4, s{sT2}")
    a(f"s_lshl_b32 s{sT2}, s{sK}, 9\ns_add_u32 s{sT}, s{sT}, s{sT2}\ns_add_u32 s{sT}, s{sT}, {WS_Y}\nv_lshl_add_u32 v23, v4, 5, s{sT}\nv_and_b32 v6, 1, v3\nv_lshl_add_u32 v23, v6, 4, v23")
    a(f"s_lshr_b32 s{sT}, s{sS}, 2\ns_lshl_b32 s{sT}, s{sT}, 18\ns_and_b32 s{sT2}, s{sS}, 3\ns_lshl_b32 s{sT2}, s{sT2}, 9\ns_add_u32 s{sT}, s{sT}, s{sT2}\ns_lshl_b32 s{sT2}, s{sBH}, 4\ns_add_u32 s{sT}, s{sT}, s{sT2}\ns_add_u32 s{sT}, s{sT}, {WS_Y}")
    a(f"v_lshlrev_b32 v24, 11, v2\nv_add_u32 v24, s{sT}, v24\nv_add_u32 v25, 0x20000, v24")
    a(f"s_mul_i32 s{sT}, s{sS}, 224\ns_lshl_b32 s{sT2}, s{sBH}, 3\ns_add_u32 s{sT}, s{sT}, s{sT2}\nv_mov_b32 v26, s{sT}")
    a(f"v_lshlrev_b32 v27, 4, v2\nv_mov_b32 v28, 0\ns_not_b32 s{sAT}, s{sC}\ns_mov_b32 s{sSP}, {SPIN}")
    a("s_waitcnt vmcnt(0)")
    a("s_barrier")
    stamp(4)
    a(f"s_cmp_lg_u32 s{sW}, 4\ns_cbranch_scc1 L_h1")
    a(f"ds_read_b128 v[32:35], v28 offset:{L_ML}\nds_read_b128 v[36:39], v28 offset:{L_ML+16}")
    for w in range(4): a(f"ds_read_b128 v[{40+4*w}:{43+4*w}], v27 offset:{L_O+w*1024}")
    a("s_waitcnt lgkmcnt(4)" if not stamps else "s_waitcnt lgkmcnt(0)")
    a(f"v_max3_f32 v56, v32, v34, v36\nv_max_f32 v56, v56, v38\nv_and_b32 v56, s{sAT}, v56")
    for w in range(4): a(f"v_sub_f32 v{32+2*w}, v{32+2*w}, v56")
    for w in range(4): a(f"v_exp_f32 v{32+2*w}, v{32+2*w}")
    a(f"v_or_b32 v56, v56, v15\nv_mov_b32 v58, s{sE}\nv_mov_b32 v59, s{sE}")
    a("v_mul_f32 v57, v32, v33\nv_fmac_f32 v57, v34, v35\nv_fmac_f32 v57, v36, v37\nv_fmac_f32 v57, v38, v39")
    a("s_waitcnt lgkmcnt(0)")
    for r in range(4): a(f"v_mul_f32 v{40+r}, v{40+r}, v32")
    for w in range(1,4):
        for r in range(4): a(f"v_fmac_f32 v{40+r}, v{40+4*w+r}, v{32+2*w}")
    a(f"v_bfi_b32 v57, s{sC}, v15, v57")
    for r in range(4): a(f"v_bfi_b32 v{40+r}, s{sC}, v15, v{40+r}")
    a("global_store_dwordx4 v22, v[40:43], s[18:19] sc1")
    a("s_mov_b64 exec, 1\nglobal_store_dwordx4 v22, v[56:59], s[18:19] offset:1024 sc1\ns_mov_b64 exec, -1")
    a("L_h1:")
    stamp(5)
    a("L_h1poll:")
    a("global_load_dwordx4 v[32:35], v21, s[18:19] offset:1024 sc1\nglobal_load_dwordx4 v[36:39], v20, s[18:19] sc1")
    a(f"s_sub_u32 s{sSP}, s{sSP}, 1\ns_cbranch_scc1 L_h1go")
    a("s_waitcnt vmcnt(0)")
    for r in (32,33,36,37,38,39): a(f"v_xor_b32 v{r}, s{sTAG}, v{r}")
    a(f"v_xor_b32 v34, s{sE}, v34\nv_xor_b32 v35, s{sE}, v35")
    a(f"v_or3_b32 v30, v32, v33, v36\nv_or3_b32 v30, v30, v37, v38\nv_or_b32 v30, v30, v39\nv_and_b32 v30, s{sC}, v30\nv_or3_b32 v30, v30, v34, v35")
    a("v_cmp_ne_u32 vcc, 0, v30\ns_cbranch_vccnz L_h1poll")
    a("L_h1go:")
    stamp(6)
    DP=["quad_perm:[1,0,3,2]","quad_perm:[2,3,0,1]","row_half_mirror"]
    a(f"v_max_f32_dpp v30, v32, v32 {DP[0]} row_mask:0xf bank_mask:0xf\nv_mov_b32 v35, v33\ns_nop 0")
    a(f"v_max_f32_dpp v30, v30, v30 {DP[1]} row_mask:0xf bank_mask:0xf\ns_nop 1")
    a(f"v_max_f32_dpp v30, v30, v30 {DP[2]} row_mask:0xf bank_mask:0xf")
    a("v_sub_f32 v32, v32, v30\nv_exp_f32 v32, v32\ns_nop 0")
    for r in range(5): a(f"v_mul_f32 v{35+r}, v{35+r}, v32")
    for d in DP:
        for r in range(5): a(f"v_add_f32_dpp v{35+r}, v{35+r}, v{35+r} {d} row_mask:0xf bank_mask:0xf")
    a("v_rcp_f32 v35, v35\ns_nop 0")
    for r in range(4): a(f"v_mul_f32 v{36+r}, v{36+r}, v35")
    for r in range(4): a(f"v_cvt_pk_bf16_f32 v{36+r}, v{36+r}, v{36+r}")
    for t in range(4):
        for k in range(4): a(f"v_and_b32 v{40+4*t+k}, v{36+t}, v{16+k}")
    for t in range(4):
        c0="0" if t==0 else "v[56:59]"; c1="0" if t==0 else "v[60:63]"
        a(f"v_mfma_f32_16x16x32_bf16 v[56:59], v[{40+4*t}:{43+4*t}], v[{WO+4*t}:{WO+4*t+3}], {c0}")
        a(f"v_mfma_f32_16x16x32_bf16 v[60:63], v[{40+4*t}:{43+4*t}], v[{WO+16+4*t}:{WO+16+4*t+3}], {c1}")
    a("s_nop 7")
    for r in range(4): a(f"v_permlane32_swap_b32 v{60+r}, v{32+r}")
    for r in range(4): a(f"v_add_f32 v{56+r}, v{56+r}, v{32+r}")
    for r in range(4): a(f"v_bfi_b32 v{56+r}, s{sC}, v15, v{56+r}")
    a("s_mov_b32 exec_hi, 0\nglobal_store_dwordx4 v23, v[56:59], s[18:19] sc1\ns_mov_b32 exec_hi, -1")
    stamp(7)
    a(f"s_cmp_lg_u32 s{sW}, 7\ns_cbranch_scc1 L_hend\ns_cmp_ge_u32 s{sBH}, 28\ns_cbranch_scc1 L_hend")
    a(f"s_mov_b32 s{sSP}, {SPIN}")
    a("L_h2poll:")
    a("global_load_dwordx4 v[32:35], v24, s[18:19] sc1\nglobal_load_dwordx4 v[36:39], v25, s[18:19] sc1")
    a(f"s_sub_u32 s{sSP}, s{sSP}, 1\ns_cbranch_scc1 L_h2go")
    a("s_waitcnt vmcnt(0)")
    for r in range(8): a(f"v_xor_b32 v{32+r}, s{sTAG}, v{32+r}")
    a(f"v_or3_b32 v30, v32, v33, v34\nv_or3_b32 v30, v30, v35, v36\nv_or3_b32 v30, v30, v37, v38\nv_or_b32 v30, v30, v39\nv_and_b32 v30, s{sC}, v30")
    a("v_cmp_ne_u32 vcc, 0, v30\ns_cbranch_vccnz L_h2poll")
    a("L_h2go:")
    stamp(8)
    for r in range(4): a(f"v_add_f32 v{32+r}, v{32+r}, v{36+r}")
    a("s_nop 0\nv_permlane32_swap_b32 v32, v34\nv_permlane32_swap_b32 v33, v35")
    a("v_add_f32 v32, v32, v34\nv_add_f32 v33, v33, v35")
    a("s_nop 1\nv_permlane16_swap_b32 v32, v33\nv_add_f32 v32, v32, v33\ns_nop 1")
    for d in DP+["row_mirror"]:
        a(f"v_add_f32_dpp v32, v32, v32 {d} row_mask:0xf bank_mask:0xf\ns_nop 1")
    a("v_cvt_pk_bf16_f32 v32, v32, v32\nv_lshl_add_u32 v26, v3, 1, v26")
    a("s_mov_b32 exec_lo, 0x00010001\ns_mov_b32 exec_hi, 0x00010001")
    a("global_store_short v26, v32, s[14:15]")
    a(f"s_cmp_lg_u32 s2, 0\ns_cbranch_scc1 L_hend")
    a(f"v_mov_b32 v29, s{sE}\nglobal_store_dword v28, v29, s[18:19] sc1")
    a("L_hend:")
    stamp(9)
    dumpstamps(10)
    a("L_end:\ns_endpgm")
    nv=max(NV,136)
    a(f""".section .rodata,"a"
.p2align 6
.amdhsa_kernel {MAIN}
  .amdhsa_next_free_vgpr {nv}
  .amdhsa_next_free_sgpr 72
  .amdhsa_accum_offset {(nv+3)//4*4}
  .amdhsa_group_segment_fixed_size 0
  .amdhsa_kernarg_size 64
  .amdhsa_user_sgpr_count 2
  .amdhsa_user_sgpr_kernarg_segment_ptr 1
  .amdhsa_system_sgpr_workgroup_id_x 1
.end_amdhsa_kernel""")
    open(name,"w").write("\n".join(o)+"\n")
    return build(name)
if __name__=="__main__":
    L=[gen("v2_u4c8.s"), gen("v2_u4c8_st.s",stamps=True), gen("v2_u6c8.s",U=6), gen("v2_u6c10.s",U=6,cap=10), gen("v2_u4c8_static.s",dyn=False), gen("v2_u2c8.s",U=2)]
    print(" ".join(L))
```

```python
import sys
from asm import build
MAIN="standalone__mha_block_cached__decode_kernel"
C_SCALE=0x3db8aa3b
TAGM=0x3ff
WS_CNT=0x10000
CSTR=4096+256
WS_QP=0x80000
WS_OP=0x100000
WS_Y =0x200000
L_TK=0; L_Q=1024; L_ML=1536; L_O=2048; L_WQ=6144; LDS_SZ=L_WQ+14336
SPIN=1<<16

def gen(name, U=4, cap=8, nstatic=26, rot=8192, flags="nt", stamps=False, ahead=1, dyn=True, hdr="", probe=None, pwg=0):
    o=[]; a=o.append
    NCH=256
    a(hdr+f"; @launch grid=(256,1,1) block=(512,1,1) lds={LDS_SZ}")
    a('.amdgcn_target "amdgcn-amd-amdhsa--gfx950"\n.text')
    a(f".globl {MAIN}\n.p2align 8\n.type {MAIN},@function\n{MAIN}:")
    sW=20; sBH=21; sS=22; sROT=23; sTK=24; sK=25; sC=26; sT=27; sT2=28; sAT=29; sPULL=30; sST=31; sTAG=32; sE=33; sCNT=34; sSP=36; sH=37; sB=38; sXT=39
    def stamp(i):
        if stamps or (probe is not None and i in (0,probe)): a(f"s_memrealtime s[{40+2*i}:{41+2*i}]")
    def dumpstamps(n):
        if not stamps: return
        a("s_mov_b64 exec, -1\ns_waitcnt lgkmcnt(0)")
        a("v_mov_b32 v10, 0")
        for i in range(n): a(f"v_writelane_b32 v10, s{40+2*i}, {i}")
        a(f"v_writelane_b32 v10, s{sK}, 14")
        a("s_getreg_b32 s27, hwreg(HW_REG_XCC_ID)\nv_writelane_b32 v10, s27, 15")
        a(f"s_lshl_b32 s27, s2, 3\ns_add_u32 s27, s27, s{sW}\ns_lshl_b32 s27, s27, 6\ns_add_u32 s27, s27, 0x10000000")
        a("v_lshl_add_u32 v11, v2, 2, s27\ns_mov_b64 exec, 0xffff")
        a("global_store_dword v11, v10, s[18:19]")
    a("s_cmp_ge_u32 s2, 256\ns_cbranch_scc1 L_end")
    a("s_load_dwordx16 s[4:19], s[0:1], 0")
    stamp(0)
    a("v_lshrrev_b32 v1, 6, v0\nv_and_b32 v2, 63, v0")
    a(f"v_readfirstlane_b32 s{sW}, v1")
    a("v_lshrrev_b32 v3, 4, v2\nv_and_b32 v4, 15, v2")
    a(f"s_lshr_b32 s{sBH}, s2, 3\ns_and_b32 s{sS}, s2, 7")
    a(f"s_mul_i32 s{sCNT}, s{sBH}, {CSTR}\ns_add_u32 s{sCNT}, s{sCNT}, {WS_CNT}")
    a(f"s_cmp_ge_u32 s{sW}, 4\ns_cbranch_scc1 L_helper")
    Q=8; MK=16; PB=20; ACC=28; M=36; L=37; MC=38; S0=39; S1=40; T=41; VA=46; VL=7
    RB=48; NV=RB+U*32
    a(f"v_lshlrev_b32 v{VL}, 9, v3\nv_lshl_add_u32 v{VL}, v4, 4, v{VL}\nv_lshl_add_u32 v{VL}, v1, 11, v{VL}")
    a(f"s_mul_i32 s{sROT}, s{sBH}, {rot}\ns_lshl_b32 s{sT}, s{sBH}, 22\ns_mov_b32 s{sTK}, s{sS}")
    def setaddr():
        a(f"s_lshl_b32 s{sT}, s{sTK}, 14\ns_add_u32 s{sT}, s{sT}, s{sROT}\ns_and_b32 s{sT}, s{sT}, 0x3fffff")
        a(f"v_add_u32 v{VA}, s{sT}, v{VL}")
        a(f"s_add_u32 s{sT}, s{sT}, 0x2000\ns_and_b32 s{sT}, s{sT}, 0x3fffff")
        a(f"v_add_u32 v{VA+1}, s{sT}, v{VL}")
    def loadgrp(slot,g):
        r=RB+slot*32+g*8; sp=6 if g<2 else 8
        a(f"global_load_dwordx4 v[{r}:{r+3}], v{VA+(g&1)}, s[{sp}:{sp+1}] {flags}")
        a(f"global_load_dwordx4 v[{r+4}:{r+7}], v{VA+(g&1)}, s[{sp}:{sp+1}] offset:256 {flags}")
    a("s_waitcnt lgkmcnt(0)")
    a(f"s_add_u32 s6, s6, s{sT}\ns_addc_u32 s7, s7, 0\ns_add_u32 s8, s8, s{sT}\ns_addc_u32 s9, s9, 0")
    n=0
    def masks(vm,vt):
        a(f"v_and_b32 v{vt}, 1, v2\nv_lshlrev_b32 v{vt}, 4, v{vt}\nv_mov_b32 v{vt+1}, 0xffff\nv_lshlrev_b32 v{vt}, v{vt}, v{vt+1}\nv_bfe_u32 v{vt+1}, v2, 1, 2")
        for k in range(4):
            a(f"v_cmp_eq_u32 vcc, {k}, v{vt+1}\ns_nop 1\nv_cndmask_b32 v{vm+k}, 0, v{vt}, vcc")
    for u in range(U):
        setaddr()
        a(f"s_add_u32 s{sTK}, s{sTK}, 8")
        for g in range(4):
            if n+2>cap: a(f"s_waitcnt vmcnt({cap-2})")
            loadgrp(u,g); n+=2
        if u==0:
            masks(MK,T)
            for r in range(8): a(f"v_mov_b32 v{ACC+r}, 0")
            a(f"s_mov_b32 s{sC}, {C_SCALE}\nv_mov_b32 v{M}, 0xff7fffff\nv_mov_b32 v{L}, 0\nv_mul_f32 v{MC}, s{sC}, v{M}")
            a(f"s_add_u32 s{sCNT}, s18, s{sCNT}\ns_addc_u32 s{sCNT+1}, s19, 0")
            a(f"s_mov_b32 s{sK}, {U}\ns_mov_b32 s{sST}, 0\ns_mov_b32 s{sXT}, 0\nv_lshlrev_b32 v5, 4, v4")
    stamp(1)
    a("s_barrier")
    a(f"ds_read_b128 v[{Q}:{Q+3}], v5 offset:{L_Q}\nds_read_b128 v[{Q+4}:{Q+7}], v5 offset:{L_Q+256}")
    stamp(2)
    a("s_waitcnt lgkmcnt(0)")
    def chunk(slot, loop):
        lb=f"{slot}"
        def wait(g):
            if not loop: return
            a(f"s_waitcnt vmcnt({cap-2})")
            if 6-2*g < cap-2:
                a(f"s_cmp_lg_u32 s{sST}, 2\ns_cbranch_scc1 L_w{lb}_{g}\ns_waitcnt vmcnt({6-2*g})\nL_w{lb}_{g}:")
        def refill(g):
            if not loop: return
            a(f"s_cmp_lg_u32 s{sST}, 0\ns_cbranch_scc1 L_r{lb}_{g}")
            loadgrp(slot,g)
            a(f"L_r{lb}_{g}:")
        for g in range(2):
            r=RB+slot*32+g*8
            wait(g)
            a(f"v_dot2_f32_bf16 v{S0+g}, v{r}, v{Q}, 0")
            for k in range(1,8): a(f"v_dot2_f32_bf16 v{S0+g}, v{r+k}, v{Q+k}, v{S0+g}")
            refill(g)
        a("s_nop 1")
        for dpp in ["quad_perm:[1,0,3,2]","quad_perm:[2,3,0,1]","row_half_mirror","row_mirror"]:
            a(f"v_add_f32_dpp v{S0}, v{S0}, v{S0} {dpp} row_mask:0xf bank_mask:0xf")
            a(f"v_add_f32_dpp v{S1}, v{S1}, v{S1} {dpp} row_mask:0xf bank_mask:0xf")
            if dpp!="row_mirror": a("s_nop 0")
        a(f"v_max_f32 v{T}, v{S0}, v{S1}\nv_cmp_gt_f32 vcc, v{T}, v{M}\ns_cbranch_vccz L_sk{lb}")
        a(f"v_mov_b32 v{T+1}, v{T}\ns_nop 1\nv_permlane16_swap_b32 v{T}, v{T+1}\nv_max_f32 v{T}, v{T}, v{T+1}")
        a(f"v_mov_b32 v{T+1}, v{T}\ns_nop 1\nv_permlane32_swap_b32 v{T}, v{T+1}\nv_max_f32 v{T}, v{T}, v{T+1}")
        a(f"v_sub_f32 v{T+1}, v{M}, v{T}\nv_mul_f32 v{T+1}, s{sC}, v{T+1}\nv_exp_f32 v{T+1}, v{T+1}")
        a(f"v_mov_b32 v{M}, v{T}\nv_mul_f32 v{MC}, s{sC}, v{T}")
        a(f"v_mul_f32 v{L}, v{L}, v{T+1}")
        for r in range(8): a(f"v_mul_f32 v{ACC+r}, v{ACC+r}, v{T+1}")
        a(f"L_sk{lb}:")
        for g in range(2): a(f"v_fma_f32 v{S0+g}, v{S0+g}, s{sC}, -v{MC}")
        for g in range(2): a(f"v_exp_f32 v{S0+g}, v{S0+g}")
        a(f"v_add_f32 v{L}, v{L}, v{S0}\nv_cvt_pk_bf16_f32 v{S0}, v{S0}, v{S0}")
        a(f"v_add_f32 v{L}, v{L}, v{S1}\nv_cvt_pk_bf16_f32 v{S1}, v{S1}, v{S1}")
        for g in range(2):
            for k in range(4): a(f"v_and_b32 v{PB+4*g+k}, v{S0+g}, v{MK+k}")
        for g in range(2):
            r=RB+slot*32+16+g*8; pb=PB+4*g
            wait(2+g)
            a(f"v_mfma_f32_16x16x32_bf16 v[{ACC}:{ACC+3}], v[{pb}:{pb+3}], v[{r}:{r+3}], v[{ACC}:{ACC+3}]")
            a(f"v_mfma_f32_16x16x32_bf16 v[{ACC+4}:{ACC+7}], v[{pb}:{pb+3}], v[{r+4}:{r+7}], v[{ACC+4}:{ACC+7}]")
            refill(2+g)
            if loop and dyn and g==1-ahead:
                a(f"s_cmp_lg_u32 s{sPULL}, 0\ns_cbranch_scc1 L_nw{lb}")
                a(f"s_waitcnt lgkmcnt(0)\ns_add_u32 s{sAT}, s{sAT}, {nstatic*8}\ns_lshl_b32 s{sT}, s{sK}, 2\nv_mov_b32 v{T}, s{sT}\nv_mov_b32 v{T+1}, s{sAT}\nds_write_b32 v{T}, v{T+1} offset:{L_TK+4}")
                a(f"L_nw{lb}:")
    assert cap<=10
    a("L_loop:")
    for u in range(2):
        a(f"s_mov_b32 s{sPULL}, 1")
        a(f"s_cmp_lg_u32 s{sST}, 0\ns_cbranch_scc1 L_dr{u}")
        if dyn:
            a(f"s_cmp_lt_u32 s{sK}, {nstatic}\ns_cbranch_scc1 L_have{u}")
            a(f"s_lshl_b32 s{sT}, s{sK}, 2\nv_mov_b32 v{T}, s{sT}\ns_mov_b32 s{sSP}, {SPIN}")
            a(f"L_poll{u}:")
            a(f"ds_read_b32 v{T+1}, v{T} offset:{L_TK}\ns_sub_u32 s{sSP}, s{sSP}, 1\ns_cbranch_scc1 L_dr{u}\ns_waitcnt lgkmcnt(0)\nv_readfirstlane_b32 s{sTK}, v{T+1}")
            a(f"s_cmp_eq_u32 s{sTK}, -1\ns_cbranch_scc1 L_poll{u}")
            a(f"L_have{u}:")
        a(f"s_cmp_ge_u32 s{sTK}, {NCH}\ns_cbranch_scc1 L_dr{u}")
        setaddr()
        a(f"s_add_u32 s{sTK}, s{sTK}, 8")
        if dyn:
            a(f"s_cmp_ge_u32 s{sK}, {nstatic-1}\ns_cselect_b32 s{sPULL}, s{sW}, 1\ns_cmp_lg_u32 s{sPULL}, 0\ns_cbranch_scc1 L_go{u}")
            a(f"s_mov_b32 s{sAT}, 1\ns_atomic_add s{sAT}, s[{sCNT}:{sCNT+1}], 0 glc")
        a(f"s_branch L_go{u}")
        a(f"L_dr{u}:\ns_add_u32 s{sST}, s{sST}, 1")
        a(f"L_go{u}:")
        chunk(u,True)
        a(f"s_cmp_eq_u32 s{sST}, 2\ns_cbranch_scc1 L_done")
        a(f"s_add_u32 s{sK}, s{sK}, 1")
        xs=[x for x in range(2,U) if (x-2+1)%2==u]
        for x in xs:
            a(f"s_cmp_eq_u32 s{sK}, {U+x}\ns_cbranch_scc1 L_x{x}")
        a(f"L_xr{u}:")
    a("s_branch L_loop")
    a("L_done:")
    stamp(3)
    a(f"v_mov_b32 v{T+1}, v{L}\nv_lshrrev_b32 v6, 1, v3\nv_lshlrev_b32 v6, 9, v6\nv_permlane16_swap_b32 v{L}, v{T+1}\nv_add_f32 v{L}, v{L}, v{T+1}")
    a(f"v_mov_b32 v{T+1}, v{L}\nv_lshl_add_u32 v6, v4, 5, v6\nv_and_b32 v5, 1, v3\nv_permlane32_swap_b32 v{L}, v{T+1}\nv_add_f32 v{L}, v{L}, v{T+1}")
    a(f"v_cmp_gt_u32 vcc, 32, v2\nv_mov_b32 v{M}, v{MC}\nv_lshl_add_u32 v6, v5, 4, v6\nv_lshl_add_u32 v6, v1, 10, v6\nv_lshlrev_b32 v5, 3, v1")
    for r in range(4): a(f"v_cndmask_b32 v{ACC+r}, v{ACC+4+r}, v{ACC+r}, vcc")
    a(f"ds_write_b64 v5, v[{M}:{L}] offset:{L_ML}")
    a(f"ds_write_b128 v6, v[{ACC}:{ACC+3}] offset:{L_O}")
    a("s_waitcnt lgkmcnt(0)\ns_barrier")
    stamp(4)
    dumpstamps(5)
    a("s_endpgm")
    for x in range(2,U):
        a(f"L_x{x}:")
        chunk(x,False)
        a(f"s_branch L_xr{(x-2+1)%2}")
    a("L_helper:")
    a(f"s_and_b32 s{sH}, s{sBH}, 15\ns_lshr_b32 s{sB}, s{sBH}, 4")
    a("s_waitcnt lgkmcnt(0)")
    a(f"s_load_dword s{sE}, s[18:19], 0")
    a(f"s_cmp_lg_u32 s{sW}, 4\ns_cbranch_scc1 L_noq")
    a("s_setprio 3")
    a(f"s_lshl_b32 s{sT}, s{sB}, 1\ns_lshr_b32 s{sT2}, s{sS}, 2\ns_add_u32 s{sTK}, s{sT}, s{sT2}")
    a(f"s_mul_i32 s{sT}, s{sTK}, 112")
    a(f"v_lshrrev_b32 v5, 3, v2\nv_add_u32 v5, s{sT}, v5\nv_lshlrev_b32 v5, 13, v5\nv_and_b32 v6, 7, v2\nv_lshl_add_u32 v5, v6, 4, v5")
    a(f"s_and_b32 s{sK}, s{sS}, 3\ns_lshl_b32 s{sT2}, s{sH}, 2\ns_add_u32 s{sT2}, s{sT2}, s{sK}\ns_lshl_b32 s{sT2}, s{sT2}, 7\nv_add_u32 v5, s{sT2}, v5")
    a(f"v_and_b32 v6, 1, v2\nv_mul_u32_u24 v6, 896, v6\nv_lshl_add_u32 v6, v3, 3, v6\ns_lshl_b32 s{sT}, s{sT}, 1\nv_add_u32 v6, s{sT}, v6")
    for t in range(14):
        a(f"s_mov_b32 m0, {L_WQ+t*1024}")
        if t==0: a("s_nop 0")
        else: a("v_add_u32 v5, 0x10000, v5")
        a(f"global_load_lds_dwordx4 v5, s[10:11] nt")
    for u in range(7): a(f"global_load_dwordx2 v[{16+2*u}:{17+2*u}], v6, s[4:5] offset:{u*32}")
    if dyn:
        a(f"s_cmp_lg_u32 s{sS}, 0\ns_cbranch_scc1 L_noinit")
        a(f"v_mov_b32 v8, s{sCNT}\nv_mov_b32 v9, 0\nglobal_store_dword v8, v9, s[18:19] sc1")
        a("L_noinit:")
    a("v_lshrrev_b32 v7, 2, v2\nv_lshlrev_b32 v7, 7, v7\nv_and_b32 v8, 3, v2\nv_lshl_add_u32 v7, v8, 3, v7")
    a(f"s_lshl_b32 s{sT}, s{sH}, 13\ns_lshl_b32 s{sT2}, s{sTK}, 10\ns_add_u32 s{sT2}, s{sT2}, s{sT}\ns_lshl_b32 s{sK}, s{sK}, 8\ns_add_u32 s{sT2}, s{sT2}, s{sK}\ns_add_u32 s{sT2}, s{sT2}, {WS_QP+2048}")
    a(f"v_lshl_add_u32 v8, v2, 2, s{sT2}")
    a(f"s_lshl_b32 s{sT2}, s{sB}, 12\ns_add_u32 s{sT}, s{sT}, s{sT2}\ns_add_u32 s{sT}, s{sT}, {WS_QP}\nv_lshl_add_u32 v9, v2, 4, s{sT}")
    a(f"v_cmp_eq_u32 s[60:61], 1, v3\nv_cmp_eq_u32 s[62:63], 2, v3\nv_cmp_eq_u32 s[64:65], 3, v3")
    a(f"s_waitcnt lgkmcnt(0)\ns_add_u32 s{sE}, s{sE}, 1\ns_and_b32 s{sTAG}, s{sE}, {TAGM}\nv_mov_b32 v10, s{sTAG}\ns_movk_i32 s{sC}, {TAGM}")
    a("s_waitcnt vmcnt(0)")
    stamp(1)
    B0=48; D0=32
    def trs(u):
        for c in range(4): a(f"ds_read_b64_tr_b16 v[{B0+u*8+2*c}:{B0+u*8+2*c+1}], v7 offset:{L_WQ+u*2048+c*32}")
    if stamps or probe is not None: a("s_waitcnt lgkmcnt(0)")
    trs(0); trs(1); trs(2)
    for u in range(7):
        if u+3<7:
            a("s_waitcnt lgkmcnt(8)"); trs(u+3)
        else: a(f"s_waitcnt lgkmcnt({4*(6-u)})")
        for c in range(4):
            cc="0" if u==0 else f"v[{D0+4*c}:{D0+4*c+3}]"
            a(f"v_mfma_f32_16x16x16_bf16 v[{D0+4*c}:{D0+4*c+3}], v[{16+2*u}:{17+2*u}], v[{B0+u*8+2*c}:{B0+u*8+2*c+1}], {cc}")
    a("s_nop 5")
    for bb in range(2):
        a(f"v_cndmask_b32 v{12+bb}, v{D0+bb}, v{D0+4+bb}, s[60:61]")
    for bb in range(2):
        a(f"v_cndmask_b32 v{12+bb}, v{12+bb}, v{D0+8+bb}, s[62:63]")
    for bb in range(2):
        a(f"v_cndmask_b32 v{12+bb}, v{12+bb}, v{D0+12+bb}, s[64:65]")
    for bb in range(2):
        a(f"v_bfi_b32 v{12+bb}, s{sC}, v10, v{12+bb}")
    a("global_store_dword v8, v12, s[18:19] offset:-2048 sc1\nglobal_store_dword v8, v13, s[18:19] offset:2048 sc1")
    stamp(2)
    a(f"s_mov_b32 s{sSP}, {SPIN}")
    a("L_qpoll:")
    for k in range(4): a(f"global_load_dwordx4 v[{16+4*k}:{19+4*k}], v9, s[18:19] offset:{k*1024} sc1")
    a(f"s_sub_u32 s{sSP}, s{sSP}, 1\ns_cbranch_scc1 L_qgo")
    a("s_waitcnt vmcnt(0)")
    for k in range(16): a(f"v_xor_b32 v{16+k}, s{sTAG}, v{16+k}")
    a("v_or3_b32 v12, v16, v17, v18")
    for k in range(3,15,2): a(f"v_or3_b32 v12, v12, v{16+k}, v{17+k}")
    a(f"v_or_b32 v12, v12, v31\nv_and_b32 v12, s{sC}, v12\nv_cmp_ne_u32 vcc, 0, v12\ns_cbranch_vccnz L_qpoll")
    a("L_qgo:")
    for r in range(4): a(f"v_add_f32 v{16+r}, v{16+r}, v{20+r}\nv_add_f32 v{24+r}, v{24+r}, v{28+r}")
    for r in range(4): a(f"v_add_f32 v{16+r}, v{16+r}, v{24+r}")
    a(f"v_cvt_pk_bf16_f32 v16, v16, v17\nv_cvt_pk_bf16_f32 v17, v18, v19\nv_lshlrev_b32 v5, 3, v2\nds_write_b64 v5, v[16:17] offset:{L_Q}")
    a("s_setprio 0\ns_branch L_hbar")
    a("L_noq:")
    a(f"v_mov_b32 v8, -1\nv_mov_b32 v9, -1\nv_mov_b32 v10, -1\nv_mov_b32 v11, -1\nv_lshlrev_b32 v5, 4, v2\nds_write_b128 v5, v[8:11] offset:{L_TK}")
    a(f"s_waitcnt lgkmcnt(0)\ns_add_u32 s{sE}, s{sE}, 1\ns_and_b32 s{sTAG}, s{sE}, {TAGM}\ns_movk_i32 s{sC}, {TAGM}")
    a("L_hbar:")
    a("s_waitcnt lgkmcnt(0)")
    stamp(3)
    a("s_barrier")
    WO=64
    a(f"s_sub_u32 s{sK}, s{sW}, 4")
    a(f"s_lshl_b32 s{sT}, s{sH}, 8\ns_lshl_b32 s{sT2}, s{sS}, 5\ns_add_u32 s{sT}, s{sT}, s{sT2}\nv_lshl_add_u32 v5, v3, 3, s{sT}\nv_mul_u32_u24 v5, 896, v5")
    a(f"v_min_u32 v6, 13, v4\nv_lshl_add_u32 v5, v6, 4, v5\ns_mul_i32 s{sT}, s{sK}, 224\ns_add_u32 s{sT}, s{sT}, 3584\nv_add_u32 v5, s{sT}, v5")
    for t in range(8): a(f"global_load_dwordx4 v[{WO+4*t}:{WO+4*t+3}], v5, s[12:13] offset:{(t-4)*896}")
    masks(16,8)
    a(f"v_mov_b32 v15, s{sTAG}")
    a(f"s_lshl_b32 s{sT}, s{sBH}, 14\ns_add_u32 s{sT}, s{sT}, {WS_OP}\nv_and_b32 v6, 7, v2\nv_lshlrev_b32 v6, 11, v6\nv_add_u32 v21, s{sT}, v6")
    a(f"v_lshrrev_b32 v6, 3, v2\nv_lshl_add_u32 v20, v6, 4, v21\ns_lshl_b32 s{sT}, s{sS}, 7\nv_add_u32 v20, s{sT}, v20")
    a(f"s_lshl_b32 s{sT}, s2, 11\ns_add_u32 s{sT2}, s{sT}, {WS_OP}\nv_lshl_add_u32 v22, v2, 4, s{sT2}")
    a(f"s_lshl_b32 s{sT2}, s{sK}, 9\ns_add_u32 s{sT}, s{sT}, s{sT2}\ns_add_u32 s{sT}, s{sT}, {WS_Y}\nv_lshl_add_u32 v23, v4, 5, s{sT}\nv_and_b32 v6, 1, v3\nv_lshl_add_u32 v23, v6, 4, v23")
    a(f"s_lshr_b32 s{sT}, s{sS}, 2\ns_lshl_b32 s{sT}, s{sT}, 18\ns_and_b32 s{sT2}, s{sS}, 3\ns_lshl_b32 s{sT2}, s{sT2}, 9\ns_add_u32 s{sT}, s{sT}, s{sT2}\ns_lshl_b32 s{sT2}, s{sBH}, 4\ns_add_u32 s{sT}, s{sT}, s{sT2}\ns_add_u32 s{sT}, s{sT}, {WS_Y}")
    a(f"v_lshlrev_b32 v24, 11, v2\nv_add_u32 v24, s{sT}, v24\nv_add_u32 v25, 0x20000, v24")
    a(f"s_mul_i32 s{sT}, s{sS}, 224\ns_lshl_b32 s{sT2}, s{sBH}, 3\ns_add_u32 s{sT}, s{sT}, s{sT2}\nv_mov_b32 v26, s{sT}")
    a(f"v_lshlrev_b32 v27, 4, v2\nv_mov_b32 v28, 0\ns_not_b32 s{sAT}, s{sC}\ns_mov_b32 s{sSP}, {SPIN}")
    a("s_waitcnt vmcnt(0)")
    a("s_barrier")
    stamp(4)
    a(f"s_cmp_lg_u32 s{sW}, 4\ns_cbranch_scc1 L_h1")
    a(f"ds_read_b128 v[32:35], v28 offset:{L_ML}\nds_read_b128 v[36:39], v28 offset:{L_ML+16}")
    for w in range(4): a(f"ds_read_b128 v[{40+4*w}:{43+4*w}], v27 offset:{L_O+w*1024}")
    a("s_waitcnt lgkmcnt(4)" if not (stamps or probe is not None) else "s_waitcnt lgkmcnt(0)")
    a(f"v_max3_f32 v56, v32, v34, v36\nv_max_f32 v56, v56, v38\nv_and_b32 v56, s{sAT}, v56")
    for w in range(4): a(f"v_sub_f32 v{32+2*w}, v{32+2*w}, v56")
    for w in range(4): a(f"v_exp_f32 v{32+2*w}, v{32+2*w}")
    a(f"v_or_b32 v56, v56, v15\nv_mov_b32 v58, s{sE}\nv_mov_b32 v59, s{sE}")
    a("v_mul_f32 v57, v32, v33\nv_fmac_f32 v57, v34, v35\nv_fmac_f32 v57, v36, v37\nv_fmac_f32 v57, v38, v39")
    a("s_waitcnt lgkmcnt(0)")
    for r in range(4): a(f"v_mul_f32 v{40+r}, v{40+r}, v32")
    for w in range(1,4):
        for r in range(4): a(f"v_fmac_f32 v{40+r}, v{40+4*w+r}, v{32+2*w}")
    a(f"v_bfi_b32 v57, s{sC}, v15, v57")
    for r in range(4): a(f"v_bfi_b32 v{40+r}, s{sC}, v15, v{40+r}")
    a("global_store_dwordx4 v22, v[40:43], s[18:19] sc1")
    a("s_mov_b64 exec, 1\nglobal_store_dwordx4 v22, v[56:59], s[18:19] offset:1024 sc1\ns_mov_b64 exec, -1")
    a("L_h1:")
    stamp(5)
    a("L_h1poll:")
    a("global_load_dwordx4 v[32:35], v21, s[18:19] offset:1024 sc1\nglobal_load_dwordx4 v[36:39], v20, s[18:19] sc1")
    a(f"s_sub_u32 s{sSP}, s{sSP}, 1\ns_cbranch_scc1 L_h1go")
    a("s_waitcnt vmcnt(0)")
    for r in (32,33,36,37,38,39): a(f"v_xor_b32 v{r}, s{sTAG}, v{r}")
    a(f"v_xor_b32 v34, s{sE}, v34\nv_xor_b32 v35, s{sE}, v35")
    a(f"v_or3_b32 v30, v32, v33, v36\nv_or3_b32 v30, v30, v37, v38\nv_or_b32 v30, v30, v39\nv_and_b32 v30, s{sC}, v30\nv_or3_b32 v30, v30, v34, v35")
    a("v_cmp_ne_u32 vcc, 0, v30\ns_cbranch_vccnz L_h1poll")
    a("L_h1go:")
    stamp(6)
    DP=["quad_perm:[1,0,3,2]","quad_perm:[2,3,0,1]","row_half_mirror"]
    a(f"v_max_f32_dpp v30, v32, v32 {DP[0]} row_mask:0xf bank_mask:0xf\nv_mov_b32 v35, v33\ns_nop 0")
    a(f"v_max_f32_dpp v30, v30, v30 {DP[1]} row_mask:0xf bank_mask:0xf\ns_nop 1")
    a(f"v_max_f32_dpp v30, v30, v30 {DP[2]} row_mask:0xf bank_mask:0xf")
    a("v_sub_f32 v32, v32, v30\nv_exp_f32 v32, v32\ns_nop 0")
    for r in range(5): a(f"v_mul_f32 v{35+r}, v{35+r}, v32")
    for d in DP:
        for r in range(5): a(f"v_add_f32_dpp v{35+r}, v{35+r}, v{35+r} {d} row_mask:0xf bank_mask:0xf")
    a("v_rcp_f32 v35, v35\ns_nop 0")
    for r in range(4): a(f"v_mul_f32 v{36+r}, v{36+r}, v35")
    for r in range(4): a(f"v_cvt_pk_bf16_f32 v{36+r}, v{36+r}, v{36+r}")
    for t in range(4):
        for k in range(4): a(f"v_and_b32 v{40+4*t+k}, v{36+t}, v{16+k}")
    for t in range(4):
        c0="0" if t==0 else "v[56:59]"; c1="0" if t==0 else "v[60:63]"
        a(f"v_mfma_f32_16x16x32_bf16 v[56:59], v[{40+4*t}:{43+4*t}], v[{WO+4*t}:{WO+4*t+3}], {c0}")
        a(f"v_mfma_f32_16x16x32_bf16 v[60:63], v[{40+4*t}:{43+4*t}], v[{WO+16+4*t}:{WO+16+4*t+3}], {c1}")
    a("s_nop 7")
    for r in range(4): a(f"v_permlane32_swap_b32 v{60+r}, v{32+r}")
    for r in range(4): a(f"v_add_f32 v{56+r}, v{56+r}, v{32+r}")
    for r in range(4): a(f"v_bfi_b32 v{56+r}, s{sC}, v15, v{56+r}")
    a("s_mov_b32 exec_hi, 0\nglobal_store_dwordx4 v23, v[56:59], s[18:19] sc1\ns_mov_b32 exec_hi, -1")
    stamp(7)
    a(f"s_cmp_lg_u32 s{sW}, 7\ns_cbranch_scc1 L_hend\ns_cmp_ge_u32 s{sBH}, 28\ns_cbranch_scc1 L_hend")
    a(f"s_mov_b32 s{sSP}, {SPIN}")
    a("L_h2poll:")
    a("global_load_dwordx4 v[32:35], v24, s[18:19] sc1\nglobal_load_dwordx4 v[36:39], v25, s[18:19] sc1")
    a(f"s_sub_u32 s{sSP}, s{sSP}, 1\ns_cbranch_scc1 L_h2go")
    a("s_waitcnt vmcnt(0)")
    for r in range(8): a(f"v_xor_b32 v{32+r}, s{sTAG}, v{32+r}")
    a(f"v_or3_b32 v30, v32, v33, v34\nv_or3_b32 v30, v30, v35, v36\nv_or3_b32 v30, v30, v37, v38\nv_or_b32 v30, v30, v39\nv_and_b32 v30, s{sC}, v30")
    a("v_cmp_ne_u32 vcc, 0, v30\ns_cbranch_vccnz L_h2poll")
    a("L_h2go:")
    stamp(8)
    for r in range(4): a(f"v_add_f32 v{32+r}, v{32+r}, v{36+r}")
    a("s_nop 0\nv_permlane32_swap_b32 v32, v34\nv_permlane32_swap_b32 v33, v35")
    a("v_add_f32 v32, v32, v34\nv_add_f32 v33, v33, v35")
    a("s_nop 1\nv_permlane16_swap_b32 v32, v33\nv_add_f32 v32, v32, v33\ns_nop 1")
    for d in DP+["row_mirror"]:
        a(f"v_add_f32_dpp v32, v32, v32 {d} row_mask:0xf bank_mask:0xf\ns_nop 1")
    a("v_cvt_pk_bf16_f32 v32, v32, v32\nv_lshl_add_u32 v26, v3, 1, v26")
    a("s_mov_b32 exec_lo, 0x00010001\ns_mov_b32 exec_hi, 0x00010001")
    a("global_store_short v26, v32, s[14:15]")
    a(f"s_cmp_lg_u32 s2, 0\ns_cbranch_scc1 L_hend")
    a(f"v_mov_b32 v29, s{sE}\nglobal_store_dword v28, v29, s[18:19] sc1")
    a("L_hend:")
    stamp(9)
    if probe is not None:
        pw=7 if probe in (0,8,9) else 4
        a(f"s_cmp_lg_u32 s2, {pwg}\ns_cbranch_scc1 L_end\ns_cmp_lg_u32 s{sW}, {pw}\ns_cbranch_scc1 L_end")
        a(f"s_waitcnt lgkmcnt(0)\ns_sub_u32 s66, s{40+2*probe}, s40\ns_add_u32 s66, s66, 10000")
        a("L_pspin:\ns_memrealtime s[68:69]\ns_waitcnt lgkmcnt(0)\ns_sub_u32 s68, s68, s40\ns_cmp_lt_u32 s68, s66\ns_cbranch_scc1 L_pspin")
    dumpstamps(10)
    a("L_end:\ns_endpgm")
    nv=max(NV,136)
    a(f""".section .rodata,"a"
.p2align 6
.amdhsa_kernel {MAIN}
  .amdhsa_next_free_vgpr {nv}
  .amdhsa_next_free_sgpr 72
  .amdhsa_accum_offset {(nv+3)//4*4}
  .amdhsa_group_segment_fixed_size 0
  .amdhsa_kernarg_size 64
  .amdhsa_user_sgpr_count 2
  .amdhsa_user_sgpr_kernarg_segment_ptr 1
  .amdhsa_system_sgpr_workgroup_id_x 1
.end_amdhsa_kernel""")
    open(name,"w").write("\n".join(o)+"\n")
    return build(name)
if __name__=="__main__":
    L=[gen(f"p{k}.s",probe=k) for k in (0,9,1,3,4,6)]
    print(" ".join(L))
```

```python
import sys
from asm import build
MAIN="standalone__mha_block_cached__decode_kernel"
C_SCALE=0x3db8aa3b
TAGM=0x3ff
WS_CNT=0x1000
CSTR=4096+256
WS_XI=0x30000
WS_QP=0x40000
WS_OP=0x80000
WS_Y =0x100000
L_TK=0; L_Q=1024; L_ML=1536; L_E=1600; L_OB=1792; L_O=2048; L_WQ=6144; LDS_SZ=L_WQ+32768
SPIN=1<<16

def gen(name, U=4, cap=10, f1=5, f2=6, kclose=None, kopen=30, popen=4, touch=True, mpoll=True, warm=False, loc=True, qback=0, qack=True, wotr=1, qsleep=0, wodelay=0, wodelay0=0, pre=False, noown=False, w567=0, fake=None, gate2=False, gate1=False, g2sleep=0, g1sleep=0, MLST=128, y2=False, o2=False, ml2=False, h2delay=0, h1sleep=0, h2sleep=0, h1delay=0, latedump=True, noy=False, OST=2048, YST=2048, nstatic=30, rot=8192, flags="nt", stamps=False, ahead=1, dyn=True, hdr="", probe=None, pwg=0, prog=False, nowo=False, wofl=""):
    o=[]; a=o.append
    NCH=256
    a(hdr+f"; @launch grid=(256,1,1) block=(512,1,1) lds={LDS_SZ}")
    a('.amdgcn_target "amdgcn-amd-amdhsa--gfx950"\n.text')
    a(f".globl {MAIN}\n.p2align 8\n.type {MAIN},@function\n{MAIN}:")
    sW=20; sBH=21; sS=22; sROT=23; sTK=24; sK=25; sC=26; sT=27; sT2=28; sAT=29; sPULL=30; sST=31; sTAG=32; sE=33; sCNT=34; sSP=36; sH=37; sB=38; sXT=39
    def stamp(i):
        if stamps or (probe is not None and i in (0,probe)): a(f"s_memrealtime s[{40+2*i}:{41+2*i}]")
    def dumpstamps(n):
        if not stamps: return
        if latedump: a("s_sleep 127\ns_sleep 127")
        a("s_mov_b64 exec, -1\ns_waitcnt lgkmcnt(0)")
        a("v_mov_b32 v10, 0")
        for i in range(n): a(f"v_writelane_b32 v10, s{40+2*i}, {i}")
        a(f"v_writelane_b32 v10, s{sK}, 14")
        a("s_getreg_b32 s27, hwreg(HW_REG_XCC_ID)\nv_writelane_b32 v10, s27, 15")
        a(f"s_lshl_b32 s27, s2, 3\ns_add_u32 s27, s27, s{sW}\ns_lshl_b32 s27, s27, 6\ns_add_u32 s27, s27, 0x10000000")
        a("v_lshl_add_u32 v11, v2, 2, s27\ns_mov_b64 exec, 0xffff")
        a("global_store_dword v11, v10, s[18:19]")
    a("s_cmp_ge_u32 s2, 256\ns_cbranch_scc1 L_end")
    a("s_load_dwordx16 s[4:19], s[0:1], 0")
    stamp(0)
    a("v_lshrrev_b32 v1, 6, v0\nv_and_b32 v2, 63, v0")
    a(f"v_readfirstlane_b32 s{sW}, v1")
    a("v_lshrrev_b32 v3, 4, v2\nv_and_b32 v4, 15, v2")
    a(f"s_lshr_b32 s{sBH}, s2, 3\ns_and_b32 s{sS}, s2, 7")
    a(f"s_mul_i32 s{sCNT}, s{sBH}, {CSTR}\ns_add_u32 s{sCNT}, s{sCNT}, {WS_CNT}")
    a(f"s_cmp_ge_u32 s{sW}, 4\ns_cbranch_scc1 L_helper")
    Q=8; MK=16; PB=20; ACC=28; M=36; L=37; MC=38; S0=39; S1=40; T=41; VA=46; VL=7
    RB=48; NV=RB+U*32
    a(f"v_lshlrev_b32 v{VL}, 9, v3\nv_lshl_add_u32 v{VL}, v4, 4, v{VL}\nv_lshl_add_u32 v{VL}, v1, 11, v{VL}")
    a(f"s_mul_i32 s{sROT}, s{sBH}, {rot}\ns_lshl_b32 s{sT}, s{sBH}, 22\ns_mov_b32 s{sTK}, s{sS}")
    def setaddr():
        a(f"s_lshl_b32 s{sT}, s{sTK}, 14\ns_add_u32 s{sT}, s{sT}, s{sROT}\ns_and_b32 s{sT}, s{sT}, 0x3fffff")
        a(f"v_add_u32 v{VA}, s{sT}, v{VL}")
        a(f"s_add_u32 s{sT}, s{sT}, 0x2000\ns_and_b32 s{sT}, s{sT}, 0x3fffff")
        a(f"v_add_u32 v{VA+1}, s{sT}, v{VL}")
    if kclose is None: kclose=2*U
    def loadgrp(slot,g,w=(None,None)):
        r=RB+slot*32+g*8; sp=6 if g<2 else 8
        if w[0]: a(w[0])
        a(f"global_load_dwordx4 v[{r}:{r+3}], v{VA+(g&1)}, s[{sp}:{sp+1}] {flags}")
        if w[1]: a(w[1])
        a(f"global_load_dwordx4 v[{r+4}:{r+7}], v{VA+(g&1)}, s[{sp}:{sp+1}] offset:256 {flags}")
    a("s_waitcnt lgkmcnt(0)")
    a(f"s_add_u32 s6, s6, s{sT}\ns_addc_u32 s7, s7, 0\ns_add_u32 s8, s8, s{sT}\ns_addc_u32 s9, s9, 0")
    n=0
    def masks(vm,vt):
        a(f"v_and_b32 v{vt}, 1, v2\nv_lshlrev_b32 v{vt}, 4, v{vt}\nv_mov_b32 v{vt+1}, 0xffff\nv_lshlrev_b32 v{vt}, v{vt}, v{vt+1}\nv_bfe_u32 v{vt+1}, v2, 1, 2")
        for k in range(4):
            a(f"v_cmp_eq_u32 vcc, {k}, v{vt+1}\ns_nop 1\nv_cndmask_b32 v{vm+k}, 0, v{vt}, vcc")
    for u in range(U):
        setaddr()
        a(f"s_add_u32 s{sTK}, s{sTK}, 8")
        for g in range(4):
            w=[None,None]
            for e,f in enumerate((f1,f2)):
                if n+e>=f and n+e<8*U-popen: w[e]=f"s_waitcnt vmcnt({f-1})"
            loadgrp(u,g,w); n+=2
        if u==0:
            masks(MK,T)
            for r in range(8): a(f"v_mov_b32 v{ACC+r}, 0")
            a(f"s_mov_b32 s{sC}, {C_SCALE}\nv_mov_b32 v{M}, 0xff7fffff\nv_mov_b32 v{L}, 0\nv_mul_f32 v{MC}, s{sC}, v{M}")
            a(f"s_add_u32 s{sCNT}, s18, s{sCNT}\ns_addc_u32 s{sCNT+1}, s19, 0")
            a(f"s_mov_b32 s{sK}, {U}\ns_mov_b32 s{sST}, 0\ns_mov_b32 s{sXT}, 0\nv_lshlrev_b32 v5, 4, v4")
    stamp(1)
    a("s_barrier")
    a(f"ds_read_b128 v[{Q}:{Q+3}], v5 offset:{L_Q}\nds_read_b128 v[{Q+4}:{Q+7}], v5 offset:{L_Q+256}")
    stamp(2)
    a("s_waitcnt lgkmcnt(0)")
    def chunk(slot, loop):
        lb=f"{slot}"
        def wait(g):
            if not loop: return
            a(f"s_waitcnt vmcnt({cap-2})")
            if 6-2*g < cap-2:
                a(f"s_cmp_lg_u32 s{sST}, 2\ns_cbranch_scc1 L_w{lb}_{g}\ns_waitcnt vmcnt({6-2*g})\nL_w{lb}_{g}:")
        def refill(g):
            if not loop: return
            a(f"s_cmp_lg_u32 s{sST}, 0\ns_cbranch_scc1 L_r{lb}_{g}")
            a(f"s_cmp_lg_u32 s{sXT}, 0")
            loadgrp(slot,g,[f"s_cbranch_scc1 L_f{lb}_{g}_{e}\ns_waitcnt vmcnt({f-1})\nL_f{lb}_{g}_{e}:" for e,f in enumerate((f1,f2))])
            a(f"L_r{lb}_{g}:")
        for g in range(2):
            r=RB+slot*32+g*8
            wait(g)
            a(f"v_dot2_f32_bf16 v{S0+g}, v{r}, v{Q}, 0")
            for k in range(1,8): a(f"v_dot2_f32_bf16 v{S0+g}, v{r+k}, v{Q+k}, v{S0+g}")
            refill(g)
        a("s_nop 1")
        for dpp in ["quad_perm:[1,0,3,2]","quad_perm:[2,3,0,1]","row_half_mirror","row_mirror"]:
            a(f"v_add_f32_dpp v{S0}, v{S0}, v{S0} {dpp} row_mask:0xf bank_mask:0xf")
            a(f"v_add_f32_dpp v{S1}, v{S1}, v{S1} {dpp} row_mask:0xf bank_mask:0xf")
            if dpp!="row_mirror": a("s_nop 0")
        a(f"v_max_f32 v{T}, v{S0}, v{S1}\nv_cmp_gt_f32 vcc, v{T}, v{M}\ns_cbranch_vccz L_sk{lb}")
        a(f"v_mov_b32 v{T+1}, v{T}\ns_nop 1\nv_permlane16_swap_b32 v{T}, v{T+1}\nv_max_f32 v{T}, v{T}, v{T+1}")
        a(f"v_mov_b32 v{T+1}, v{T}\ns_nop 1\nv_permlane32_swap_b32 v{T}, v{T+1}\nv_max_f32 v{T}, v{T}, v{T+1}")
        a(f"v_sub_f32 v{T+1}, v{M}, v{T}\nv_mul_f32 v{T+1}, s{sC}, v{T+1}\nv_exp_f32 v{T+1}, v{T+1}")
        a(f"v_mov_b32 v{M}, v{T}\nv_mul_f32 v{MC}, s{sC}, v{T}")
        a(f"v_mul_f32 v{L}, v{L}, v{T+1}")
        for r in range(8): a(f"v_mul_f32 v{ACC+r}, v{ACC+r}, v{T+1}")
        a(f"L_sk{lb}:")
        for g in range(2): a(f"v_fma_f32 v{S0+g}, v{S0+g}, s{sC}, -v{MC}")
        for g in range(2): a(f"v_exp_f32 v{S0+g}, v{S0+g}")
        a(f"v_add_f32 v{L}, v{L}, v{S0}\nv_cvt_pk_bf16_f32 v{S0}, v{S0}, v{S0}")
        a(f"v_add_f32 v{L}, v{L}, v{S1}\nv_cvt_pk_bf16_f32 v{S1}, v{S1}, v{S1}")
        for g in range(2):
            for k in range(4): a(f"v_and_b32 v{PB+4*g+k}, v{S0+g}, v{MK+k}")
        for g in range(2):
            r=RB+slot*32+16+g*8; pb=PB+4*g
            wait(2+g)
            a(f"v_mfma_f32_16x16x32_bf16 v[{ACC}:{ACC+3}], v[{pb}:{pb+3}], v[{r}:{r+3}], v[{ACC}:{ACC+3}]")
            a(f"v_mfma_f32_16x16x32_bf16 v[{ACC+4}:{ACC+7}], v[{pb}:{pb+3}], v[{r+4}:{r+7}], v[{ACC+4}:{ACC+7}]")
            refill(2+g)
            if loop and dyn and g==1-ahead:
                a(f"s_cmp_lg_u32 s{sPULL}, 0\ns_cbranch_scc1 L_nw{lb}")
                a(f"s_waitcnt lgkmcnt(0)\ns_add_u32 s{sAT}, s{sAT}, {nstatic*8}\ns_lshl_b32 s{sT}, s{sK}, 2\nv_mov_b32 v{T}, s{sT}\nv_mov_b32 v{T+1}, s{sAT}\nds_write_b32 v{T}, v{T+1} offset:{L_TK+4}")
                a(f"L_nw{lb}:")
    assert cap<=10
    if fake is not None:
        a("s_add_u32 s66, s40, 1024\ns_and_b32 s66, s66, 0xfffff800\ns_add_u32 s66, s66, 2048")
        a(f"s_xor_b32 s67, s2, s66\ns_mul_i32 s67, s67, 0x9e3779b1\ns_lshr_b32 s68, s67, 15\ns_xor_b32 s67, s67, s68\ns_mul_i32 s67, s67, 0x85ebca6b\ns_lshr_b32 s67, s67, 24\ns_mul_i32 s67, s67, {fake}\ns_lshr_b32 s67, s67, 8\ns_add_u32 s66, s66, s67")
        a("L_fk:\ns_memrealtime s[68:69]\ns_waitcnt lgkmcnt(0)\ns_sub_u32 s68, s68, s66\ns_cmp_lt_i32 s68, 0\ns_cbranch_scc1 L_fk\ns_branch L_done")
    a("L_loop:")
    for u in range(2):
        a(f"s_mov_b32 s{sPULL}, 1")
        a(f"s_cmp_lg_u32 s{sST}, 0\ns_cbranch_scc1 L_dr{u}")
        if dyn:
            a(f"s_cmp_lt_u32 s{sK}, {nstatic}\ns_cbranch_scc1 L_have{u}")
            a(f"s_lshl_b32 s{sT}, s{sK}, 2\nv_mov_b32 v{T}, s{sT}\ns_mov_b32 s{sSP}, {SPIN}")
            a(f"L_poll{u}:")
            a(f"ds_read_b32 v{T+1}, v{T} offset:{L_TK}\ns_sub_u32 s{sSP}, s{sSP}, 1\ns_cbranch_scc1 L_dr{u}\ns_waitcnt lgkmcnt(0)\nv_readfirstlane_b32 s{sTK}, v{T+1}")
            a(f"s_cmp_eq_u32 s{sTK}, -1\ns_cbranch_scc1 L_poll{u}")
            a(f"L_have{u}:")
        a(f"s_cmp_ge_u32 s{sTK}, {NCH}\ns_cbranch_scc1 L_dr{u}")
        setaddr()
        a(f"s_add_u32 s{sTK}, s{sTK}, 8")
        a(f"s_sub_u32 s{sT}, s{sK}, {kclose}\ns_cmp_ge_u32 s{sT}, {kopen-kclose}\ns_cselect_b32 s{sXT}, 1, 0")
        if dyn:
            a(f"s_cmp_ge_u32 s{sK}, {nstatic-1}\ns_cselect_b32 s{sPULL}, s{sW}, 1\ns_cmp_lg_u32 s{sPULL}, 0\ns_cbranch_scc1 L_go{u}")
            a(f"s_mov_b32 s{sAT}, 1\ns_atomic_add s{sAT}, s[{sCNT}:{sCNT+1}], 0 glc")
        a(f"s_branch L_go{u}")
        a(f"L_dr{u}:\ns_add_u32 s{sST}, s{sST}, 1")
        a(f"L_go{u}:")
        chunk(u,True)
        if prog:
            a(f"s_memrealtime s[66:67]\ns_waitcnt lgkmcnt(0)\nv_mov_b32 v{T}, s66\nv_cmp_eq_u32 vcc, s{sK}, v2\ns_nop 1\nv_cndmask_b32 v45, v45, v{T}, vcc")
        a(f"s_cmp_eq_u32 s{sST}, 2\ns_cbranch_scc1 L_done")
        a(f"s_add_u32 s{sK}, s{sK}, 1")
        xs=[x for x in range(2,U) if (x-2+1)%2==u]
        for x in xs:
            a(f"s_cmp_eq_u32 s{sK}, {U+x}\ns_cbranch_scc1 L_x{x}")
        a(f"L_xr{u}:")
    a("s_branch L_loop")
    a("L_done:")
    stamp(3)
    a(f"v_mov_b32 v{T+1}, v{L}\nv_lshrrev_b32 v6, 1, v3\nv_lshlrev_b32 v6, 9, v6\nv_permlane16_swap_b32 v{L}, v{T+1}\nv_add_f32 v{L}, v{L}, v{T+1}")
    a(f"v_mov_b32 v{T+1}, v{L}\nv_lshl_add_u32 v6, v4, 5, v6\nv_and_b32 v5, 1, v3\nv_permlane32_swap_b32 v{L}, v{T+1}\nv_add_f32 v{L}, v{L}, v{T+1}")
    a(f"v_cmp_gt_u32 vcc, 32, v2\nv_mov_b32 v{M}, v{MC}\nv_lshl_add_u32 v6, v5, 4, v6\nv_lshl_add_u32 v6, v1, 10, v6\nv_lshlrev_b32 v5, 3, v1")
    for r in range(4): a(f"v_cndmask_b32 v{ACC+r}, v{ACC+4+r}, v{ACC+r}, vcc")
    a(f"ds_write_b64 v5, v[{M}:{L}] offset:{L_ML}")
    a(f"ds_write_b128 v6, v[{ACC}:{ACC+3}] offset:{L_O}")
    a("s_waitcnt lgkmcnt(0)\ns_barrier")
    stamp(4)
    if stamps: a("s_barrier")
    dumpstamps(5)
    if prog:
        a(f"s_mov_b64 exec, -1\ns_lshl_b32 s27, s2, 2\ns_add_u32 s27, s27, s{sW}\ns_lshl_b32 s27, s27, 8\ns_add_u32 s27, s27, 0x10040000")
        a("v_lshl_add_u32 v11, v2, 2, s27\nglobal_store_dword v11, v45, s[18:19]")
    a("s_endpgm")
    for x in range(2,U):
        a(f"L_x{x}:")
        chunk(x,False)
        a(f"s_branch L_xr{(x-2+1)%2}")
    a("L_helper:")
    a(f"s_and_b32 s{sH}, s{sBH}, 15\ns_lshr_b32 s{sB}, s{sBH}, 4")
    a("s_waitcnt lgkmcnt(0)")
    a(f"s_cmp_lg_u32 s{sW}, 4\ns_cbranch_scc1 L_noq")
    a(f"s_load_dword s{sE}, s[18:19], 0")
    a("s_setprio 3")
    a(f"s_lshl_b32 s{sT}, s{sB}, 1\ns_lshr_b32 s{sT2}, s{sS}, 2\ns_add_u32 s{sTK}, s{sT}, s{sT2}")
    a(f"s_mul_i32 s{sT}, s{sTK}, 112")
    a(f"v_lshrrev_b32 v5, 3, v2\nv_add_u32 v5, s{sT}, v5\nv_lshlrev_b32 v5, 13, v5\nv_and_b32 v6, 7, v2\nv_lshl_add_u32 v5, v6, 4, v5")
    a(f"s_and_b32 s{sK}, s{sS}, 3\ns_lshl_b32 s{sT2}, s{sH}, 2\ns_add_u32 s{sT2}, s{sT2}, s{sK}\ns_lshl_b32 s{sT2}, s{sT2}, 7\nv_add_u32 v5, s{sT2}, v5")
    a(f"v_and_b32 v6, 1, v2\nv_mul_u32_u24 v6, 896, v6\nv_lshl_add_u32 v6, v3, 3, v6\ns_lshl_b32 s{sT}, s{sT}, 1\nv_add_u32 v6, s{sT}, v6")
    for t in range(14):
        a(f"s_mov_b32 m0, {L_WQ+t*1024}")
        if t==0: a("s_nop 0")
        else: a("v_add_u32 v5, 0x10000, v5")
        a(f"global_load_lds_dwordx4 v5, s[10:11] nt")
    for u in range(7): a(f"global_load_dwordx2 v[{16+2*u}:{17+2*u}], v6, s[4:5] offset:{u*32}")
    if dyn:
        a(f"s_cmp_lg_u32 s{sS}, 0\ns_cbranch_scc1 L_noinit")
        a(f"v_mov_b32 v8, s{sCNT}\nv_mov_b32 v9, 0\nglobal_store_dword v8, v9, s[18:19] sc1")
        a("L_noinit:")
    a("v_lshrrev_b32 v7, 2, v2\nv_lshlrev_b32 v7, 7, v7\nv_and_b32 v8, 3, v2\nv_lshl_add_u32 v7, v8, 3, v7")
    a(f"s_lshl_b32 s{sT}, s{sH}, 13\ns_lshl_b32 s{sT2}, s{sTK}, 10\ns_add_u32 s{sT2}, s{sT2}, s{sT}\ns_lshl_b32 s{sK}, s{sK}, 8\ns_add_u32 s{sT2}, s{sT2}, s{sK}\ns_add_u32 s{sT2}, s{sT2}, {WS_QP+2048}")
    a(f"v_lshl_add_u32 v8, v2, 2, s{sT2}")
    a(f"s_lshl_b32 s{sT2}, s{sB}, 12\ns_add_u32 s{sT}, s{sT}, s{sT2}\ns_add_u32 s{sT}, s{sT}, {WS_QP}\nv_lshl_add_u32 v9, v2, 4, s{sT}")
    a(f"v_cmp_eq_u32 s[60:61], 1, v3\nv_cmp_eq_u32 s[62:63], 2, v3\nv_cmp_eq_u32 s[64:65], 3, v3")
    a(f"s_waitcnt lgkmcnt(0)\ns_add_u32 s{sE}, s{sE}, 1\ns_and_b32 s{sTAG}, s{sE}, {TAGM}\nv_mov_b32 v10, s{sTAG}\ns_movk_i32 s{sC}, {TAGM}")
    a("s_waitcnt vmcnt(0)")
    stamp(1)
    B0=48; D0=32
    def trs(u):
        for c in range(4): a(f"ds_read_b64_tr_b16 v[{B0+u*8+2*c}:{B0+u*8+2*c+1}], v7 offset:{L_WQ+u*2048+c*32}")
    if stamps or probe is not None: a("s_waitcnt lgkmcnt(0)")
    trs(0); trs(1); trs(2)
    for u in range(7):
        if u+3<7:
            a("s_waitcnt lgkmcnt(8)"); trs(u+3)
        else: a(f"s_waitcnt lgkmcnt({4*(6-u)})")
        for c in range(4):
            cc="0" if u==0 else f"v[{D0+4*c}:{D0+4*c+3}]"
            a(f"v_mfma_f32_16x16x16_bf16 v[{D0+4*c}:{D0+4*c+3}], v[{16+2*u}:{17+2*u}], v[{B0+u*8+2*c}:{B0+u*8+2*c+1}], {cc}")
    a("s_nop 5")
    for bb in range(2):
        a(f"v_cndmask_b32 v{12+bb}, v{D0+bb}, v{D0+4+bb}, s[60:61]")
    for bb in range(2):
        a(f"v_cndmask_b32 v{12+bb}, v{12+bb}, v{D0+8+bb}, s[62:63]")
    for bb in range(2):
        a(f"v_cndmask_b32 v{12+bb}, v{12+bb}, v{D0+12+bb}, s[64:65]")
    for bb in range(2):
        a(f"v_bfi_b32 v{12+bb}, s{sC}, v10, v{12+bb}")
    a("global_store_dword v8, v12, s[18:19] offset:-2048 sc1\nglobal_store_dword v8, v13, s[18:19] offset:2048 sc1")
    stamp(2)
    a(f"s_cmp_ge_u32 s{sBH}, 16\ns_cbranch_scc1 L_noxi")
    a(f"s_getreg_b32 s{sST}, hwreg(HW_REG_XCC_ID, 0, 4)\ns_lshl_b32 s{sST}, s{sST}, 28\ns_xor_b32 s{sST}, s{sST}, s{sE}")
    a(f"s_mul_i32 s{sT}, s{sS}, {CSTR}\ns_add_u32 s{sT}, s{sT}, {WS_XI}\ns_lshl_b32 s{sT2}, s{sBH}, 2\ns_add_u32 s{sT}, s{sT}, s{sT2}\nv_mov_b32 v6, s{sT}\nv_mov_b32 v7, s{sST}\nglobal_store_dword v6, v7, s[18:19] sc1")
    a("L_noxi:")
    if qack: a("s_waitcnt vmcnt(0)")
    if qback: a(f"s_sleep {qback}")
    a(f"s_mov_b32 s{sSP}, {SPIN}")
    a("s_branch L_qp1\nL_qpoll:")
    if qsleep: a(f"s_sleep {qsleep}")
    a("L_qp1:")
    for k in range(4): a(f"global_load_dwordx4 v[{16+4*k}:{19+4*k}], v9, s[18:19] offset:{k*1024} sc1")
    a(f"s_sub_u32 s{sSP}, s{sSP}, 1\ns_cbranch_scc1 L_qgo")
    a("s_waitcnt vmcnt(0)")
    for k in range(16): a(f"v_xor_b32 v{16+k}, s{sTAG}, v{16+k}")
    a("v_or3_b32 v12, v16, v17, v18")
    for k in range(3,15,2): a(f"v_or3_b32 v12, v12, v{16+k}, v{17+k}")
    a(f"v_or_b32 v12, v12, v31\nv_and_b32 v12, s{sC}, v12\nv_cmp_ne_u32 vcc, 0, v12\ns_cbranch_vccnz L_qpoll")
    a("L_qgo:")
    for r in range(4): a(f"v_add_f32 v{16+r}, v{16+r}, v{20+r}\nv_add_f32 v{24+r}, v{24+r}, v{28+r}")
    for r in range(4): a(f"v_add_f32 v{16+r}, v{16+r}, v{24+r}")
    a(f"v_cvt_pk_bf16_f32 v16, v16, v17\nv_cvt_pk_bf16_f32 v17, v18, v19\nv_lshlrev_b32 v5, 3, v2\nds_write_b64 v5, v[16:17] offset:{L_Q}")
    a(f"v_mov_b32 v5, 0\nv_mov_b32 v6, s{sE}\nds_write_b32 v5, v6 offset:{L_E}")
    a("s_setprio 0\ns_branch L_hbar")
    a("L_noq:")
    a(f"v_mov_b32 v8, -1\nv_mov_b32 v9, -1\nv_mov_b32 v10, -1\nv_mov_b32 v11, -1\nv_lshlrev_b32 v5, 4, v2\nds_write_b128 v5, v[8:11] offset:{L_TK}")
    a("L_hbar:")
    a("s_waitcnt lgkmcnt(0)")
    stamp(3)
    a("s_barrier")
    WO=64; sLOC=sPULL; sXV=sST
    a(f"v_mov_b32 v28, 0\nds_read_b32 v6, v28 offset:{L_E}")
    a(f"s_sub_u32 s{sK}, s{sW}, 4\ns_movk_i32 s{sC}, {TAGM}\ns_not_b32 s{sAT}, s{sC}")
    a(f"s_lshl_b32 s{sT}, s{sBH}, 2\ns_add_u32 s{sT}, s{sT}, s{sK}\ns_lshl_b32 s{sT}, s{sT}, 5\nv_add_u32 v5, s{sT}, v3\nv_mul_u32_u24 v5, 896, v5")
    a(f"s_and_b32 s{sT}, s{sS}, 3\ns_cmp_eq_u32 s{sT}, 3\ns_cselect_b32 s{sB}, 8, 16\ns_lshl_b32 s{sT}, s{sT}, 8\nv_add_u32 v5, s{sT}, v5\ns_sub_u32 s{sT}, s{sB}, 1")
    a(f"v_lshlrev_b32 v7, 1, v3\nv_xor_b32 v7, v7, v4\nv_xor_b32 v8, 8, v7\nv_and_b32 v7, s{sT}, v7\nv_and_b32 v8, s{sT}, v8")
    a(f"v_lshl_add_u32 v12, v7, 4, v5\nv_lshl_add_u32 v13, v8, 4, v5\nv_add_u32 v13, {8*896}, v13")
    a(f"s_lshl_b32 s{sTK}, s{sK}, 13\ns_add_u32 s{sTK}, s{sTK}, {L_WQ}")
    a(f"s_waitcnt lgkmcnt(0)\nv_readfirstlane_b32 s{sE}, v6")
    for _ in range(wodelay0): a("s_sleep 64")
    if wodelay:
        a(f"s_cmp_lt_u32 s{sS}, 4\ns_cbranch_scc1 L_nodl")
        for _ in range(wodelay): a("s_sleep 64")
        a("L_nodl:")
    for t in range(8 if not nowo else 0):
        va=12+((t>>1)&1)
        if wotr and t>=wotr: a(f"s_waitcnt vmcnt({wotr-1})")
        a(f"s_add_u32 m0, s{sTK}, {t*1024}\ns_nop 0")
        a(f"global_load_lds_dwordx4 v{va}, s[12:13] {wofl}")
        a(f"v_add_u32 v{va}, {(4 if t%2==0 else 12)*896}, v{va}")
    a(f"s_and_b32 s{sTAG}, s{sE}, {TAGM}\nv_mov_b32 v15, s{sTAG}")
    a(f"s_getreg_b32 s{sXV}, hwreg(HW_REG_XCC_ID, 0, 4)\ns_lshl_b32 s{sXV}, s{sXV}, 28\ns_xor_b32 s{sXV}, s{sXV}, s{sE}")
    a(f"s_mul_i32 s{sT}, s{sS}, {CSTR}\ns_add_u32 s{sT}, s{sT}, {WS_XI}\nv_and_b32 v6, 15, v2\nv_lshl_add_u32 v14, v6, 2, s{sT}")
    a(f"s_lshr_b32 s{sT}, s{sS}, 2\ns_lshl_b32 s{sT}, s{sT}, 4\ns_lshr_b32 s{sT2}, s{sBH}, 1\ns_add_u32 s{sT}, s{sT}, s{sT2}\ns_mul_i32 s{sT}, s{sT}, {8*OST}\ns_add_u32 s{sT}, s{sT}, {WS_OP}")
    a(f"v_lshrrev_b32 v6, 3, v2\nv_mul_u32_u24 v6, {OST}, v6\nv_add_u32 v21, s{sT}, v6")
    a(f"s_and_b32 s{sT}, s{sBH}, 1\ns_lshl_b32 s{sT}, s{sT}, 2\ns_add_u32 s{sT}, s{sT}, s{sK}\ns_lshl_b32 s{sT}, s{sT}, 7\nv_and_b32 v7, 7, v2\nv_lshl_add_u32 v20, v7, 4, v21\nv_add_u32 v20, s{sT}, v20")
    a(f"s_mul_i32 s{sT2}, s2, {OST}\ns_add_u32 s{sT2}, s{sT2}, {WS_OP}\nv_lshl_add_u32 v22, v2, 4, s{sT2}")
    a(f"s_lshl_b32 s{sT}, s{sS}, 14\ns_add_u32 s{sT}, s{sT}, {WS_Y}\ns_lshl_b32 s{sT2}, s{sBH}, 5\ns_add_u32 s{sT2}, s{sT2}, s{sT}")
    a(f"v_lshrrev_b32 v6, 1, v2\nv_lshlrev_b32 v6, 9, v6\nv_and_b32 v8, 1, v2\nv_lshl_add_u32 v6, v8, 4, v6\nv_add_u32 v24, s{sT2}, v6")
    a(f"s_lshl_b32 s{sT2}, s{sBH}, 2\ns_add_u32 s{sT2}, s{sT2}, s{sK}\ns_lshl_b32 s{sT2}, s{sT2}, 7\ns_add_u32 s{sT}, s{sT}, s{sT2}\nv_lshl_add_u32 v23, v2, 2, s{sT}")
    a(f"s_lshr_b32 s{sT}, s{sS}, 2\ns_mul_i32 s{sT}, s{sT}, 896\ns_and_b32 s{sT2}, s{sS}, 3\ns_lshl_b32 s{sT2}, s{sT2}, 8\ns_add_u32 s{sT}, s{sT}, s{sT2}\ns_lshl_b32 s{sT2}, s{sBH}, 4\ns_add_u32 s{sT}, s{sT}, s{sT2}\nv_lshl_add_u32 v26, v8, 3, s{sT}\nv_lshl_add_u32 v26, v3, 1, v26")
    a(f"s_lshl_b32 s{sT}, s{sK}, 6\nv_lshl_add_u32 v29, v7, 3, s{sT}\nv_lshl_add_u32 v29, v3, 1, v29\nv_lshlrev_b32 v30, 4, v3\nv_lshlrev_b32 v27, 4, v2")
    a(f"v_bfe_u32 v9, v2, 2, 2\nv_and_b32 v6, 1, v3\nv_lshl_add_u32 v6, v6, 2, v9\ns_lshl_b32 s{sT}, s{sK}, 1\nv_xor_b32 v6, s{sT}, v6")
    a(f"v_lshl_add_u32 v9, v3, 3, v9\nv_lshlrev_b32 v9, 8, v9\nv_lshl_add_u32 v9, v6, 5, v9\nv_and_b32 v6, 3, v2\nv_lshl_add_u32 v9, v6, 3, v9\nv_xor_b32 v10, 32, v9")
    if pre:
        a(f"s_cmp_lg_u32 s{sW}, 6\ns_cbranch_scc1 L_nopre")
        a("global_load_dword v11, v22, s[18:19]\nglobal_load_dword v11, v22, s[18:19] offset:128")
        a("L_nopre:")
    if touch: a("global_load_dword v11, v28, s[14:15]")
    a("s_waitcnt vmcnt(0)")
    a(f"s_mov_b32 s{sSP}, {SPIN}\ns_mov_b32 s{sLOC}, 0")
    a("s_branch L_xi1\nL_xipoll:\ns_sleep 32\nL_xi1:\nglobal_load_dword v6, v14, s[18:19] sc1")
    a(f"s_sub_u32 s{sSP}, s{sSP}, 1\ns_cbranch_scc1 L_xigo")
    a(f"s_waitcnt vmcnt(0)\nv_xor_b32 v6, s{sXV}, v6\nv_and_b32 v7, 0x0fffffff, v6\nv_cmp_ne_u32 vcc, 0, v7\ns_cbranch_vccnz L_xipoll")
    a(f"v_cmp_ne_u32 vcc, 0, v6\ns_cmp_eq_u64 vcc, 0\ns_cselect_b32 s{sLOC}, {1 if loc else 0}, 0")
    a("L_xigo:")
    a(f"s_mov_b32 s{sSP}, {SPIN}\nv_mov_b32 v58, s{sE}\nv_mov_b32 v59, s{sE}")
    a("s_waitcnt vmcnt(0) lgkmcnt(0)")
    a("s_barrier")
    stamp(4)
    a(f"s_cmp_lg_u32 s{sW}, 4\ns_cbranch_scc1 L_h1")
    a(f"ds_read_b128 v[32:35], v28 offset:{L_ML}\nds_read_b128 v[36:39], v28 offset:{L_ML+16}")
    for w in range(4): a(f"ds_read_b128 v[{40+4*w}:{43+4*w}], v27 offset:{L_O+w*1024}")
    a("s_waitcnt lgkmcnt(4)" if not (stamps or probe is not None) else "s_waitcnt lgkmcnt(0)")
    a(f"v_max3_f32 v56, v32, v34, v36\nv_max_f32 v56, v56, v38\nv_and_b32 v56, s{sAT}, v56")
    for w in range(4): a(f"v_sub_f32 v{32+2*w}, v{32+2*w}, v56")
    for w in range(4): a(f"v_exp_f32 v{32+2*w}, v{32+2*w}")
    a("s_waitcnt lgkmcnt(0)")
    for r in (0,2): a(f"v_pk_mul_f32 v[{40+r}:{41+r}], v[{40+r}:{41+r}], v[32:33] op_sel_hi:[1,0]")
    for w in range(1,4):
        for r in (0,2): a(f"v_pk_fma_f32 v[{40+r}:{41+r}], v[{40+4*w+r}:{41+4*w+r}], v[{32+2*w}:{33+2*w}], v[{40+r}:{41+r}] op_sel_hi:[1,0,1]")
    for r in range(4): a(f"v_bfi_b32 v{40+r}, s{sC}, v15, v{40+r}")
    a("global_store_dwordx4 v22, v[40:43], s[18:19] sc1")
    a("v_mul_f32 v57, v32, v33\nv_fmac_f32 v57, v34, v35\nv_fmac_f32 v57, v36, v37\nv_fmac_f32 v57, v38, v39")
    a(f"v_or_b32 v56, v56, v15\nv_bfi_b32 v57, s{sC}, v15, v57")
    a("s_mov_b64 exec, 1\nglobal_store_dwordx4 v22, v[56:59], s[18:19] offset:1024 sc1\ns_mov_b64 exec, -1")
    a("L_h1:")
    stamp(5)
    for kp in range(4):
        for tau in range(2):
            for j in range(2):
                r=WO+kp*8+tau*4+j*2
                a(f"ds_read_b64_tr_b16 v[{r}:{r+1}], v{9+tau} offset:{L_WQ+kp*8192+j*1024}")
    if h1delay: a(f"s_sleep {h1delay}")
    a("L_h1poll:")
    if h1sleep: a(f"s_sleep {h1sleep}")
    a("global_load_dwordx4 v[32:35], v21, s[18:19] offset:1024 sc1\nglobal_load_dwordx4 v[36:39], v20, s[18:19] sc1")
    a(f"s_sub_u32 s{sSP}, s{sSP}, 1\ns_cbranch_scc1 L_h1go")
    a("s_waitcnt vmcnt(0)")
    for r in (32,33,36,37,38,39): a(f"v_xor_b32 v{r}, s{sTAG}, v{r}")
    a(f"v_xor_b32 v34, s{sE}, v34")
    a(f"v_or3_b32 v31, v32, v33, v36\nv_or3_b32 v31, v31, v37, v38\nv_or_b32 v31, v31, v39\nv_and_or_b32 v31, v31, s{sC}, v34")
    a("v_cmp_ne_u32 vcc, 0, v31\ns_and_b64 exec, exec, vcc\ns_cbranch_scc1 L_h1poll\nL_h1go:\ns_mov_b64 exec, -1")
    stamp(6)
    DPM="row_mask:0xf bank_mask:0xf"
    a(f"v_max_f32_dpp v40, v32, v32 row_ror:8 {DPM}\nv_max_f32_dpp v41, v32, v32 row_ror:8 {DPM}\ns_nop 1")
    a("v_permlane16_swap_b32 v40, v41\nv_max_f32 v42, v40, v41\nv_max_f32 v43, v40, v41\ns_nop 1")
    a("v_permlane32_swap_b32 v42, v43\nv_max_f32 v40, v42, v43\nv_sub_f32 v32, v32, v40\nv_exp_f32 v32, v32\ns_nop 0")
    a("v_mul_f32 v36, v36, v32\nv_mul_f32 v38, v38, v32\nv_mul_f32 v37, v37, v32\nv_mul_f32 v39, v39, v32\nv_mul_f32 v34, v33, v32\nv_mul_f32 v35, v33, v32")
    a("v_permlane32_swap_b32 v36, v38\nv_permlane32_swap_b32 v37, v39\nv_permlane32_swap_b32 v34, v35")
    a("v_add_f32 v36, v36, v38\nv_add_f32 v37, v37, v39\nv_add_f32 v40, v34, v35\nv_add_f32 v41, v34, v35")
    a("v_permlane16_swap_b32 v36, v37\ns_nop 0\nv_permlane16_swap_b32 v40, v41")
    a("v_add_f32 v40, v40, v41\nv_add_f32 v36, v36, v37\ns_nop 0")
    a(f"v_add_f32_dpp v40, v40, v40 row_ror:8 {DPM}\nv_add_f32_dpp v36, v36, v36 row_ror:8 {DPM}")
    a("v_rcp_f32 v40, v40\ns_nop 0\nv_mul_f32 v36, v36, v40\nv_cvt_pk_bf16_f32 v36, v36, v36")
    a(f"ds_write_b16 v29, v36 offset:{L_OB}\ns_waitcnt lgkmcnt(0)\ns_barrier")
    for kp in range(4): a(f"ds_read_b128 v[{40+4*kp}:{43+4*kp}], v30 offset:{L_OB+kp*64}")
    for kp in range(4):
        a(f"s_waitcnt lgkmcnt({3-kp})")
        for tau in range(2):
            d=56+4*tau; cc="0" if kp==0 else f"v[{d}:{d+3}]"
            a(f"v_mfma_f32_16x16x32_bf16 v[{d}:{d+3}], v[{40+4*kp}:{43+4*kp}], v[{WO+kp*8+tau*4}:{WO+kp*8+tau*4+3}], {cc}")
    a(f"s_mov_b32 exec_hi, 0\ns_cmp_lg_u32 s{sLOC}, 0\ns_nop 5")
    a(f"v_mov_b32_dpp v56, v60 quad_perm:[0,1,2,3] row_mask:0x2 bank_mask:0xf\nv_bfi_b32 v56, s{sC}, v15, v56")
    a("s_cbranch_scc1 L_yloc\nglobal_store_dword v23, v56, s[18:19] sc1\ns_branch L_ydone\nL_yloc:\nglobal_store_dword v23, v56, s[18:19]\nL_ydone:\ns_mov_b32 exec_hi, -1")
    stamp(7)
    a(f"s_cmp_lg_u32 s{sW}, 7\ns_cbranch_scc1 L_hend\ns_cmp_ge_u32 s{sBH}, s{sB}\ns_cbranch_scc1 L_hend")
    a("L_h2poll:")
    a("global_load_dwordx4 v[32:35], v24, s[18:19] sc1")
    a(f"s_sub_u32 s{sSP}, s{sSP}, 1\ns_cbranch_scc1 L_h2go")
    a("s_waitcnt vmcnt(0)")
    for r in range(4): a(f"v_xor_b32 v{32+r}, s{sTAG}, v{32+r}")
    a(f"v_or3_b32 v31, v32, v33, v34\nv_or_b32 v31, v31, v35\nv_and_b32 v31, s{sC}, v31")
    a("v_cmp_ne_u32 vcc, 0, v31\ns_and_b64 exec, exec, vcc\ns_cbranch_scc1 L_h2poll\nL_h2go:\ns_mov_b64 exec, -1")
    stamp(8)
    a("v_permlane32_swap_b32 v32, v34\nv_permlane32_swap_b32 v33, v35")
    a("v_add_f32 v32, v32, v34\nv_add_f32 v33, v33, v35")
    a("s_nop 1\nv_permlane16_swap_b32 v32, v33\nv_add_f32 v32, v32, v33\ns_nop 1")
    for d in ("row_ror:8","row_ror:4","row_ror:2"):
        a(f"v_add_f32_dpp v32, v32, v32 {d} {DPM}")
        if d!="row_ror:2": a("s_nop 1")
    a("s_mov_b32 exec_lo, 0x00030003\ns_mov_b32 exec_hi, 0x00030003")
    a("v_cvt_pk_bf16_f32 v32, v32, v32")
    a("global_store_short v26, v32, s[14:15]")
    a(f"s_cmp_lg_u32 s2, 0\ns_cbranch_scc1 L_hend")
    a(f"v_mov_b32 v29, s{sE}\nglobal_store_dword v28, v29, s[18:19] sc1")
    a("L_hend:")
    stamp(9)
    if probe is not None:
        pw=7 if probe in (0,8,9) else 4
        a(f"s_cmp_lg_u32 s2, {pwg}\ns_cbranch_scc1 L_end\ns_cmp_lg_u32 s{sW}, {pw}\ns_cbranch_scc1 L_end")
        a(f"s_waitcnt lgkmcnt(0)\ns_sub_u32 s66, s{40+2*probe}, s40\ns_add_u32 s66, s66, 10000")
        a("L_pspin:\ns_memrealtime s[68:69]\ns_waitcnt lgkmcnt(0)\ns_sub_u32 s68, s68, s40\ns_cmp_lt_u32 s68, s66\ns_cbranch_scc1 L_pspin")
    dumpstamps(10)
    a("L_end:\ns_endpgm")
    nv=max(NV,136)
    a(f""".section .rodata,"a"
.p2align 6
.amdhsa_kernel {MAIN}
  .amdhsa_next_free_vgpr {nv}
  .amdhsa_next_free_sgpr 72
  .amdhsa_accum_offset {(nv+3)//4*4}
  .amdhsa_group_segment_fixed_size 0
  .amdhsa_kernarg_size 64
  .amdhsa_user_sgpr_count 2
  .amdhsa_user_sgpr_kernarg_segment_ptr 1
  .amdhsa_system_sgpr_workgroup_id_x 1
.end_amdhsa_kernel""")
    open(name,"w").write("\n".join(o)+"\n")
    return build(name)
if __name__=="__main__":
    L=[]
    kw=dict(stamps=True,prog=True,f2=5,kclose=4,popen=0)
    L+=[gen("v4_a.s",pre=True,**kw),gen("v4_nopre.s",**kw),gen("v4_noloc.s",pre=True,loc=False,**kw)]
    for fk in (100,250):
        L+=[gen(f"fk{fk}_a.s",pre=True,fake=fk,**kw),gen(f"fk{fk}_nopre.s",fake=fk,**kw),gen(f"fk{fk}_noloc.s",pre=True,loc=False,fake=fk,**kw),gen(f"fk{fk}_s4.s",pre=True,fake=fk,h1sleep=4,**kw),gen(f"fk{fk}_o1152.s",pre=True,fake=fk,OST=1152,**kw)]
    print(" ".join(L))
```

```python
import gen4
L=[]
kw=dict(kclose=4,popen=0,qback=8)
L.append(gen4.gen("h_f55.s",f1=5,f2=5,**kw))
L.append(gen4.gen("h_f56.s",f1=5,f2=6,**kw))
L.append(gen4.gen("h_f66.s",f1=6,f2=6,**kw))
L.append(gen4.gen("h_f55st.s",f1=5,f2=5,dyn=False,**kw))
L.append(gen4.gen("h_f55n28.s",f1=5,f2=5,nstatic=28,**kw))
L.append(gen4.gen("h_f55pre.s",f1=5,f2=5,pre=True,**kw))
print(" ".join(L))
```

```python
import sys
from asm import build
MAIN="standalone__mha_block_cached__decode_kernel"
C_SCALE=0x3db8aa3b
TAGM=0x3ff
CSTR=4096+256
WS_CNT=0x1000
WS_XI=0x30000
WS_QP=0x40000
WS_X =0x80000
XST=2048
WS_OP=0x100000
WS_Y =0x180000
L_TK=0; L_F=256; L_C1=272; L_E=276; L_ML=288; L_Q=512; L_OB=1024; L_O=2048; L_P=6144; L_WQ=L_P+4096+8192; LDS_SZ=L_WQ+32768
SPIN=1<<16
DPM="row_mask:0xf bank_mask:0xf"

def gen(name, U=4, f1=5, f2=5, openn=(16,17), kopen=30, popen=0, NP=2, NSW=10, rot=4096, flags="nt", dyn=True, ahead=1,
        qback=8, loc=True, touch=True, pre=False, OST=1024, wofl="", dotc=True,
        stamps=False, prog=False, latedump=True, fake=None, probe=None, pwg=0, hdr=""):
    assert U%2==0 and NP<=4
    NS=16-NP if dyn else 16
    NPX=NP
    o=[]; a=o.append
    dbg = stamps or probe is not None
    a(hdr+f"; @launch grid=(256,1,1) block=(512,1,1) lds={LDS_SZ}")
    a('.amdgcn_target "amdgcn-amd-amdhsa--gfx950"\n.text')
    a(f".globl {MAIN}\n.p2align 8\n.type {MAIN},@function\n{MAIN}:")
    sW=20; sBH=21; sS=22; sROT=23; sTK=24; sK=25; sC=26; sT=27; sT2=28; sAT=29; sPULL=30; sST=31; sTAG=32; sE=33; sCNT=34; sSP=36; sH=37; sB=38; sOFF=39
    sA=60; sBASE=62; sOM=64; sEX=66; sIDX=68
    def stamp(i):
        if stamps or (probe is not None and i in (0,probe)): a(f"s_memrealtime s[{40+2*i}:{41+2*i}]")
    def dumpstamps(n):
        if not stamps: return
        if latedump: a("s_sleep 127\ns_sleep 127")
        a("s_mov_b64 exec, -1\ns_waitcnt lgkmcnt(0)")
        a("v_mov_b32 v10, 0")
        for i in range(n): a(f"v_writelane_b32 v10, s{40+2*i}, {i}")
        a(f"v_writelane_b32 v10, s{sK}, 14")
        a("s_getreg_b32 s27, hwreg(HW_REG_XCC_ID)\nv_writelane_b32 v10, s27, 15")
        a(f"s_lshl_b32 s27, s2, 3\ns_add_u32 s27, s27, s{sW}\ns_lshl_b32 s27, s27, 6\ns_add_u32 s27, s27, 0x10000000")
        a("v_lshl_add_u32 v11, v2, 2, s27\ns_mov_b64 exec, 0xffff")
        a("global_store_dword v11, v10, s[18:19]")
    def progstamp():
        if prog: a(f"s_memrealtime s[70:71]\ns_waitcnt lgkmcnt(0)\nv_mov_b32 v{T}, s70\nv_cmp_eq_u32 vcc, s{sK}, v2\ns_nop 1\nv_cndmask_b32 v47, v47, v{T}, vcc")
    a("s_cmp_ge_u32 s2, 256\ns_cbranch_scc1 L_end")
    a("s_load_dwordx16 s[4:19], s[0:1], 0")
    stamp(0)
    a("v_lshrrev_b32 v1, 6, v0\nv_and_b32 v2, 63, v0")
    a(f"v_readfirstlane_b32 s{sW}, v1")
    a("v_lshrrev_b32 v3, 4, v2\nv_and_b32 v4, 15, v2")
    a(f"s_lshr_b32 s{sBH}, s2, 3\ns_and_b32 s{sS}, s2, 7")
    a(f"s_cmp_ge_u32 s{sW}, 4\ns_cbranch_scc1 L_helper")
    Q=8; MK=16; PB=20; ACC=28; S=36; M=40; T=41; VP=45; VL=7
    RB=48; NV=RB+U*32
    a(f"v_lshlrev_b32 v{VL}, 9, v3\nv_lshl_add_u32 v{VL}, v4, 4, v{VL}")
    a(f"s_mul_i32 s{sROT}, s{sBH}, {rot}\ns_lshl_b32 s{sT}, s{sW}, 11\ns_add_u32 s{sROT}, s{sROT}, s{sT}")
    a(f"s_lshl_b32 s{sOFF}, s{sS}, 15\ns_add_u32 s{sOFF}, s{sOFF}, s{sROT}\ns_lshl_b32 s{sT}, s{sBH}, 22")
    def loadgrp(slot,g,w=(None,None),base=None):
        r=RB+slot*32+g*8; base=base or sBASE
        a(f"s_and_b32 s{sOFF}, s{sOFF}, 0x3fffff\ns_add_u32 s{sA}, s{base}, s{sOFF}\ns_addc_u32 s{sA+1}, s{base+1}, 0\ns_add_u32 s{sOFF}, s{sOFF}, 0x2000")
        if w[0]: a(w[0])
        a(f"global_load_dwordx4 v[{r}:{r+3}], v{VL}, s[{sA}:{sA+1}] {flags}")
        if w[1]: a(w[1])
        a(f"global_load_dwordx4 v[{r+4}:{r+7}], v{VL}, s[{sA}:{sA+1}] offset:256 {flags}")
    a("s_waitcnt lgkmcnt(0)")
    a(f"s_add_u32 s6, s6, s{sT}\ns_addc_u32 s7, s7, 0")
    n=0
    om=0
    for k in range(64):
        if k in openn or k>=kopen: om|=1<<k
    for u in range(U):
        for g in range(4):
            w=[None,None]
            for e,f in enumerate((f1,f2)):
                if n+e>=f and n+e<8*U-popen: w[e]=f"s_waitcnt vmcnt({f-1})"
            loadgrp(u,g,w,6); n+=2
            if u==0 and g==1:
                a(f"s_add_u32 s8, s8, s{sT}\ns_addc_u32 s9, s9, 0")
                a(f"v_and_b32 v{T}, 1, v2\nv_lshlrev_b32 v{T}, 4, v{T}\nv_mov_b32 v{T+1}, 0xffff\nv_lshlrev_b32 v{T}, v{T}, v{T+1}\nv_bfe_u32 v{T+1}, v2, 1, 2")
                for k in range(4): a(f"v_cmp_eq_u32 vcc, {k}, v{T+1}\nv_mov_b32 v{ACC+2*k}, 0\nv_mov_b32 v{ACC+2*k+1}, 0\nv_cndmask_b32 v{MK+k}, 0, v{T}, vcc")
                a(f"s_mov_b32 s{sC}, {C_SCALE}\nv_mov_b32 v{M}, 0xff7fffff")
                a(f"s_mul_i32 s{sCNT}, s{sBH}, {CSTR}\ns_add_u32 s{sCNT}, s{sCNT}, {WS_CNT}\ns_add_u32 s{sCNT}, s18, s{sCNT}\ns_addc_u32 s{sCNT+1}, s19, 0")
                a(f"s_mov_b32 s{sK}, {U}\ns_mov_b32 s{sST}, 0\nv_lshlrev_b32 v5, 4, v4")
                a(f"s_mov_b32 s{sOM}, {om&0xffffffff}\ns_mov_b32 s{sOM+1}, {om>>32}\ns_mov_b32 s{sEX}, 0x10001\ns_mov_b32 s{sEX+1}, 0x10001")
                a(f"s_mov_b32 s{sIDX}, 0\ns_movk_i32 s{sIDX+1}, 256\ns_mov_b64 s[{sBASE}:{sBASE+1}], s[6:7]")
                a(f"v_lshlrev_b32 v{VP}, 6, v1\nv_lshl_add_u32 v{VP}, v3, 4, v{VP}")
        a(f"s_add_u32 s{sOFF}, s{sOFF}, {7*32768}")
    stamp(1)
    a("s_barrier")
    a(f"ds_read_b128 v[{Q}:{Q+3}], v5 offset:{L_Q}\nds_read_b128 v[{Q+4}:{Q+7}], v5 offset:{L_Q+256}")
    stamp(2)
    a("s_waitcnt lgkmcnt(0)")
    def strict(lb): return [f"s_bitcmp1_b64 s[{sOM}:{sOM+1}], s{sK}\ns_cbranch_scc1 L_f{lb}_0\ns_waitcnt vmcnt({f1-1})\nL_f{lb}_0:", f"s_cbranch_scc1 L_f{lb}_1\ns_waitcnt vmcnt({f2-1})\nL_f{lb}_1:"]
    def kbody(slot, loop):
        for g in range(4):
            r=RB+slot*32+g*8
            if dotc: a(f"v_mov_b32 v{S+g}, 0")
            if loop: a("s_waitcnt vmcnt(8)")
            if dotc:
                for k in range(8): a(f"v_dot2c_f32_bf16 v{S+g}, v{r+k}, v{Q+k}")
            else:
                a(f"v_dot2_f32_bf16 v{S+g}, v{r}, v{Q}, 0")
                for k in range(1,8): a(f"v_dot2_f32_bf16 v{S+g}, v{r+k}, v{Q+k}, v{S+g}")
            if loop: loadgrp(slot,g,strict(f"k{slot}_{g}"))
        for dpp in ["quad_perm:[1,0,3,2]","quad_perm:[2,3,0,1]","row_half_mirror","row_mirror"]:
            for g in range(4): a(f"v_add_f32_dpp v{S+g}, v{S+g}, v{S+g} {dpp} {DPM}")
        if loop: a(f"v_add_u32 v{T}, s{sIDX+slot}, v{VP}")
        a(f"v_max3_f32 v{M}, v{S}, v{S+1}, v{M}\nv_max3_f32 v{M}, v{S+2}, v{S+3}, v{M}")
        a(f"s_mov_b64 exec, s[{sEX}:{sEX+1}]")
        if loop: a(f"ds_write_b128 v{T}, v[{S}:{S+3}] offset:{L_P}")
        else: a(f"ds_write_b128 v{VP}, v[{S}:{S+3}] offset:{L_P+slot*256}")
        a("s_mov_b64 exec, -1")
    if fake is not None:
        a("s_add_u32 s72, s40, 1024\ns_and_b32 s72, s72, 0xfffff800\ns_add_u32 s72, s72, 4096")
        a(f"s_xor_b32 s73, s2, s72\ns_mul_i32 s73, s73, 0x9e3779b1\ns_lshr_b32 s70, s73, 15\ns_xor_b32 s73, s73, s70\ns_mul_i32 s73, s73, 0x85ebca6b\ns_lshr_b32 s73, s73, 24\ns_mul_i32 s73, s73, {fake}\ns_lshr_b32 s73, s73, 8\ns_add_u32 s72, s72, s73")
        a("s_branch L_trans")
    a("L_kloop:")
    for u in range(2):
        if u==0:
            a(f"s_cmp_eq_u32 s{sK}, 16\ns_cselect_b64 s[{sBASE}:{sBASE+1}], s[8:9], s[6:7]")
        kbody(u,True)
        progstamp()
        a(f"s_and_b32 s{sT}, s{sK}, 15\ns_lshl_b32 s{sIDX+u}, s{sT}, 8\ns_add_u32 s{sOFF}, s{sOFF}, {7*32768}\ns_add_u32 s{sK}, s{sK}, 1")
        for x in range(2,U):
            if (x-1)%2==u: a(f"s_cmp_eq_u32 s{sK}, {U+x}\ns_cbranch_scc1 L_x{x}")
        a(f"L_xr{u}:")
    a(f"s_cmp_lt_u32 s{sK}, 18\ns_cbranch_scc1 L_kloop")
    a("L_trans:")
    a(f"v_lshrrev_b32 v6, 2, v2\nv_lshlrev_b32 v6, 8, v6\nv_and_b32 v5, 3, v2\nv_lshl_add_u32 v6, v5, 4, v6\nv_lshl_add_u32 v6, v1, 6, v6")
    a(f"v_mov_b32 v{T}, v{M}\nds_read_b128 v[{S}:{S+3}], v6 offset:{L_P}\nv_lshlrev_b32 v5, 2, v1")
    a(f"v_permlane16_swap_b32 v{M}, v{T}\nv_max_f32 v{T+1}, v{M}, v{T}\nv_max_f32 v{T+2}, v{M}, v{T}\nv_mov_b32 v{T}, 0\nv_mov_b32 v{T+3}, 1")
    a(f"v_permlane32_swap_b32 v{T+1}, v{T+2}\nv_max_f32 v{M}, v{T+1}, v{T+2}\nv_mul_f32 v{M}, s{sC}, v{M}")
    a(f"ds_write_b32 v5, v{M} offset:{L_ML}\ns_waitcnt lgkmcnt(1)" if not dbg else f"ds_write_b32 v5, v{M} offset:{L_ML}\ns_waitcnt lgkmcnt(0)")
    for g in range(4): a(f"v_fma_f32 v{S+g}, v{S+g}, s{sC}, -v{M}")
    for g in range(4): a(f"v_exp_f32 v{S+g}, v{S+g}")
    a(f"s_nop 0\nds_write_b128 v6, v[{S}:{S+3}] offset:{L_P}\nds_add_u32 v{T}, v{T+3} offset:{L_C1}")
    a(f"s_add_u32 s{sTK}, s{sS}, 16")
    stamp(5)
    if fake is not None:
        a("L_fk:\ns_memrealtime s[70:71]\ns_waitcnt lgkmcnt(0)\ns_sub_u32 s70, s70, s72\ns_cmp_lt_i32 s70, 0\ns_cbranch_scc1 L_fk\ns_branch L_done")
    a("L_vloop:")
    for u in range(2):
        a(f"v_add_u32 v{T}, s{sIDX+u}, v{VP}\nds_read_b128 v[{S}:{S+3}], v{T} offset:{L_P}")
        a(f"s_mov_b32 s{sPULL}, 1")
        a(f"s_cmp_lg_u32 s{sST}, 0\ns_cbranch_scc1 L_dr{u}")
        a(f"s_sub_u32 s{sT2}, s{sK}, 16")
        if dyn:
            a(f"s_cmp_lt_u32 s{sK}, {16+NS}\ns_cbranch_scc1 L_have{u}")
            a(f"s_lshl_b32 s{sT}, s{sK}, 2\nv_mov_b32 v{T}, s{sT}\ns_mov_b32 s{sSP}, {SPIN}")
            a(f"L_poll{u}:")
            a(f"ds_read_b32 v{T+1}, v{T} offset:{L_TK}\ns_sub_u32 s{sSP}, s{sSP}, 1\ns_cbranch_scc1 L_dr{u}\ns_waitcnt lgkmcnt(0)\nv_readfirstlane_b32 s{sTK}, v{T+1}")
            a(f"s_cmp_eq_u32 s{sTK}, -1\ns_cbranch_scc1 L_poll{u}")
            a(f"s_add_u32 s{sT2}, s{sTK}, 16\ns_add_u32 s{sTK}, s{sTK}, {8*NS}")
            a(f"L_have{u}:")
        a(f"s_cmp_ge_u32 s{sTK}, 128\ns_cbranch_scc1 L_dr{u}")
        a(f"s_lshl_b32 s{sIDX+u}, s{sT2}, 8\ns_lshl_b32 s{sOFF}, s{sTK}, 15\ns_add_u32 s{sOFF}, s{sOFF}, s{sROT}\ns_add_u32 s{sTK}, s{sTK}, 8")
        if dyn:
            a(f"s_cmp_ge_u32 s{sK}, {16+NS-1}\ns_cselect_b32 s{sPULL}, s{sW}, 1")
        a(f"s_branch L_go{u}")
        a(f"L_dr{u}:\ns_add_u32 s{sST}, s{sST}, 1")
        a(f"L_go{u}:")
        a("s_waitcnt lgkmcnt(0)")
        if dyn:
            a(f"s_cmp_lg_u32 s{sPULL}, 0\ns_cbranch_scc1 L_np{u}\ns_mov_b32 s{sAT}, 1\ns_atomic_add s{sAT}, s[{sCNT}:{sCNT+1}], 0 glc\nL_np{u}:")
        for g in range(4): a(f"v_cvt_pk_bf16_f32 v{S+g}, v{S+g}, v{S+g}")
        for g in range(4):
            r=RB+u*32+g*8; pb=PB+4*(g&1)
            for k in range(4): a(f"v_and_b32 v{pb+k}, v{S+g}, v{MK+k}")
            a("s_waitcnt vmcnt(8)")
            a(f"s_cmp_lg_u32 s{sST}, 2\ns_cbranch_scc1 L_w{u}_{g}\ns_waitcnt vmcnt({6-2*g})\nL_w{u}_{g}:")
            a(f"v_mfma_f32_16x16x32_bf16 v[{ACC}:{ACC+3}], v[{pb}:{pb+3}], v[{r}:{r+3}], v[{ACC}:{ACC+3}]")
            a(f"v_mfma_f32_16x16x32_bf16 v[{ACC+4}:{ACC+7}], v[{pb}:{pb+3}], v[{r+4}:{r+7}], v[{ACC+4}:{ACC+7}]")
            a(f"s_cmp_lg_u32 s{sST}, 0\ns_cbranch_scc1 L_r{u}_{g}")
            loadgrp(u,g,strict(f"v{u}_{g}"),8)
            a(f"L_r{u}_{g}:")
            if dyn and g==3-ahead:
                a(f"s_cmp_lg_u32 s{sPULL}, 0\ns_cbranch_scc1 L_nw{u}")
                a(f"s_waitcnt lgkmcnt(0)\ns_lshl_b32 s{sT}, s{sK}, 2\nv_mov_b32 v{T}, s{sT}\nv_mov_b32 v{T+1}, s{sAT}\nds_write_b32 v{T}, v{T+1} offset:{L_TK+4}")
                a(f"L_nw{u}:")
        progstamp()
        a(f"s_cmp_eq_u32 s{sST}, 2\ns_cbranch_scc1 L_done")
        a(f"s_add_u32 s{sK}, s{sK}, 1")
    assert NSW%2==0 and NSW<=NS-2
    a(f"s_cmp_lg_u32 s{sK}, {18+NSW}\ns_cbranch_scc1 L_vloop")
    a(f"s_mov_b32 s{sSP}, {SPIN}")
    a(f"L_sw:\nds_read_b32 v{T}, v5 offset:{L_F}\nds_read_b128 v[{S}:{S+3}], v6 offset:{L_P}\ns_sub_u32 s{sSP}, s{sSP}, 1\ns_cbranch_scc1 L_vloop")
    a(f"s_waitcnt lgkmcnt(0)\nv_cmp_eq_u32 vcc, -1, v{T}\ns_cbranch_vccnz L_sw")
    for g in range(4): a(f"v_mul_f32 v{S+g}, v{S+g}, v{T}")
    a(f"ds_write_b128 v6, v[{S}:{S+3}] offset:{L_P}")
    for r in range(8): a(f"v_mul_f32 v{ACC+r}, v{ACC+r}, v{T}")
    a(f"v_lshrrev_b32 v6, 1, v3\nv_lshlrev_b32 v6, 9, v6\nv_lshl_add_u32 v6, v4, 5, v6\nv_and_b32 v5, 1, v3\nv_lshl_add_u32 v6, v5, 4, v6\nv_lshl_add_u32 v6, v1, 10, v6")
    stamp(6)
    a("s_branch L_vloop")
    a("L_done:")
    stamp(3)
    a("s_mov_b32 exec_hi, 0\ns_nop 1")
    a(f"ds_write_b128 v6, v[{ACC}:{ACC+3}] offset:{L_O}")
    a("s_not_b64 exec, exec")
    a(f"ds_write_b128 v6, v[{ACC+4}:{ACC+7}] offset:{L_O}")
    a("s_waitcnt lgkmcnt(0)\ns_barrier")
    stamp(4)
    if stamps: a("s_barrier")
    dumpstamps(7)
    if prog:
        a(f"s_mov_b64 exec, -1\ns_lshl_b32 s27, s2, 2\ns_add_u32 s27, s27, s{sW}\ns_lshl_b32 s27, s27, 8\ns_add_u32 s27, s27, 0x10040000")
        a("v_lshl_add_u32 v11, v2, 2, s27\nglobal_store_dword v11, v47, s[18:19]")
    a("s_endpgm")
    for x in range(2,U):
        a(f"L_x{x}:")
        kbody(x,False)
        a(f"s_branch L_xr{(x-1)%2}")
    a("L_helper:")
    a(f"s_and_b32 s{sH}, s{sBH}, 15\ns_lshr_b32 s{sB}, s{sBH}, 4")
    a(f"s_cmp_lg_u32 s{sW}, 4\ns_cbranch_scc1 L_noq")
    a("s_setprio 3")
    a(f"s_lshl_b32 s{sT}, s{sB}, 1\ns_lshr_b32 s{sT2}, s{sS}, 2\ns_add_u32 s{sTK}, s{sT}, s{sT2}")
    a(f"s_mul_i32 s{sT}, s{sTK}, 112")
    a(f"v_lshrrev_b32 v5, 3, v2\nv_add_u32 v5, s{sT}, v5\nv_lshlrev_b32 v5, 13, v5\nv_and_b32 v6, 7, v2\nv_lshl_add_u32 v5, v6, 4, v5")
    a(f"s_and_b32 s{sK}, s{sS}, 3\ns_lshl_b32 s{sT2}, s{sH}, 2\ns_add_u32 s{sT2}, s{sT2}, s{sK}\ns_lshl_b32 s{sT2}, s{sT2}, 7\nv_add_u32 v5, s{sT2}, v5")
    a(f"v_and_b32 v6, 1, v2\nv_mul_u32_u24 v6, 896, v6\nv_lshl_add_u32 v6, v3, 3, v6\ns_lshl_b32 s{sT}, s{sT}, 1\nv_add_u32 v6, s{sT}, v6")
    a(f"s_mov_b32 m0, {L_WQ}\ns_waitcnt lgkmcnt(0)")
    a(f"s_load_dword s{sE}, s[18:19], 0")
    for t in range(14):
        if t: a(f"s_mov_b32 m0, {L_WQ+t*1024}\nv_add_u32 v5, 0x10000, v5")
        a(f"global_load_lds_dwordx4 v5, s[10:11] nt")
    for u in range(7): a(f"global_load_dwordx2 v[{16+2*u}:{17+2*u}], v6, s[4:5] offset:{u*32}")
    if dyn:
        a(f"s_cmp_lg_u32 s{sS}, 0\ns_cbranch_scc1 L_noinit")
        a(f"s_mul_i32 s{sCNT}, s{sBH}, {CSTR}\ns_add_u32 s{sCNT}, s{sCNT}, {WS_CNT}\nv_mov_b32 v8, s{sCNT}\nv_mov_b32 v9, 0\nglobal_store_dword v8, v9, s[18:19] sc1")
        a("L_noinit:")
    a("v_lshrrev_b32 v7, 2, v2\nv_lshlrev_b32 v7, 7, v7\nv_and_b32 v8, 3, v2\nv_lshl_add_u32 v7, v8, 3, v7")
    a(f"s_lshl_b32 s{sT}, s{sH}, 13\ns_lshl_b32 s{sT2}, s{sTK}, 10\ns_add_u32 s{sT2}, s{sT2}, s{sT}\ns_lshl_b32 s{sK}, s{sK}, 8\ns_add_u32 s{sT2}, s{sT2}, s{sK}\ns_add_u32 s{sT2}, s{sT2}, {WS_QP+2048}")
    a(f"v_lshl_add_u32 v8, v2, 2, s{sT2}")
    a(f"s_lshl_b32 s{sT2}, s{sB}, 12\ns_add_u32 s{sT}, s{sT}, s{sT2}\ns_add_u32 s{sT}, s{sT}, {WS_QP}\nv_lshl_add_u32 v9, v2, 4, s{sT}")
    a(f"s_waitcnt lgkmcnt(0)\ns_add_u32 s{sE}, s{sE}, 1\ns_and_b32 s{sTAG}, s{sE}, {TAGM}\nv_mov_b32 v10, s{sTAG}\ns_movk_i32 s{sC}, {TAGM}")
    a("s_waitcnt vmcnt(0)")
    stamp(1)
    B0=48; D0=32
    def trs(u):
        for c in range(4): a(f"ds_read_b64_tr_b16 v[{B0+u*8+2*c}:{B0+u*8+2*c+1}], v7 offset:{L_WQ+u*2048+c*32}")
    if dbg: a("s_waitcnt lgkmcnt(0)")
    trs(0); trs(1); trs(2)
    for u in range(7):
        if u+3<7:
            a("s_waitcnt lgkmcnt(8)"); trs(u+3)
        else: a(f"s_waitcnt lgkmcnt({4*(6-u)})")
        for c in range(4):
            cc="0" if u==0 else f"v[{D0+4*c}:{D0+4*c+3}]"
            a(f"v_mfma_f32_16x16x16_bf16 v[{D0+4*c}:{D0+4*c+3}], v[{16+2*u}:{17+2*u}], v[{B0+u*8+2*c}:{B0+u*8+2*c+1}], {cc}")
    a("s_nop 5")
    for c in range(1,4):
        for bb in range(2): a(f"v_mov_b32_dpp v{D0+bb}, v{D0+4*c+bb} quad_perm:[0,1,2,3] row_mask:{hex(1<<c)} bank_mask:0xf")
    for bb in range(2): a(f"v_bfi_b32 v{D0+bb}, s{sC}, v10, v{D0+bb}")
    a(f"global_store_dword v8, v{D0}, s[18:19] offset:-2048 sc1\nglobal_store_dword v8, v{D0+1}, s[18:19] offset:2048 sc1")
    stamp(2)
    a(f"s_cmp_ge_u32 s{sBH}, 16\ns_cbranch_scc1 L_noxi")
    a(f"s_getreg_b32 s{sST}, hwreg(HW_REG_XCC_ID, 0, 4)\ns_lshl_b32 s{sST}, s{sST}, 28\ns_xor_b32 s{sST}, s{sST}, s{sE}")
    a(f"s_mul_i32 s{sT}, s{sS}, {CSTR}\ns_add_u32 s{sT}, s{sT}, {WS_XI}\ns_lshl_b32 s{sT2}, s{sBH}, 2\ns_add_u32 s{sT}, s{sT}, s{sT2}\nv_mov_b32 v6, s{sT}\nv_mov_b32 v7, s{sST}\nglobal_store_dword v6, v7, s[18:19] sc1")
    a("L_noxi:")
    a(f"s_mov_b32 s{sSP}, {SPIN}\ns_waitcnt vmcnt(0)")
    a("L_qpoll:")
    if qback: a(f"s_sleep {qback}")
    for k in range(4): a(f"global_load_dwordx4 v[{16+4*k}:{19+4*k}], v9, s[18:19] offset:{k*1024} sc1")
    a(f"s_sub_u32 s{sSP}, s{sSP}, 1\ns_cbranch_scc1 L_qgo")
    a("s_waitcnt vmcnt(0)")
    for k in range(16): a(f"v_xor_b32 v{16+k}, s{sTAG}, v{16+k}")
    a("v_or3_b32 v12, v16, v17, v18")
    for k in range(3,15,2): a(f"v_or3_b32 v12, v12, v{16+k}, v{17+k}")
    a(f"v_or_b32 v12, v12, v31\nv_and_b32 v12, s{sC}, v12\nv_cmp_ne_u32 vcc, 0, v12\ns_cbranch_vccnz L_qpoll")
    a("L_qgo:")
    for r in range(4): a(f"v_add_f32 v{16+r}, v{16+r}, v{20+r}\nv_add_f32 v{24+r}, v{24+r}, v{28+r}")
    for r in range(4): a(f"v_add_f32 v{16+r}, v{16+r}, v{24+r}")
    a(f"v_cvt_pk_bf16_f32 v16, v16, v17\nv_cvt_pk_bf16_f32 v17, v18, v19\nv_lshlrev_b32 v5, 3, v2\nds_write_b64 v5, v[16:17] offset:{L_Q}")
    a(f"v_mov_b32 v5, 0\nv_mov_b32 v6, 0\nv_mov_b32 v7, s{sE}\nds_write_b64 v5, v[6:7] offset:{L_C1}")
    a("s_setprio 0\ns_branch L_hbar")
    a("L_noq:")
    a(f"v_mov_b32 v8, -1\nv_lshlrev_b32 v5, 2, v2\nds_write_b32 v5, v8 offset:{L_TK}\nds_write_b32 v5, v8 offset:{L_TK+16}")
    a("L_hbar:")
    a("s_waitcnt lgkmcnt(0)")
    stamp(3)
    a("s_barrier")
    WO=64; sLOC=sPULL; sXV=sST
    a(f"v_mov_b32 v28, 0\nds_read_b32 v6, v28 offset:{L_E}")
    a(f"s_sub_u32 s{sK}, s{sW}, 4\ns_movk_i32 s{sC}, {TAGM}\ns_not_b32 s{sAT}, s{sC}")
    a(f"s_lshl_b32 s{sT}, s{sBH}, 2\ns_add_u32 s{sT}, s{sT}, s{sK}\ns_lshl_b32 s{sT}, s{sT}, 5\nv_add_u32 v5, s{sT}, v3\nv_mul_u32_u24 v5, 896, v5")
    a(f"s_and_b32 s{sT}, s{sS}, 3\ns_cmp_eq_u32 s{sT}, 3\ns_cselect_b32 s{sB}, 8, 16\ns_lshl_b32 s{sT}, s{sT}, 8\nv_add_u32 v5, s{sT}, v5\ns_sub_u32 s{sT}, s{sB}, 1")
    a(f"v_lshlrev_b32 v7, 1, v3\nv_xor_b32 v7, v7, v4\nv_xor_b32 v8, 8, v7\nv_and_b32 v7, s{sT}, v7\nv_and_b32 v8, s{sT}, v8")
    a(f"v_lshl_add_u32 v12, v7, 4, v5\nv_lshl_add_u32 v13, v8, 4, v5\nv_add_u32 v13, {8*896}, v13")
    a(f"s_lshl_b32 s{sTK}, s{sK}, 13\ns_add_u32 s{sTK}, s{sTK}, {L_WQ}")
    a(f"v_lshlrev_b32 v27, 4, v2\ns_waitcnt lgkmcnt(0)\nv_readfirstlane_b32 s{sE}, v6")
    a(f"s_and_b32 s{sTAG}, s{sE}, {TAGM}\nv_mov_b32 v15, s{sTAG}")
    a(f"s_cmp_lg_u32 s{sW}, 4\ns_cbranch_scc1 L_nopub")
    a(f"v_and_b32 v16, 12, v2\ns_mov_b32 s{sSP}, {SPIN}")
    a(f"L_c1:\ns_sleep 8\nds_read_b32 v6, v28 offset:{L_C1}\ns_sub_u32 s{sSP}, s{sSP}, 1\ns_cbranch_scc1 L_c1go\ns_waitcnt lgkmcnt(0)\nv_cmp_ne_u32 vcc, 0x100, v6\ns_cbranch_vccnz L_c1\nL_c1go:")
    a(f"ds_read_b32 v17, v16 offset:{L_ML}")
    for i in range(4): a(f"ds_read_b128 v[{32+4*i}:{35+4*i}], v27 offset:{L_P+i*1024}")
    a(f"s_mul_i32 s{sT}, s2, {XST}\ns_add_u32 s{sT}, s{sT}, {WS_X}\nv_add_u32 v18, s{sT}, v27")
    a("s_waitcnt lgkmcnt(0)")
    a(f"v_max_f32_dpp v56, v17, v17 row_ror:4 {DPM}\nv_add_f32 v32, v32, v33\nv_add_f32 v34, v34, v35")
    a(f"v_max_f32_dpp v56, v56, v56 row_ror:8 {DPM}\nv_and_b32 v56, s{sAT}, v56\nv_sub_f32 v19, v17, v56\nv_exp_f32 v19, v19")
    for r in range(36,48): a(f"v_add_f32 v{32+2*(r&1)}, v{32+2*(r&1)}, v{r}")
    a("v_add_f32 v32, v32, v34\nv_mul_f32 v57, v32, v19")
    for r in range(44,48): a(f"v_mul_f32 v{r}, v{r}, v19")
    for d in ("quad_perm:[1,0,3,2]","quad_perm:[2,3,0,1]","row_half_mirror","row_mirror"):
        a(f"v_add_f32_dpp v57, v57, v57 {d} {DPM}\ns_nop 1")
    a("v_mov_b32 v58, v57\ns_nop 1\nv_permlane16_swap_b32 v57, v58\nv_add_f32 v57, v57, v58\nv_mov_b32 v58, v57\ns_nop 1\nv_permlane32_swap_b32 v57, v58\nv_add_f32 v57, v57, v58")
    for r in range(44,48): a(f"v_bfi_b32 v{r}, s{sC}, v15, v{r}")
    a(f"v_or_b32 v56, v56, v15\nv_bfi_b32 v57, s{sC}, v15, v57\nv_mov_b32 v58, s{sE}\nv_mov_b32 v59, s{sE}")
    xm=((1<<(16*NPX))-1)<<(64-16*NPX)
    a(f"s_mov_b32 exec_lo, {xm&0xffffffff}\ns_mov_b32 exec_hi, {xm>>32}\nglobal_store_dwordx4 v18, v[44:47], s[18:19] sc1")
    a("s_mov_b64 exec, 1\nglobal_store_dwordx4 v18, v[56:59], s[18:19] offset:1024 sc1\ns_mov_b64 exec, -1")
    a("L_nopub:")
    for t in range(8):
        va=12+((t>>1)&1)
        a(f"s_add_u32 m0, s{sTK}, {t*1024}\ns_waitcnt vmcnt(0)")
        a(f"global_load_lds_dwordx4 v{va}, s[12:13] {wofl}")
        a(f"v_add_u32 v{va}, {(4 if t%2==0 else 12)*896}, v{va}")
    a(f"s_cmp_lg_u32 s{sW}, 4\ns_cbranch_scc1 L_nogat")
    a(f"s_mul_i32 s{sT}, s{sBH}, {8*XST}\ns_add_u32 s{sT}, s{sT}, {WS_X}\nv_mul_u32_u24 v18, {XST}, v3\nv_add_u32 v18, s{sT}, v18\nv_add_u32 v19, {4*XST}, v18")
    a(f"v_lshl_add_u32 v20, v4, 4, v18\nv_lshl_add_u32 v21, v4, 4, v19\ns_mov_b32 s{sSP}, {SPIN}\ns_waitcnt vmcnt(0)\ns_branch L_xp1")
    a("L_xp:\ns_sleep 32\nL_xp1:")
    a("global_load_dwordx4 v[56:59], v18, s[18:19] offset:1024 sc1\nglobal_load_dwordx4 v[60:63], v19, s[18:19] offset:1024 sc1")
    G0=64
    for i in range(2*NPX): a(f"global_load_dwordx4 v[{G0+4*i}:{G0+4*i+3}], v{20+(i&1)}, s[18:19] offset:{1024-256*NPX+(i>>1)*256} sc1")
    a(f"s_sub_u32 s{sSP}, s{sSP}, 1\ns_cbranch_scc1 L_xgo\ns_waitcnt vmcnt(0)")
    regs=[56,57,60,61]+list(range(G0,G0+8*NPX))
    for r in regs: a(f"v_xor_b32 v{r}, s{sTAG}, v{r}")
    a(f"v_xor_b32 v58, s{sE}, v58\nv_xor_b32 v62, s{sE}, v62\nv_or_b32 v31, v56, v57")
    for k in range(2,len(regs),2): a(f"v_or3_b32 v31, v31, v{regs[k]}, v{regs[k+1]}")
    a(f"v_and_b32 v31, s{sC}, v31\nv_or3_b32 v31, v31, v58, v62\nv_cmp_ne_u32 vcc, 0, v31\ns_cbranch_vccnz L_xp\nL_xgo:")
    a("v_max_f32 v32, v56, v60\nv_max_f32 v33, v56, v60\ns_nop 1\nv_permlane16_swap_b32 v32, v33\nv_max_f32 v34, v32, v33\nv_max_f32 v35, v32, v33\ns_nop 1\nv_permlane32_swap_b32 v34, v35\nv_max_f32 v32, v34, v35")
    a("v_sub_f32 v56, v56, v32\nv_sub_f32 v60, v60, v32\nv_sub_f32 v17, v17, v32\nv_exp_f32 v56, v56\nv_exp_f32 v60, v60\nv_exp_f32 v17, v17")
    a("v_mul_f32 v33, v56, v57\nv_fmac_f32 v33, v60, v61\nv_mov_b32 v34, v33\ns_nop 1\nv_permlane16_swap_b32 v33, v34\nv_add_f32 v33, v33, v34\nv_mov_b32 v34, v33\ns_nop 1\nv_permlane32_swap_b32 v33, v34\nv_add_f32 v33, v33, v34")
    a("v_rcp_f32 v33, v33\ns_nop 0\nv_mul_f32 v56, v56, v33\nv_mul_f32 v60, v60, v33\nv_mul_f32 v17, v17, v33")
    for i in range(2*NPX):
        for r in range(4): a(f"v_mul_f32 v{G0+4*i+r}, v{G0+4*i+r}, v{56+4*(i&1)}")
        a(f"ds_write_b128 v27, v[{G0+4*i}:{G0+4*i+3}] offset:{L_P+4096+i*1024}")
    a(f"ds_write_b32 v16, v17 offset:{L_F}")
    a("L_nogat:")
    a(f"s_getreg_b32 s{sXV}, hwreg(HW_REG_XCC_ID, 0, 4)\ns_lshl_b32 s{sXV}, s{sXV}, 28\ns_xor_b32 s{sXV}, s{sXV}, s{sE}")
    a(f"s_mul_i32 s{sT}, s{sS}, {CSTR}\ns_add_u32 s{sT}, s{sT}, {WS_XI}\nv_lshl_add_u32 v14, v4, 2, s{sT}")
    a(f"s_lshr_b32 s{sT}, s{sS}, 2\ns_lshl_b32 s{sT}, s{sT}, 4\ns_lshr_b32 s{sT2}, s{sBH}, 1\ns_add_u32 s{sT}, s{sT}, s{sT2}\ns_mul_i32 s{sT}, s{sT}, {8*OST}\ns_add_u32 s{sT}, s{sT}, {WS_OP}")
    a(f"v_lshrrev_b32 v6, 3, v2\nv_mul_u32_u24 v6, {OST}, v6\nv_add_u32 v20, s{sT}, v6")
    a(f"s_and_b32 s{sT}, s{sBH}, 1\ns_lshl_b32 s{sT}, s{sT}, 2\ns_add_u32 s{sT}, s{sT}, s{sK}\ns_lshl_b32 s{sT}, s{sT}, 7\nv_and_b32 v7, 7, v2\nv_lshl_add_u32 v20, v7, 4, v20\nv_add_u32 v20, s{sT}, v20")
    a(f"s_lshl_b32 s{sT}, s{sK}, 8\nv_lshl_add_u32 v21, v2, 2, s{sT}\ns_mul_i32 s{sT2}, s2, {OST}\ns_add_u32 s{sT2}, s{sT2}, {WS_OP}\nv_add_u32 v22, s{sT2}, v21\nv_add_u32 v21, {L_O}, v21")
    a(f"s_lshl_b32 s{sT}, s{sS}, 14\ns_add_u32 s{sT}, s{sT}, {WS_Y}\ns_lshl_b32 s{sT2}, s{sBH}, 5\ns_add_u32 s{sT2}, s{sT2}, s{sT}")
    a(f"v_lshrrev_b32 v6, 1, v2\nv_lshlrev_b32 v6, 9, v6\nv_and_b32 v8, 1, v2\nv_lshl_add_u32 v6, v8, 4, v6\nv_add_u32 v24, s{sT2}, v6")
    a(f"s_lshl_b32 s{sT2}, s{sBH}, 2\ns_add_u32 s{sT2}, s{sT2}, s{sK}\ns_lshl_b32 s{sT2}, s{sT2}, 7\ns_add_u32 s{sT}, s{sT}, s{sT2}\nv_lshl_add_u32 v23, v2, 2, s{sT}")
    a(f"s_lshr_b32 s{sT}, s{sS}, 2\ns_mul_i32 s{sT}, s{sT}, 896\ns_and_b32 s{sT2}, s{sS}, 3\ns_lshl_b32 s{sT2}, s{sT2}, 8\ns_add_u32 s{sT}, s{sT}, s{sT2}\ns_lshl_b32 s{sT2}, s{sBH}, 4\ns_add_u32 s{sT}, s{sT}, s{sT2}\nv_lshl_add_u32 v26, v8, 3, s{sT}\nv_lshl_add_u32 v26, v3, 1, v26")
    a(f"s_lshl_b32 s{sT}, s{sK}, 6\nv_lshl_add_u32 v29, v7, 3, s{sT}\nv_lshl_add_u32 v29, v3, 1, v29\nv_lshlrev_b32 v30, 4, v3")
    a(f"v_bfe_u32 v9, v2, 2, 2\nv_and_b32 v6, 1, v3\nv_lshl_add_u32 v6, v6, 2, v9\ns_lshl_b32 s{sT}, s{sK}, 1\nv_xor_b32 v6, s{sT}, v6")
    a(f"v_lshl_add_u32 v9, v3, 3, v9\nv_lshlrev_b32 v9, 8, v9\nv_lshl_add_u32 v9, v6, 5, v9\nv_and_b32 v6, 3, v2\nv_lshl_add_u32 v9, v6, 3, v9\nv_xor_b32 v10, 32, v9")
    if pre: a("global_load_dword v11, v22, s[18:19]")
    if touch: a("global_load_dword v11, v28, s[14:15]")
    a(f"s_mov_b32 s{sSP}, {SPIN}\ns_mov_b32 s{sLOC}, 0\ns_branch L_xi1")
    a("L_xipoll:\ns_sleep 32\nL_xi1:\nglobal_load_dword v6, v14, s[18:19] sc1")
    a(f"s_sub_u32 s{sSP}, s{sSP}, 1\ns_cbranch_scc1 L_xigo")
    a(f"s_waitcnt vmcnt(0)\nv_xor_b32 v6, s{sXV}, v6\nv_and_b32 v7, 0x0fffffff, v6\nv_cmp_ne_u32 vcc, 0, v7\ns_cbranch_vccnz L_xipoll")
    a(f"v_cmp_ne_u32 vcc, 0, v6\ns_cmp_eq_u64 vcc, 0\ns_cselect_b32 s{sLOC}, {1 if loc else 0}, 0")
    a("L_xigo:")
    a(f"s_mov_b32 s{sSP}, {SPIN}")
    a("s_waitcnt vmcnt(0) lgkmcnt(0)")
    a("s_barrier")
    stamp(4)
    a("ds_read2st64_b32 v[32:33], v21 offset0:0 offset1:4\nds_read2st64_b32 v[34:35], v21 offset0:8 offset1:12")
    a("s_waitcnt lgkmcnt(0)")
    a(f"v_add_f32 v32, v32, v33\nv_add_f32 v34, v34, v35\nv_add_f32 v32, v32, v34\nv_bfi_b32 v32, s{sC}, v15, v32")
    a("global_store_dword v22, v32, s[18:19] sc1")
    stamp(5)
    a("global_load_dwordx4 v[36:39], v20, s[18:19] sc1")
    for kp in range(4):
        for tau in range(2):
            for j in range(2):
                r=WO+kp*8+tau*4+j*2
                a(f"ds_read_b64_tr_b16 v[{r}:{r+1}], v{9+tau} offset:{L_WQ+kp*8192+j*1024}")
    a("s_branch L_h1a")
    a("L_h1poll:")
    a("global_load_dwordx4 v[36:39], v20, s[18:19] sc1")
    a(f"s_sub_u32 s{sSP}, s{sSP}, 1\ns_cbranch_scc1 L_h1go")
    a("L_h1a:\ns_waitcnt vmcnt(0)")
    for r in (36,38,37,39): a(f"v_xor_b32 v{r}, s{sTAG}, v{r}")
    a(f"v_or3_b32 v31, v36, v37, v38\nv_or_b32 v31, v31, v39\nv_and_b32 v31, s{sC}, v31")
    a("v_cmp_ne_u32 vcc, 0, v31\ns_and_b64 exec, exec, vcc\ns_cbranch_scc1 L_h1poll\nL_h1go:\ns_mov_b64 exec, -1")
    stamp(6)
    a("v_permlane32_swap_b32 v36, v38\nv_permlane32_swap_b32 v37, v39\nv_add_f32 v36, v36, v38\nv_add_f32 v37, v37, v39\ns_nop 1")
    a(f"v_permlane16_swap_b32 v36, v37\nv_add_f32 v36, v36, v37\ns_nop 1\nv_add_f32_dpp v36, v36, v36 row_ror:8 {DPM}\nv_cvt_pk_bf16_f32 v36, v36, v36")
    a(f"ds_write_b16 v29, v36 offset:{L_OB}\ns_waitcnt lgkmcnt(0)\ns_barrier")
    for kp in range(4): a(f"ds_read_b128 v[{40+4*kp}:{43+4*kp}], v30 offset:{L_OB+kp*64}")
    for kp in range(4):
        a(f"s_waitcnt lgkmcnt({3-kp})")
        for tau in range(2):
            d=56+4*tau; cc="0" if kp==0 else f"v[{d}:{d+3}]"
            a(f"v_mfma_f32_16x16x32_bf16 v[{d}:{d+3}], v[{40+4*kp}:{43+4*kp}], v[{WO+kp*8+tau*4}:{WO+kp*8+tau*4+3}], {cc}")
    a(f"s_mov_b32 exec_hi, 0\ns_cmp_lg_u32 s{sLOC}, 0\ns_nop 5")
    a(f"v_mov_b32_dpp v56, v60 quad_perm:[0,1,2,3] row_mask:0x2 bank_mask:0xf\nv_bfi_b32 v56, s{sC}, v15, v56")
    a("s_cbranch_scc0 L_yrem\nglobal_store_dword v23, v56, s[18:19]\nL_ydone:\ns_mov_b32 exec_hi, -1")
    stamp(7)
    a(f"s_cmp_lg_u32 s{sW}, 7\ns_cbranch_scc1 L_hend\ns_cmp_ge_u32 s{sBH}, s{sB}\ns_cbranch_scc1 L_hend")
    a("L_h2poll:")
    a("global_load_dwordx4 v[32:35], v24, s[18:19] sc1")
    a(f"s_sub_u32 s{sSP}, s{sSP}, 1\ns_cbranch_scc1 L_h2go")
    a("s_waitcnt vmcnt(0)")
    for r in range(4): a(f"v_xor_b32 v{32+r}, s{sTAG}, v{32+r}")
    a(f"v_or3_b32 v31, v32, v33, v34\nv_or_b32 v31, v31, v35\nv_and_b32 v31, s{sC}, v31")
    a("v_cmp_ne_u32 vcc, 0, v31\ns_and_b64 exec, exec, vcc\ns_cbranch_scc1 L_h2poll\nL_h2go:\ns_mov_b64 exec, -1")
    stamp(8)
    a("v_permlane32_swap_b32 v32, v34\nv_permlane32_swap_b32 v33, v35")
    a("v_add_f32 v32, v32, v34\nv_add_f32 v33, v33, v35")
    a("s_nop 1\nv_permlane16_swap_b32 v32, v33\nv_add_f32 v32, v32, v33\ns_nop 1")
    for d in ("row_ror:8","row_ror:4","row_ror:2"):
        a(f"v_add_f32_dpp v32, v32, v32 {d} {DPM}")
        if d!="row_ror:2": a("s_nop 1")
    a("s_mov_b32 exec_lo, 0x00030003\ns_mov_b32 exec_hi, 0x00030003")
    a("v_cvt_pk_bf16_f32 v32, v32, v32")
    a("global_store_short v26, v32, s[14:15]")
    a(f"s_cmp_lg_u32 s2, 0\ns_cbranch_scc1 L_hend")
    a(f"v_mov_b32 v29, s{sE}\nglobal_store_dword v28, v29, s[18:19] sc1")
    a("L_hend:")
    stamp(9)
    if probe is not None:
        pw=7 if probe in (0,8,9) else 4
        a(f"s_cmp_lg_u32 s2, {pwg}\ns_cbranch_scc1 L_end\ns_cmp_lg_u32 s{sW}, {pw}\ns_cbranch_scc1 L_end")
        a(f"s_waitcnt lgkmcnt(0)\ns_sub_u32 s72, s{40+2*probe}, s40\ns_add_u32 s72, s72, 10000")
        a("L_pspin:\ns_memrealtime s[70:71]\ns_waitcnt lgkmcnt(0)\ns_sub_u32 s70, s70, s40\ns_cmp_lt_u32 s70, s72\ns_cbranch_scc1 L_pspin")
    dumpstamps(10)
    a("L_end:\ns_endpgm")
    a("L_yrem:\nglobal_store_dword v23, v56, s[18:19] sc1\ns_branch L_ydone")
    nv=max(NV,136)
    a(f""".section .rodata,"a"
.p2align 6
.amdhsa_kernel {MAIN}
  .amdhsa_next_free_vgpr {nv}
  .amdhsa_next_free_sgpr 80
  .amdhsa_accum_offset {(nv+3)//4*4}
  .amdhsa_group_segment_fixed_size 0
  .amdhsa_kernarg_size 64
  .amdhsa_user_sgpr_count 2
  .amdhsa_user_sgpr_kernarg_segment_ptr 1
  .amdhsa_system_sgpr_workgroup_id_x 1
.end_amdhsa_kernel""")
    open(name,"w").write("\n".join(o)+"\n")
    return build(name)
if __name__=="__main__":
    print(gen("v5.s"))
```

```python
import gen4, gen5
L=[]
L.append(gen4.gen("c4.s",f1=5,f2=5,kclose=4,popen=0,qback=8))
L.append(gen5.gen("c5.s"))
L.append(gen5.gen("c5f56.s",f2=6))
L.append(gen5.gen("c5st.s",dyn=False))
L.append(gen5.gen("c5np3.s",NP=3,kopen=29))
L.append(gen5.gen("c5pre.s",pre=True))
kw=dict(stamps=True,prog=True)
L.append(gen4.gen("c4s.s",f1=5,f2=5,kclose=4,popen=0,qback=8,**kw))
L.append(gen5.gen("c5s.s",**kw))
L.append(gen5.gen("c5f56s.s",f2=6,**kw))
L.append(gen5.gen("c5sts.s",dyn=False,**kw))
L.append(gen5.gen("c5np3s.s",NP=3,kopen=29,**kw))
L.append(gen5.gen("c5pres.s",pre=True,**kw))
L.append(gen5.gen("c5noopens.s",openn=(),**kw))
L.append(gen5.gen("c5ko60s.s",kopen=60,**kw))
print(" ".join(L))
```

```python
import sys
from asm import build
MAIN="standalone__mha_block_cached__decode_kernel"
C_SCALE=0x3db8aa3b
TAGM=0x3ff
WS_XI=0x1000; WS_X=0x10000; WS_T=0x20000; WS_QP=0x40000; WS_OP=0x80000; WS_Y=0xC0000; XST=256
L_F=0; L_DN=16; L_TS=32; L_QF=64; L_REF=264; L_E=276; L_ML=288; L_Q=512; L_OB=1024; L_O=2048; L_P=6144
L_WQ=L_P+4096; L_WO=L_WQ+14336; LDS_SZ=L_WO+16384
SPIN=1<<19
DPM="row_mask:0xf bank_mask:0xf"
DP4=["quad_perm:[1,0,3,2]","quad_perm:[2,3,0,1]","row_half_mirror","row_mirror"]

DOC = r"""
; ---------------------------------------------------------------------------------------------
; One persistent launch, 256 workgroups (one per CU) of 8 waves.
;   wg -> team x = wg&7, head h = 2x + bit3, batch b = bit4, split s = wg>>5
;   The workgroup owns 16 chunks of 64 keys of (b,h): chunk k covers keys (s + 8k)*64 ...
; Waves 0-3 stream: first all K chunks (scores -> LDS), then all V chunks (MFMA accumulate with
;   p = exp2(c*(score - wave max)); the true softmax max / sum are applied when the waves are merged).
; Wave 4: q = x @ wq (a 112x64 slice per workgroup, exchanged through d_ws), later the
;   (max, sum) exchange of the 8 workgroups of (b,h).
; Wave 5: load balancing.  HBM is saturated with 5 loads in flight per wave; a wave that is
;   behind the chip-wide mean progress keeps 6 or 8 in flight so that all CUs finish together.
;   The clock is only read to compare progress; nothing waits on it and no result depends on it.
; Waves 4-7 tail: merge o, exchange it inside the team, multiply by a 128x64 tile of wo,
;   hand the partial outputs to 28 reducer workgroups which write d_out.
; Hand-offs through d_ws carry a per-launch tag (d_ws word 0 + 1) so that leftovers of an earlier
;   launch are never taken for data; stores are write-through (sc1) unless every team member
;   reported the same XCC id, in which case the shared L2 is enough.
; ---------------------------------------------------------------------------------------------
""".strip("\n")

def gen(name, U=4, lv=(5,6,8), th=(0,30), a0=10, tau0=107.6, n1=5, P=8, NC=3, D=2, GD=5, qe=12, qback=8, pad=250, unr=False, w7early=True, tpre=False, full=True, NS=64, opre="sqxy", mlfull=True, hdr=""):
    o=[]
    def a(s): o.extend(s.split("\n"))
    def c(s): o.append("; "+s)
    fk=lv[0]
    a(hdr+f"; @launch grid=(256,1,1) block=(512,1,1) lds={LDS_SZ}")
    a('.amdgcn_target "amdgcn-amd-amdhsa--gfx950"')
    a(DOC)
    a(f".text\n.globl {MAIN}\n.p2align 8\n.type {MAIN},@function\n{MAIN}:")
    sW=20; sBH=21; sS=22; sX=23; sTK=24; sK=25; sC=26; sT=27; sT2=28; sAT=29; sLOC=30; sXV=31; sTAG=32; sE=33; sI=34; sTV=35; sSP=36; sH=37; sB=38
    sA=40; sNOW=42; sEX=44; sIDX=46; sREF=48; sTAU=49; sLV=50
    a("s_cmp_ge_u32 s2, 256\ns_cbranch_scc1 L_end")
    c("s[4:5]=x s[6:7]=K s[8:9]=V s[10:11]=wq s[12:13]=wo s[14:15]=out s[16:17]=dbg s[18:19]=ws")
    a("s_load_dwordx16 s[4:19], s[0:1], 0")
    a(f"s_memrealtime s[{sNOW}:{sNOW+1}]")
    c("v1 = wave, v2 = lane, v3 = lane>>4, v4 = lane&15")
    a("v_lshrrev_b32 v1, 6, v0\nv_and_b32 v2, 63, v0")
    a(f"v_readfirstlane_b32 s{sW}, v1")
    a("v_lshrrev_b32 v3, 4, v2\nv_and_b32 v4, 15, v2")
    a(f"s_and_b32 s{sX}, s2, 7\ns_bfe_u32 s{sT}, s2, 0x10003\ns_lshl1_add_u32 s{sH}, s{sX}, s{sT}\ns_and_b32 s{sT}, s2, 16\ns_or_b32 s{sBH}, s{sH}, s{sT}\ns_lshr_b32 s{sS}, s2, 5")
    a(f"s_cmp_ge_u32 s{sW}, 4\ns_cbranch_scc1 L_helper")
    c("================= streaming waves 0-3 =================")
    Q=8; MK=16; PB=20; ACC=28; S=36; M=40; T=41; VP=45; VZ=46; VONE=0; VL=48; VTS=7; VR=52; VO=Q+3
    RB=54; NV=RB+U*32
    c("a 32KB chunk is read as 4 groups x 4 waves x 2KB (4 keys); lane = (key lane>>4, 16B piece lane&15), two halves per key")
    a(f"v_lshlrev_b32 v5, 9, v3\nv_lshl_add_u32 v5, v4, 4, v5")
    a(f"s_add_u32 s{sT2}, s{sBH}, s{sS}\ns_add_u32 s{sT2}, s{sT2}, s{sW}\ns_lshl_b32 s{sT2}, s{sT2}, 11")
    for g in range(4):
        a(f"s_and_b32 s{sT2}, s{sT2}, 0x7fff\nv_add_u32 v{VL+g}, s{sT2}, v5")
        if g<3: a(f"s_add_u32 s{sT2}, s{sT2}, 0x2000")
    a(f"s_lshl_b32 s{sT}, s{sBH}, 7\ns_add_u32 s{sT}, s{sT}, s{sS}\ns_lshl_b32 s{sT}, s{sT}, 15")
    def ld(slot,g,e):
        r=RB+slot*32+g*8+4*e
        a(f"global_load_dwordx4 v[{r}:{r+3}], v{VL+g}, s[6:7]{' offset:256' if e else ''} nt")
    def nextchunk(): a("s_add_u32 s6, s6, 0x40000\ns_addc_u32 s7, s7, 0")
    a("s_waitcnt lgkmcnt(0)")
    a(f"s_add_u32 s6, s6, s{sT}\ns_addc_u32 s7, s7, 0")
    c(f"prefetch {U} K chunks while q is being produced")
    n=0
    for u in range(U):
        for g in range(4):
            for e in range(2):
                if n==fk:
                    c("LDS flags = -1, progress reference = 'far ahead', MFMA selector masks, accumulators")
                    a(f"v_mov_b32 v{T}, -1\nv_lshlrev_b32 v6, 2, v2\nds_write_b32 v6, v{T} offset:{L_F}\nv_mov_b32 v{VR}, s{sNOW}\nv_mov_b32 v{VR+1}, 0x100000\nv_mov_b32 v{VZ}, 0\nds_write_b64 v{VZ}, v[{VR}:{VR+1}] offset:{L_REF}")
                    a(f"s_add_u32 s8, s8, s{sT}\ns_addc_u32 s9, s9, 0")
                    a(f"v_and_b32 v{T}, 1, v2\nv_lshlrev_b32 v{T}, 4, v{T}\nv_mov_b32 v{T+1}, 0xffff\nv_lshlrev_b32 v{T}, v{T}, v{T+1}\nv_bfe_u32 v{T+1}, v2, 1, 2")
                    for k in range(4): a(f"v_cmp_eq_u32 vcc, {k}, v{T+1}\nv_mov_b32 v{ACC+2*k}, 0\nv_mov_b32 v{ACC+2*k+1}, 0\nv_cndmask_b32 v{MK+k}, 0, v{T}, vcc")
                    a(f"s_mov_b32 s{sC}, {hex(C_SCALE)}\nv_mov_b32 v{M}, 0xff7fffff")
                    a(f"s_mov_b32 s{sK}, {U}\nv_lshlrev_b32 v5, 4, v4")
                    a(f"s_mov_b32 s{sLV}, 0\nv_mov_b32 v{VONE}, 1")
                    a(f"v_lshlrev_b32 v{VTS}, 3, v1\ns_mov_b32 s{sEX}, 0x10001\ns_mov_b32 s{sEX+1}, 0x10001")
                    a(f"s_mov_b32 s{sIDX}, 0\ns_movk_i32 s{sIDX+1}, 256")
                    a(f"v_lshlrev_b32 v{VP}, 6, v1\nv_lshl_add_u32 v{VP}, v3, 4, v{VP}")
                    a(f"s_mov_b32 s{sSP}, {SPIN}\ns_waitcnt lgkmcnt(0)\ns_barrier")
                if n>=fk: a(f"s_waitcnt vmcnt({fk-1})")
                ld(u,g,e); n+=1
        nextchunk()
    c("pick up q (bf16) once wave 4 has raised the flag")
    a(f"L_qw:\nds_read_b32 v{T}, v{VZ} offset:{L_QF}")
    a(f"ds_read_b128 v[{Q}:{Q+3}], v5 offset:{L_Q}\nds_read_b128 v[{Q+4}:{Q+7}], v5 offset:{L_Q+256}")
    a(f"s_sub_u32 s{sSP}, s{sSP}, 1\ns_cbranch_scc1 L_kloop\ns_waitcnt lgkmcnt(0)\nv_cmp_eq_u32 vcc, -1, v{T}\ns_cbranch_vccnz L_qw")
    def lw(lb):
        for i in range(len(lv)-1,-1,-1):
            a(f"s_waitcnt vmcnt({lv[i]-1})")
            if i: a(f"s_cmp_ge_u32 s{sLV}, {i}\ns_cbranch_scc1 L_o{lb}")
        a(f"L_o{lb}:")
    def mark():
        a(f"s_memrealtime s[{sNOW}:{sNOW+1}]\nds_read_b64 v[{VR}:{VR+1}], v{VZ} offset:{L_REF}")
    def level():
        c("report progress; number of loads kept in flight for the next chunk from the lag behind the mean")
        a(f"v_readfirstlane_b32 s{sREF}, v{VR}\nv_readfirstlane_b32 s{sTAU}, v{VR+1}\nv_mov_b32 v{VR}, s{sNOW}\nv_mov_b32 v{VR+1}, s{sK}\nds_write_b64 v{VTS}, v[{VR}:{VR+1}] offset:{L_TS}")
        a(f"s_sub_u32 s{sT}, s{sNOW}, s{sREF}\ns_lshl_b32 s{sT}, s{sT}, 4\ns_mul_i32 s{sT2}, s{sK}, s{sTAU}\ns_sub_u32 s{sT}, s{sT}, s{sT2}")
        for i,t in enumerate(th): a(f"s_cmp_gt_i32 s{sT}, {t*16}\ns_cselect_b32 s{sLV}, {i+1}, {'s%d'%sLV if i else 0}")
    def kbody(slot, loop):
        for g in range(4):
            r=RB+slot*32+g*8
            a(f"v_mov_b32 v{S+g}, 0")
            for e in range(2):
                for k in range(4*e,4*e+4): a(f"v_dot2c_f32_bf16 v{S+g}, v{r+k}, v{Q+k}")
                if loop:
                    if e==1 and g==3:
                        a("s_waitcnt lgkmcnt(0)"); level()
                    lw(f"k{slot}_{g}_{e}"); ld(slot,g,e)
            if loop and g==2: mark()
        for d in DP4:
            for g in range(4): a(f"v_add_f32_dpp v{S+g}, v{S+g}, v{S+g} {d} {DPM}")
        if loop: a(f"v_add_u32 v{T}, s{sIDX+slot}, v{VP}")
        a(f"v_max3_f32 v{M}, v{S}, v{S+1}, v{M}\nv_max3_f32 v{M}, v{S+2}, v{S+3}, v{M}")
        a(f"s_mov_b64 exec, s[{sEX}:{sEX+1}]")
        if loop: a(f"ds_write_b128 v{T}, v[{S}:{S+3}] offset:{L_P}")
        else: a(f"ds_write_b128 v{VP}, v[{S}:{S+3}] offset:{L_P+slot*256}")
        a("s_mov_b64 exec, -1")
    c(f"---- K phase: consume a chunk, refill its registers with chunk s{sK} (16,17 = first V chunks)")
    a("L_kloop:")
    for u in range(2):
        if u==0: a(f"s_cmp_eq_u32 s{sK}, 16\ns_cselect_b64 s[6:7], s[8:9], s[6:7]")
        kbody(u,True)
        nextchunk()
        a(f"s_lshl_b32 s{sIDX+u}, s{sK}, 8\ns_add_u32 s{sK}, s{sK}, 1")
        for x in range(2,U):
            if (x-1)%2==u: a(f"s_cmp_eq_u32 s{sK}, {U+x}\ns_cbranch_scc1 L_x{x}")
        a(f"L_xr{u}:")
    a(f"s_cmp_lt_u32 s{sK}, 18\ns_cbranch_scc1 L_kloop")
    def cvt():
        for g in range(4): a(f"v_cvt_pk_bf16_f32 v{S+g}, v{S+g}, v{S+g}")
    def ands(g,pb):
        for k in range(4): a(f"v_and_b32 v{pb+k}, v{S+g}, v{MK+k}")
    def mm1(slot,g,e,pb):
        r=RB+slot*32+g*8+4*e; d=ACC+4*e
        a(f"v_mfma_f32_16x16x32_bf16 v[{d}:{d+3}], v[{pb}:{pb+3}], v[{r}:{r+3}], v[{d}:{d+3}]")
    def mm(slot,g,pb): mm1(slot,g,0,pb); mm1(slot,g,1,pb)
    c("---- wave max over its 256 scores, scores -> exp2(c*(s - max)) in place")
    a(f"v_lshrrev_b32 v6, 2, v2\nv_lshlrev_b32 v6, 8, v6\nv_and_b32 v5, 3, v2\nv_lshl_add_u32 v6, v5, 4, v6\nv_lshl_add_u32 v6, v1, 6, v6")
    a(f"v_mov_b32 v{T}, v{M}\nds_read_b128 v[{S}:{S+3}], v6 offset:{L_P}\nv_lshlrev_b32 v5, 2, v1")
    a(f"v_permlane16_swap_b32 v{M}, v{T}\nv_max_f32 v{T+1}, v{M}, v{T}\nv_max_f32 v{T+2}, v{M}, v{T}\nv_lshrrev_b32 v{VO}, 1, v3\nv_lshlrev_b32 v{VO}, 9, v{VO}")
    a(f"v_permlane32_swap_b32 v{T+1}, v{T+2}\nv_max_f32 v{M}, v{T+1}, v{T+2}\nv_mul_f32 v{M}, s{sC}, v{M}")
    a(f"s_waitcnt lgkmcnt(0)\nds_write_b32 v5, v{M} offset:{L_ML}")
    for g in range(4): a(f"v_fma_f32 v{S+g}, v{S+g}, s{sC}, -v{M}")
    for g in range(4): a(f"v_exp_f32 v{S+g}, v{S+g}")
    a(f"s_nop 0\nds_write_b128 v6, v[{S}:{S+3}] offset:{L_P}\nds_read_b128 v[{S}:{S+3}], v{VP} offset:{L_P}")
    a(f"ds_write_b32 v5, v{VONE} offset:{L_DN}")
    a(f"v_lshl_add_u32 v{VO}, v4, 5, v{VO}\nv_and_b32 v5, 1, v3\nv_lshl_add_u32 v{VO}, v5, 4, v{VO}\nv_lshl_add_u32 v{VO}, v1, 10, v{VO}")
    a("s_waitcnt lgkmcnt(1)")
    cvt(); ands(0,PB)
    a("s_nop 1")
    c("---- V phase: D[e][n] += sum_key p[key]*delta(e,e') * V[key][8n+e']  (A = masked p, B = raw V registers)")
    a("L_vloop:")
    for u in range(2):
        for g in range(4):
            mm(u,g,PB+4*(g&1))
            lw(f"{u}_{g}_0"); ld(u,g,0)
            if g<3: ands(g+1,PB+4*((g+1)&1))
            else:
                a("s_waitcnt lgkmcnt(0)")
                cvt(); level(); ands(0,PB)
            lw(f"{u}_{g}_1"); ld(u,g,1)
            if g==2:
                mark()
                a(f"v_add_u32 v{VP}, 256, v{VP}\nds_read_b128 v[{S}:{S+3}], v{VP} offset:{L_P}")
        nextchunk()
        a(f"s_add_u32 s{sK}, s{sK}, 1")
    a(f"s_cmp_lt_u32 s{sK}, 32\ns_cbranch_scc1 L_vloop")
    c("---- last two chunks")
    for g in range(4):
        a(f"s_waitcnt vmcnt({14-2*g})")
        mm(0,g,PB+4*(g&1))
        if g<3: ands(g+1,PB+4*((g+1)&1))
        if g==2: a(f"ds_read_b128 v[{S}:{S+3}], v{VP} offset:{L_P+256}")
        if g<2: a("s_nop 0")
    a("s_waitcnt lgkmcnt(0)")
    cvt()
    for g in range(4): ands(g,RB+4*g)
    for g in range(3):
        a(f"s_waitcnt vmcnt({6-2*g})"); mm(1,g,RB+4*g)
    a("s_waitcnt vmcnt(1)"); mm1(1,3,0,RB+12)
    a("s_waitcnt vmcnt(0)"); mm1(1,3,1,RB+12)
    a("s_mov_b32 exec_hi, 0\ns_nop 4")
    a(f"ds_write_b128 v{VO}, v[{ACC}:{ACC+3}] offset:{L_O}")
    a("s_not_b64 exec, exec")
    a(f"ds_write_b128 v{VO}, v[{ACC+4}:{ACC+7}] offset:{L_O}")
    a("s_waitcnt lgkmcnt(0)\ns_barrier\ns_endpgm")
    for x in range(2,U):
        c(f"start-up chunk {x} (no refill)")
        a(f"L_x{x}:")
        kbody(x,False)
        a(f"s_branch L_xr{(x-1)%2}")
    c("================= waves 4-7 =================")
    a("L_helper:")
    a(f"s_lshr_b32 s{sI}, s2, 3\nv_lshrrev_b32 v5, 3, v2\nv_and_b32 v7, 7, v2")
    a(f"s_cmp_eq_u32 s{sW}, 4\ns_cbranch_scc1 L_isq\ns_cmp_eq_u32 s{sW}, 7\ns_cbranch_scc1 L_w7")
    c("waves 5,6: wo tile rows (4x + (i&3))*128 .., columns 64*(i>>2) .. -> LDS (16B pieces swizzled for the transposing reads)")
    a(f"s_and_b32 s{sT}, s{sI}, 3\ns_lshl2_add_u32 s{sT}, s{sX}, s{sT}\ns_sub_u32 s{sK}, s{sW}, 5\ns_lshl1_add_u32 s{sT}, s{sT}, s{sK}\ns_lshl_b32 s{sT}, s{sT}, 6")
    a(f"v_add_u32 v5, s{sT}, v5\nv_mul_u32_u24 v5, 896, v5\ns_lshl_b32 s{sT}, s{sS}, 7\nv_add_u32 v5, s{sT}, v5")
    a(f"v_and_b32 v8, 1, v3\nv_lshlrev_b32 v8, 1, v8\nv_xor_b32 v8, v8, v7\nv_lshl_add_u32 v12, v8, 4, v5")
    a(f"s_lshl_b32 s{sT2}, s{sK}, 13\ns_add_u32 s{sT2}, s{sT2}, {L_WO}\ns_add_u32 s{sT}, s{sT2}, 8192\ns_waitcnt lgkmcnt(0)\ns_barrier")
    a(f"s_cmp_ge_u32 s{sI}, 28\ns_cbranch_scc1 L_hwait")
    a(f"L_wo:\ns_mov_b32 m0, s{sT2}\ns_add_u32 s{sT2}, s{sT2}, 1024")
    a(f"global_load_lds_dwordx4 v12, s[12:13] nt")
    a(f"v_xor_b32 v12, 64, v12\nv_add_u32 v12, {8*896}, v12\ns_cmp_lt_u32 s{sT2}, s{sT}\ns_cbranch_scc1 L_wo")
    a("s_branch L_hwait")
    c("wave 7: pull this kernel's code into L2, then hop over it (EXEC=0, branches only) to fill the instruction cache")
    a("L_w7:")
    a(f"s_getpc_b64 s[{sA}:{sA+1}]\nL_pc:\ns_sub_u32 s{sA}, s{sA}, L_pc-{MAIN}\ns_subb_u32 s{sA+1}, s{sA+1}, 0\nv_lshlrev_b32 v6, 6, v2")
    if not w7early: a("s_barrier")
    a(f"global_load_dword v10, v6, s[{sA}:{sA+1}]\nv_add_u32 v6, 0x1000, v6\nv_min_u32 v9, L_last-{MAIN}, v6\nglobal_load_dword v10, v9, s[{sA}:{sA+1}]")
    a(f"v_add_u32 v6, 0x1000, v6\nv_min_u32 v9, L_last-{MAIN}, v6\nglobal_load_dword v10, v9, s[{sA}:{sA+1}]")
    if "s" in opre:
        c("touch the d_ws lines this workgroup hands data over in, before HBM is busy (values unused)")
        a(f"s_lshl3_add_u32 s{sT2}, s{sBH}, s{sS}\ns_lshl_b32 s{sT2}, s{sT2}, 10\ns_add_u32 s{sT2}, s{sT2}, {WS_OP}\nv_lshl_add_u32 v9, v2, 4, s{sT2}\ns_waitcnt lgkmcnt(0)\nglobal_load_dword v10, v9, s[18:19]")
    if "q" in opre:
        a(f"s_lshr_b32 s{sB}, s{sBH}, 4\ns_lshl3_add_u32 s{sT2}, s{sB}, s{sS}\ns_lshl_b32 s{sT2}, s{sT2}, 8\ns_lshl_b32 s{sT}, s{sH}, 13\ns_add_u32 s{sT2}, s{sT2}, s{sT}\ns_add_u32 s{sT2}, s{sT2}, {WS_QP}")
        a(f"v_lshrrev_b32 v9, 5, v2\nv_lshlrev_b32 v9, 12, v9\nv_lshl_add_u32 v9, v4, 4, v9\nv_add_u32 v9, s{sT2}, v9\nglobal_load_dword v10, v9, s[18:19]")
    if "x" in opre:
        a(f"s_lshl_b32 s{sT}, s{sX}, 8\ns_add_u32 s{sT}, s{sT}, {WS_XI}\nv_lshl_add_u32 v9, v2, 2, s{sT}\nglobal_load_dword v10, v9, s[18:19]")
    if "y" in opre:
        a(f"s_and_b32 s{sT}, s{sI}, 3\ns_lshl2_add_u32 s{sT}, s{sX}, s{sT}\ns_lshl_b32 s{sT2}, s{sS}, 7\ns_add_u32 s{sT}, s{sT}, s{sT2}\ns_lshl_b32 s{sT}, s{sT}, 7\ns_add_u32 s{sT}, s{sT}, {WS_Y}")
        a(f"v_lshlrev_b32 v9, 12, v3\nv_lshl_add_u32 v9, v4, 3, v9\nv_add_u32 v9, s{sT}, v9\nglobal_load_dword v10, v9, s[18:19]")
    if w7early: a("s_barrier")
    a("s_waitcnt vmcnt(0)")
    if pad: a("s_mov_b64 exec, 0\ns_branch L_pad0")
    else: a("s_branch L_hwait")
    c("wave 4: partial q over rows 112*rq .., columns 256h + 64*cq .., both batches  (rq = 2b + (s>>2), cq = s&3)")
    a("L_isq:")
    a("s_setprio 3")
    a(f"s_lshr_b32 s{sB}, s{sBH}, 4\ns_lshr_b32 s{sT2}, s{sS}, 2\ns_lshl1_add_u32 s{sTK}, s{sB}, s{sT2}\ns_mul_i32 s{sT}, s{sTK}, 112")
    a(f"v_add_u32 v5, s{sT}, v5\nv_lshlrev_b32 v5, 13, v5\nv_lshl_add_u32 v5, v7, 4, v5")
    a(f"s_and_b32 s{sK}, s{sS}, 3\ns_lshl2_add_u32 s{sT2}, s{sH}, s{sK}\ns_lshl_b32 s{sT2}, s{sT2}, 7\nv_add_u32 v5, s{sT2}, v5")
    a(f"v_and_b32 v6, 1, v2\nv_mul_u32_u24 v6, 896, v6\nv_lshl_add_u32 v6, v3, 3, v6\ns_lshl_b32 s{sT}, s{sT}, 1\nv_add_u32 v6, s{sT}, v6")
    if unr:
        a(f"s_movk_i32 m0, {L_WQ}\ns_mov_b32 s{sT2}, 0x10000\ns_waitcnt lgkmcnt(0)")
        a(f"s_load_dword s{sE}, s[18:19], 0")
        for t in range(14):
            if t: a(f"s_movk_i32 m0, {L_WQ+t*1024}\nv_add_u32 v5, s{sT2}, v5")
            a("global_load_lds_dwordx4 v5, s[10:11] nt")
    else:
        a(f"s_movk_i32 s{sT2}, {L_WQ}\ns_waitcnt lgkmcnt(0)")
        a(f"s_load_dword s{sE}, s[18:19], 0")
        a(f"L_wq:\ns_mov_b32 m0, s{sT2}\ns_add_u32 s{sT2}, s{sT2}, 1024\nglobal_load_lds_dwordx4 v5, s[10:11] nt")
        a(f"v_add_u32 v5, 0x10000, v5\ns_cmp_lt_u32 s{sT2}, {L_WQ+14336}\ns_cbranch_scc1 L_wq")
    for u in range(7): a(f"global_load_dwordx2 v[{16+2*u}:{17+2*u}], v6, s[4:5] offset:{u*32}")
    a("s_barrier")
    a("v_lshrrev_b32 v7, 2, v2\nv_lshlrev_b32 v7, 7, v7\nv_and_b32 v8, 3, v2\nv_lshl_add_u32 v7, v8, 3, v7")
    a(f"s_lshl_b32 s{sT}, s{sH}, 13\ns_lshl_b32 s{sT2}, s{sTK}, 10\ns_add_u32 s{sT2}, s{sT2}, s{sT}\ns_lshl_b32 s{sK}, s{sK}, 8\ns_add_u32 s{sT2}, s{sT2}, s{sK}\ns_add_u32 s{sT2}, s{sT2}, {WS_QP+2048}")
    a(f"v_lshl_add_u32 v8, v2, 2, s{sT2}")
    a(f"s_lshl_b32 s{sT2}, s{sB}, 12\ns_add_u32 s{sT}, s{sT}, s{sT2}\ns_add_u32 s{sT}, s{sT}, {WS_QP}\nv_lshl_add_u32 v9, v2, 4, s{sT}")
    c("team marker: launch tag ^ (XCC id << 28)")
    a(f"s_lshl_b32 s{sT}, s{sX}, 8\ns_add_u32 s{sT}, s{sT}, {WS_XI}\nv_and_b32 v14, 31, v2\nv_lshl_add_u32 v14, v14, 2, s{sT}\ns_lshl2_add_u32 s{sT}, s{sI}, s{sT}\nv_mov_b32 v12, s{sT}")
    a(f"s_getreg_b32 s{sXV}, hwreg(HW_REG_XCC_ID, 0, 4)\ns_lshl_b32 s{sXV}, s{sXV}, 28")
    a(f"s_waitcnt lgkmcnt(0)\ns_add_u32 s{sE}, s{sE}, 1\ns_xor_b32 s{sXV}, s{sXV}, s{sE}\nv_mov_b32 v13, s{sXV}\nglobal_store_dword v12, v13, s[18:19]")
    a(f"s_and_b32 s{sTAG}, s{sE}, {TAGM}\nv_mov_b32 v10, s{sTAG}\ns_movk_i32 s{sC}, {TAGM}")
    a(f"s_waitcnt vmcnt({qe})\nglobal_load_dword v15, v14, s[18:19] sc1\ns_waitcnt vmcnt(2)")
    B0=48; D0=32
    def trs(u):
        for k in range(4): a(f"ds_read_b64_tr_b16 v[{B0+u*8+2*k}:{B0+u*8+2*k+1}], v7 offset:{L_WQ+u*2048+k*32}")
    trs(0); trs(1); trs(2)
    for u in range(7):
        if u+3<7:
            a("s_waitcnt lgkmcnt(8)"); trs(u+3)
        else: a(f"s_waitcnt lgkmcnt({4*(6-u)})")
        for k in range(4):
            cc="0" if u==0 else f"v[{D0+4*k}:{D0+4*k+3}]"
            a(f"v_mfma_f32_16x16x16_bf16 v[{D0+4*k}:{D0+4*k+3}], v[{16+2*u}:{17+2*u}], v[{B0+u*8+2*k}:{B0+u*8+2*k+1}], {cc}")
    a("s_nop 5")
    for k in range(1,4):
        for bb in range(2): a(f"v_mov_b32_dpp v{D0+bb}, v{D0+4*k+bb} quad_perm:[0,1,2,3] row_mask:{hex(1<<k)} bank_mask:0xf")
        if k<3: a("s_nop 0")
    for bb in range(2): a(f"v_bfi_b32 v{D0+bb}, s{sC}, v10, v{D0+bb}")
    a(f"s_waitcnt vmcnt(0)\nv_cmp_ne_u32 vcc, s{sXV}, v15\ns_cbranch_vccnz L_qrem")
    a(f"global_store_dword v8, v{D0}, s[18:19] offset:-2048\nglobal_store_dword v8, v{D0+1}, s[18:19] offset:2048\ns_branch L_qpub\nL_qrem:")
    a(f"global_store_dword v8, v{D0}, s[18:19] offset:-2048 sc1\nglobal_store_dword v8, v{D0+1}, s[18:19] offset:2048 sc1")
    a(f"L_qpub:\ns_mov_b32 s{sSP}, {SPIN}\ns_waitcnt vmcnt(0)")
    c("gather the four partials of q[b][h]")
    a(f"L_qpoll:\ns_sleep {qback}")
    for k in range(4): a(f"global_load_dwordx4 v[{16+4*k}:{19+4*k}], v9, s[18:19] offset:{k*1024} sc1")
    a(f"s_sub_u32 s{sSP}, s{sSP}, 1\ns_cbranch_scc1 L_qgo")
    a("s_waitcnt vmcnt(0)")
    for k in range(16): a(f"v_xor_b32 v{16+k}, s{sTAG}, v{16+k}")
    a("v_or3_b32 v12, v16, v17, v18")
    for k in range(3,15,2): a(f"v_or3_b32 v12, v12, v{16+k}, v{17+k}")
    a(f"v_or_b32 v12, v12, v31\nv_and_b32 v12, s{sC}, v12\nv_cmp_ne_u32 vcc, 0, v12\ns_cbranch_vccnz L_qpoll")
    a("L_qgo:")
    for r in range(4): a(f"v_add_f32 v{16+r}, v{16+r}, v{20+r}\nv_add_f32 v{24+r}, v{24+r}, v{28+r}")
    for r in range(4): a(f"v_add_f32 v{16+r}, v{16+r}, v{24+r}")
    a(f"v_cvt_pk_bf16_f32 v16, v16, v17\nv_cvt_pk_bf16_f32 v17, v18, v19\nv_lshlrev_b32 v5, 3, v2\nds_write_b64 v5, v[16:17] offset:{L_Q}")
    a(f"v_mov_b32 v5, 0\nv_mov_b32 v7, s{sE}\nds_write_b32 v5, v7 offset:{L_E}\nds_write_b32 v5, v5 offset:{L_QF}")
    a("s_setprio 0\ns_branch L_hgo")
    if pad: a("@PADEND@\ns_mov_b64 exec, -1")
    a(f"L_hwait:\nv_mov_b32 v5, 0\ns_mov_b32 s{sSP}, {SPIN}")
    a(f"L_hw:\ns_sleep 4\nds_read_b32 v8, v5 offset:{L_QF}\ns_sub_u32 s{sSP}, s{sSP}, 1\ns_cbranch_scc1 L_hgo\ns_waitcnt lgkmcnt(0)\nv_cmp_eq_u32 vcc, -1, v8\ns_cbranch_vccnz L_hw")
    WO=64
    c(f"---- addresses for the tail; s{sK} = wave-4, s{sB} = 4x + (i&3)")
    a("L_hgo:")
    a(f"v_mov_b32 v28, 0\nds_read_b32 v6, v28 offset:{L_E}")
    a(f"s_sub_u32 s{sK}, s{sW}, 4\ns_movk_i32 s{sC}, {TAGM}\ns_not_b32 s{sAT}, s{sC}")
    a(f"s_and_b32 s{sT}, s{sI}, 3\ns_lshl2_add_u32 s{sB}, s{sX}, s{sT}\nv_and_b32 v7, 7, v2\nv_lshlrev_b32 v27, 4, v2")
    a(f"s_lshl_b32 s{sT}, s{sX}, 8\ns_add_u32 s{sT}, s{sT}, {WS_XI}\nv_and_b32 v14, 31, v2\nv_lshl_add_u32 v14, v14, 2, s{sT}")
    a("global_load_dword v11, v14, s[18:19] sc1")
    c("team 'projection done' markers: v12 own, v14 all 28")
    a(f"s_add_u32 s{sT}, s{sT}, 128\nv_min_u32 v14, 27, v2\nv_lshl_add_u32 v14, v14, 2, s{sT}\ns_lshl2_add_u32 s{sT}, s{sI}, s{sT}\nv_mov_b32 v12, s{sT}")
    a(f"s_waitcnt lgkmcnt(0)\nv_readfirstlane_b32 s{sE}, v6\nv_mov_b32 v13, v6")
    a(f"s_getreg_b32 s{sXV}, hwreg(HW_REG_XCC_ID, 0, 4)\ns_lshl_b32 s{sXV}, s{sXV}, 28\ns_xor_b32 s{sXV}, s{sXV}, s{sE}")
    a(f"s_and_b32 s{sTAG}, s{sE}, {TAGM}\nv_mov_b32 v15, s{sTAG}")
    c("o gather: v20 (batch 0), v25 (batch 1): 8 producers x 32 rows")
    a(f"s_lshr_b32 s{sT}, s{sB}, 1\ns_lshl_b32 s{sT}, s{sT}, 13\ns_and_b32 s{sT2}, s{sB}, 1\ns_lshl2_add_u32 s{sT2}, s{sT2}, s{sK}\ns_lshl_b32 s{sT2}, s{sT2}, 7\ns_add_u32 s{sT}, s{sT}, s{sT2}\ns_add_u32 s{sT}, s{sT}, {WS_OP}")
    a(f"v_lshrrev_b32 v6, 3, v2\nv_lshlrev_b32 v6, 10, v6\nv_lshl_add_u32 v6, v7, 4, v6\nv_add_u32 v20, s{sT}, v6\nv_add_u32 v25, 0x20000, v20")
    c("own o: LDS v21, d_ws v22")
    a(f"s_lshl_b32 s{sT}, s{sK}, 8\nv_lshl_add_u32 v21, v2, 2, s{sT}\ns_lshl3_add_u32 s{sT2}, s{sBH}, s{sS}\ns_lshl_b32 s{sT2}, s{sT2}, 10\ns_add_u32 s{sT2}, s{sT2}, {WS_OP}\nv_add_u32 v22, s{sT2}, v21\nv_add_u32 v21, {L_O}, v21")
    c("partial outputs: store v23, reducer gather v24, d_out v26")
    a(f"s_lshl2_add_u32 s{sT}, s{sS}, s{sK}\ns_lshl_b32 s{sT}, s{sT}, 5\ns_add_u32 s{sT}, s{sT}, s{sB}\ns_lshl_b32 s{sT}, s{sT}, 7\ns_add_u32 s{sT}, s{sT}, {WS_Y}\nv_lshl_add_u32 v23, v2, 2, s{sT}")
    a(f"s_lshl_b32 s{sT}, s{sB}, 12\ns_lshl_b32 s{sT2}, s{sK}, 5\ns_add_u32 s{sT}, s{sT}, s{sT2}\ns_add_u32 s{sT}, s{sT}, {WS_Y}")
    a(f"v_lshrrev_b32 v6, 1, v2\nv_lshlrev_b32 v6, 7, v6\nv_and_b32 v8, 1, v2\nv_lshl_add_u32 v6, v8, 4, v6\nv_add_u32 v24, s{sT}, v6")
    a(f"s_lshr_b32 s{sT}, s{sK}, 1\ns_mul_i32 s{sT}, s{sT}, 896\ns_lshl_b32 s{sT2}, s{sB}, 5\ns_add_u32 s{sT}, s{sT}, s{sT2}\ns_and_b32 s{sT2}, s{sK}, 1\ns_lshl4_add_u32 s{sT}, s{sT2}, s{sT}\nv_lshl_add_u32 v26, v8, 3, s{sT}\nv_lshl_add_u32 v26, v3, 1, v26")
    c("LDS: v29 bf16 o write, v30 A-operand read, v9 transposing wo read")
    a(f"s_lshl_b32 s{sT}, s{sK}, 6\nv_lshl_add_u32 v29, v7, 3, s{sT}\nv_lshl_add_u32 v29, v3, 1, v29\nv_bfe_u32 v6, v2, 3, 1\nv_lshl_add_u32 v29, v6, 8, v29\nv_lshlrev_b32 v30, 4, v3\nv_lshl_add_u32 v30, v8, 8, v30")
    a(f"v_and_b32 v10, 1, v3\nv_lshl_add_u32 v6, v10, 1, v6\nv_xor_b32 v6, s{sK}, v6\nv_bfe_u32 v9, v2, 2, 2\nv_lshl_add_u32 v9, v3, 3, v9\nv_lshlrev_b32 v9, 7, v9\nv_lshl_add_u32 v9, v6, 5, v9\nv_and_b32 v6, 3, v2\nv_lshl_add_u32 v9, v6, 3, v9")
    c(f"s{sLOC} = 1 when all 32 team members are on this XCD")
    a(f"s_waitcnt vmcnt(0)\nv_cmp_ne_u32 vcc, s{sXV}, v11\ns_cmp_eq_u64 vcc, 0\ns_cselect_b32 s{sLOC}, 1, 0")
    a(f"s_cmp_eq_u32 s{sW}, 5\ns_cbranch_scc1 L_bal\ns_cmp_lg_u32 s{sW}, 4\ns_cbranch_scc1 L_nogat")
    def pwait(lb,val,sl):
        a(f"s_mov_b32 s{sSP}, {SPIN}\nL_{lb}:\ns_sleep {sl}")
        a(f"ds_read_b64 v[48:49], v28 offset:{L_TS}\ns_sub_u32 s{sSP}, s{sSP}, 1\ns_cbranch_scc1 L_{lb}go\ns_waitcnt lgkmcnt(0)\nv_cmp_gt_i32 vcc, {val}, v49\ns_cbranch_vccnz L_{lb}\nL_{lb}go:")
    c("---- wave 4: workgroup (max, sum) after the K phase, exchanged inside (b,h) -> factor exp2(wave max - M)/L per wave")
    a(f"v_and_b32 v16, 12, v2\ns_mov_b32 s{sSP}, {SPIN}")
    a(f"L_c1:\ns_sleep 8\nds_read_b32 v17, v16 offset:{L_DN}\ns_sub_u32 s{sSP}, s{sSP}, 1\ns_cbranch_scc1 L_c1go\ns_waitcnt lgkmcnt(0)\nv_cmp_eq_u32 vcc, -1, v17\ns_cbranch_vccnz L_c1\nL_c1go:")
    a(f"ds_read_b32 v17, v16 offset:{L_ML}")
    for i in range(4): a(f"ds_read_b128 v[{32+4*i}:{35+4*i}], v27 offset:{L_P+i*1024}")
    a(f"s_mul_i32 s{sT}, s2, {XST}\ns_add_u32 s{sT}, s{sT}, {WS_X}\nv_add_u32 v18, s{sT}, v27")
    a("s_waitcnt lgkmcnt(0)")
    a(f"v_max_f32_dpp v56, v17, v17 row_ror:4 {DPM}\nv_add_f32 v32, v32, v33\nv_add_f32 v34, v34, v35")
    a(f"v_max_f32_dpp v56, v56, v56 row_ror:8 {DPM}\nv_and_b32 v56, s{sAT}, v56\nv_sub_f32 v19, v17, v56\nv_exp_f32 v19, v19")
    for r in range(36,48): a(f"v_add_f32 v{32+2*(r&1)}, v{32+2*(r&1)}, v{r}")
    a("v_add_f32 v32, v32, v34\nv_mul_f32 v57, v32, v19")
    for d in DP4: a(f"s_nop 1\nv_add_f32_dpp v57, v57, v57 {d} {DPM}")
    a("v_mov_b32 v58, v57\ns_nop 1\nv_permlane16_swap_b32 v57, v58\nv_add_f32 v57, v57, v58\nv_mov_b32 v58, v57\ns_nop 1\nv_permlane32_swap_b32 v57, v58\nv_add_f32 v57, v57, v58")
    a(f"v_or_b32 v56, v56, v15\nv_bfi_b32 v57, s{sC}, v15, v57\nv_mov_b32 v58, s{sE}\nv_mov_b32 v59, s{sE}")
    a("s_mov_b64 exec, 0xff" if mlfull else "s_mov_b64 exec, 1")
    a(f"s_cmp_eq_u32 s{sLOC}, 0\ns_cbranch_scc1 L_mrem\nglobal_store_dwordx4 v18, v[56:59], s[18:19]\ns_branch L_mdone\nL_mrem:")
    a("global_store_dwordx4 v18, v[56:59], s[18:19] sc1\nL_mdone:\ns_mov_b64 exec, -1")
    a(f"s_and_b32 s{sT}, s2, 31\ns_mul_i32 s{sT}, s{sT}, {XST}\ns_add_u32 s{sT}, s{sT}, {WS_X}\nv_mul_u32_u24 v18, {32*XST}, v7\nv_add_u32 v18, s{sT}, v18")
    pwait("c2",17+GD,8)
    a(f"s_mov_b32 s{sSP}, {SPIN}\ns_branch L_xp1")
    a("L_xp:\ns_sleep 32\nL_xp1:")
    a("global_load_dwordx4 v[56:59], v18, s[18:19] sc1")
    a(f"s_sub_u32 s{sSP}, s{sSP}, 1\ns_cbranch_scc1 L_xgo\ns_waitcnt vmcnt(0)")
    a(f"v_xor_b32 v56, s{sTAG}, v56\nv_xor_b32 v57, s{sTAG}, v57\nv_xor_b32 v59, s{sE}, v59\nv_or_b32 v31, v56, v57")
    a(f"v_and_or_b32 v31, v31, s{sC}, v59\nv_cmp_ne_u32 vcc, 0, v31\ns_cbranch_vccnz L_xp\nL_xgo:")
    a(f"v_max_f32_dpp v32, v56, v56 {DP4[0]} {DPM}\ns_nop 1\nv_max_f32_dpp v32, v32, v32 {DP4[1]} {DPM}\ns_nop 1\nv_max_f32_dpp v32, v32, v32 {DP4[2]} {DPM}")
    a("v_sub_f32 v56, v56, v32\nv_sub_f32 v17, v17, v32\nv_exp_f32 v56, v56\nv_exp_f32 v17, v17\nv_mul_f32 v33, v56, v57")
    for d in DP4[:3]: a(f"s_nop 1\nv_add_f32_dpp v33, v33, v33 {d} {DPM}")
    a(f"v_rcp_f32 v33, v33\ns_nop 0\nv_mul_f32 v17, v17, v33\nds_write_b32 v16, v17 offset:{L_F}")
    a("s_branch L_nogat")
    sN=sTK; sPM=sH
    c(f"---- wave 5: mean progress mark of workgroups 0..63 at chunks {', '.join(str(n1+P*i) for i in range(NC))} -> reference line (offset, slope)")
    a("L_bal:")
    a(f"s_mul_i32 s{sT}, s2, {XST}\ns_add_u32 s{sT}, s{sT}, {WS_T}\nv_lshl_add_u32 v18, v4, 3, s{sT}\nv_and_b32 v19, {NS-1}, v2\nv_mul_u32_u24 v19, {XST}, v19\nv_add_u32 v19, {WS_T}, v19")
    a(f"s_mov_b32 s{sN}, {n1}\ns_mov_b32 s{sTV}, {int(tau0*16)}\nv_mov_b32 v51, s{sE}\ns_mov_b32 s{sPM}, 0")
    if tpre:
        a(f"s_cmp_ge_u32 s2, {NS}\ns_cbranch_scc1 L_pc0\nv_min_u32 v52, {NC-1}, v2\nv_lshl_add_u32 v52, v52, 14, v18\nglobal_load_dword v53, v52, s[18:19]")
    a("L_pc0:")
    pwait("p1",f"s{sN}",4)
    a(f"v_subrev_u32 v49, s{sN}, v49\nv_mul_u32_u24 v49, {int(tau0)}, v49\nv_sub_u32 v50, v48, v49")
    a(f"s_cmp_ge_u32 s2, {NS}\ns_cbranch_scc1 L_pc1\ns_mov_b64 exec, {'0xffff' if full else 1}\nglobal_store_dwordx2 v18, v[50:51], s[18:19] sc1\ns_mov_b64 exec, -1\nL_pc1:")
    a(f"s_add_u32 s{sT}, s{sN}, {D}")
    pwait("p2",f"s{sT}",4)
    a(f"s_mov_b32 s{sSP}, {SPIN}\ns_branch L_pp1\nL_pp:\ns_sleep 32\nL_pp1:")
    a("global_load_dwordx2 v[52:53], v19, s[18:19] sc1")
    a(f"s_sub_u32 s{sSP}, s{sSP}, 1\ns_cbranch_scc1 L_ppgo\ns_waitcnt vmcnt(0)\nv_cmp_ne_u32 vcc, s{sE}, v53\ns_and_b64 exec, exec, vcc\ns_cbranch_scc1 L_pp\nL_ppgo:\ns_mov_b64 exec, -1")
    a(f"v_sub_u32 v52, v52, v50\nv_add_u32 v18, {64*XST}, v18\nv_add_u32 v19, {64*XST}, v19")
    for d in DP4: a(f"v_add_u32_dpp v52, v52, v52 {d} {DPM}\ns_nop 1")
    a(f"v_readlane_b32 s{sT}, v52, 0\nv_readlane_b32 s{sT2}, v52, 16\nv_readlane_b32 s{sREF}, v52, 32\nv_readlane_b32 s{sTAU}, v52, 48\nv_readfirstlane_b32 s{sXV}, v50")
    a(f"s_add_u32 s{sT}, s{sT}, s{sT2}\ns_add_u32 s{sREF}, s{sREF}, s{sTAU}\ns_add_u32 s{sT}, s{sT}, s{sREF}\ns_ashr_i32 s{sT}, s{sT}, 6\ns_add_u32 s{sT}, s{sT}, s{sXV}")
    a(f"s_sub_u32 s{sT2}, s{sT}, s{sPM}\ns_mul_i32 s{sT2}, s{sT2}, {int(16*256/P)}\ns_lshr_b32 s{sT2}, s{sT2}, 8\ns_max_u32 s{sT2}, s{sT2}, {int(tau0*16)}\ns_cmp_eq_u32 s{sN}, {n1}\ns_cselect_b32 s{sTV}, s{sTV}, s{sT2}\ns_mov_b32 s{sPM}, s{sT}")
    a(f"s_mul_i32 s{sT2}, s{sN}, s{sTV}\ns_lshr_b32 s{sT2}, s{sT2}, 4\ns_sub_u32 s{sT}, s{sT}, s{sT2}\ns_add_u32 s{sT}, s{sT}, {a0}\nv_mov_b32 v52, s{sT}\nv_mov_b32 v53, s{sTV}\nds_write_b64 v28, v[52:53] offset:{L_REF}")
    a(f"s_add_u32 s{sN}, s{sN}, {P}\ns_cmp_lt_u32 s{sN}, {n1+P*NC}\ns_cbranch_scc1 L_pc0")
    c("every workgroup has read the tag word by now (the marks cover all heads): advance it for the next launch")
    a(f"s_cmp_lg_u32 s2, 255\ns_cbranch_scc1 L_nogat\nglobal_store_dword v28, v51, s[18:19] sc1")
    c("---- all four: pick up the per-wave factors, wait for the streaming waves")
    a("L_nogat:")
    a(f"s_mov_b32 s{sSP}, {SPIN}\ns_branch L_f1\nL_f0:\ns_sleep 8\nL_f1:\nds_read_b128 v[44:47], v28 offset:{L_F}\ns_sub_u32 s{sSP}, s{sSP}, 1\ns_cbranch_scc1 L_fgo\ns_waitcnt lgkmcnt(0)\nv_cmp_eq_u32 vcc, -1, v44\ns_cbranch_vccnz L_f0\nL_fgo:")
    if "l" in opre: a("global_load_dword v11, v22, s[18:19]")
    if "w" in opre: a(f"s_cmp_eq_u32 s{sLOC}, 0\ns_cbranch_scc1 L_npw\nv_xor_b32 v11, 1, v15\nglobal_store_dword v22, v11, s[18:19]\nL_npw:")
    a(f"s_mov_b32 s{sSP}, {SPIN}\ns_cmp_lg_u32 s{sLOC}, 0")
    a("s_waitcnt vmcnt(0) lgkmcnt(0)\ns_barrier\nL_tail0:")
    a("ds_read2st64_b32 v[32:33], v21 offset0:0 offset1:4\nds_read2st64_b32 v[34:35], v21 offset0:8 offset1:12")
    a("s_waitcnt lgkmcnt(0)")
    a(f"v_pk_mul_f32 v[32:33], v[32:33], v[44:45]\nv_pk_fma_f32 v[32:33], v[34:35], v[46:47], v[32:33]\nv_add_f32 v32, v32, v33\nv_bfi_b32 v32, s{sC}, v15, v32")
    a("s_cbranch_scc0 L_orem\nglobal_store_dword v22, v32, s[18:19]\nL_odone:")
    a(f"s_cmp_ge_u32 s{sI}, 28\ns_cbranch_scc1 L_final")
    c("---- projection workgroups: sum 8 partial o per batch, bf16, times the wo tile")
    a("global_load_dwordx4 v[36:39], v20, s[18:19] sc1\nglobal_load_dwordx4 v[40:43], v25, s[18:19] sc1")
    for kp in range(4):
        for j in range(2):
            r=WO+kp*4+j*2
            a(f"ds_read_b64_tr_b16 v[{r}:{r+1}], v9 offset:{L_WO+kp*4096+j*512}")
    a("s_branch L_h1a")
    a("L_h1poll:")
    a("global_load_dwordx4 v[36:39], v20, s[18:19] sc1\nglobal_load_dwordx4 v[40:43], v25, s[18:19] sc1")
    a(f"s_sub_u32 s{sSP}, s{sSP}, 1\ns_cbranch_scc1 L_h1go")
    a("L_h1a:\ns_waitcnt vmcnt(0)")
    for r in range(36,44): a(f"v_xor_b32 v{r}, s{sTAG}, v{r}")
    a(f"v_or3_b32 v31, v36, v37, v38\nv_or3_b32 v32, v39, v40, v41\nv_or3_b32 v31, v31, v42, v43\nv_or_b32 v31, v31, v32\nv_and_b32 v31, s{sC}, v31")
    a("v_cmp_ne_u32 vcc, 0, v31\ns_and_b64 exec, exec, vcc\ns_cbranch_scc1 L_h1poll\nL_h1go:\ns_mov_b64 exec, -1")
    a("v_permlane32_swap_b32 v36, v38\nv_permlane32_swap_b32 v37, v39\nv_permlane32_swap_b32 v40, v42\nv_permlane32_swap_b32 v41, v43")
    a("v_add_f32 v36, v36, v38\nv_add_f32 v37, v37, v39\nv_add_f32 v40, v40, v42\nv_add_f32 v41, v41, v43")
    a("v_permlane16_swap_b32 v36, v37\nv_add_f32 v36, v36, v37\nv_permlane16_swap_b32 v40, v41\nv_add_f32 v40, v40, v41")
    a("v_add_f32_dpp v37, v36, v36 row_ror:8 row_mask:0xf bank_mask:0x3\ns_nop 1\nv_add_f32_dpp v37, v40, v40 row_ror:8 row_mask:0xf bank_mask:0xc\nv_cvt_pk_bf16_f32 v37, v37, v37")
    a(f"ds_write_b16 v29, v37 offset:{L_OB}\ns_waitcnt lgkmcnt(0)\ns_barrier")
    for kp in range(4): a(f"ds_read_b128 v[{40+4*kp}:{43+4*kp}], v30 offset:{L_OB+kp*64}")
    for kp in range(4):
        a(f"s_waitcnt lgkmcnt({3-kp})")
        cc="0" if kp==0 else "v[56:59]"
        a(f"v_mfma_f32_16x16x32_bf16 v[56:59], v[{40+4*kp}:{43+4*kp}], v[{WO+kp*4}:{WO+kp*4+3}], {cc}")
    a(f"s_mov_b32 exec_hi, 0\ns_nop 6")
    a(f"v_mov_b32_dpp v56, v57 quad_perm:[0,1,2,3] row_mask:0x2 bank_mask:0xf\nv_bfi_b32 v56, s{sC}, v15, v56")
    a("global_store_dword v23, v56, s[18:19] sc1\nglobal_store_dword v12, v13, s[18:19]\ns_endpgm")
    c("---- reducer workgroups: 32 partials x 8 outputs per wave; first read once the own team is through")
    a("L_final:")
    a(f"s_cmp_eq_u32 s{sX}, 7\ns_cbranch_scc1 L_end\ns_cmp_eq_u32 s{sLOC}, 0\ns_cbranch_scc1 L_h2poll")
    a(f"L_g2:\nglobal_load_dword v32, v14, s[18:19] sc1\ns_sub_u32 s{sSP}, s{sSP}, 1\ns_cbranch_scc1 L_h2go\ns_waitcnt vmcnt(0)\nv_cmp_ne_u32 vcc, s{sE}, v32\ns_cbranch_vccnz L_g2")
    a("L_h2poll:\nglobal_load_dwordx4 v[32:35], v24, s[18:19] sc1")
    a(f"s_sub_u32 s{sSP}, s{sSP}, 1\ns_cbranch_scc1 L_h2go\ns_waitcnt vmcnt(0)")
    for r in range(4): a(f"v_xor_b32 v{32+r}, s{sTAG}, v{32+r}")
    a(f"v_or3_b32 v31, v32, v33, v34\nv_or_b32 v31, v31, v35\nv_and_b32 v31, s{sC}, v31")
    a("v_cmp_ne_u32 vcc, 0, v31\ns_and_b64 exec, exec, vcc\ns_cbranch_scc1 L_h2poll\nL_h2go:\ns_mov_b64 exec, -1")
    a("v_permlane32_swap_b32 v32, v34\nv_permlane32_swap_b32 v33, v35")
    a("v_add_f32 v32, v32, v34\nv_add_f32 v33, v33, v35")
    a("s_nop 1\nv_permlane16_swap_b32 v32, v33\nv_add_f32 v32, v32, v33")
    for d in ("row_ror:8","row_ror:4","row_ror:2"): a(f"s_nop 1\nv_add_f32_dpp v32, v32, v32 {d} {DPM}")
    a("s_mov_b32 exec_lo, 0x00030003\ns_mov_b32 exec_hi, 0x00030003")
    a("v_cvt_pk_bf16_f32 v32, v32, v32\nglobal_store_short v26, v32, s[14:15]")
    a("L_end:\ns_endpgm")
    a("L_orem:\nglobal_store_dword v22, v32, s[18:19] sc1\nL_last:\ns_branch L_odone")
    a(f""".section .rodata,"a"
.p2align 6
.amdhsa_kernel {MAIN}
  .amdhsa_next_free_vgpr {NV}
  .amdhsa_next_free_sgpr 56
  .amdhsa_accum_offset {(NV+3)//4*4}
  .amdhsa_group_segment_fixed_size 0
  .amdhsa_kernarg_size 64
  .amdhsa_user_sgpr_count 2
  .amdhsa_user_sgpr_kernarg_segment_ptr 1
  .amdhsa_system_sgpr_workgroup_id_x 1
.end_amdhsa_kernel""")
    if pad:
        out=[]; on=False; acc=0; n=0; prev=""
        def sz(l):
            if l.endswith(":") or not l or l.startswith(";"): return 0
            op=l.split()[0]
            if op.startswith(("global_","ds_","v_mfma","v_max3","v_fma","v_cvt_pk","v_lshl_add","s_memreal","v_pk","v_bfi","v_or3")) or "dpp" in op or "0x" in l: return 8
            return 4
        for l in o:
            if l in ("L_kloop:","L_tail0:"): on=True; acc=pad
            if l in ("L_helper:","L_end:"): on=False
            if on and acc>=pad and sz(l) and "exec, exec, vcc" not in prev and l!="s_mov_b64 exec, -1":
                out += [f"L_pad{n}:", f"s_cbranch_execz L_pad{n+1}"]; n+=1; acc=4
            out.append(l); acc+=sz(l)
            if sz(l): prev=l
        o=[l.replace("@PADEND@",f"L_pad{n}:") for l in out]
    txt=[]
    incode=False
    for l in o:
        if l==MAIN+":": incode=True
        if l.startswith(".section"): incode=False
        txt.append(("    "+l) if incode and not l.endswith(":") else l)
    open(name,"w").write("\n".join(txt)+"\n")
    return build(name)
if __name__=="__main__":
    hdr=open("standalone__mha_block_cached__decode.s.ref").read().split("; Override")[0]
    print(gen("final.s",hdr=hdr))
```

```python
import sys
from asm import build
MAIN="standalone__mha_block_cached__decode_kernel"
C_SCALE=0x3db8aa3b
TAGM=0x3ff
WS_XI=0x1000; WS_X=0x10000; WS_T=0x20000; WS_QP=0x40000; WS_OP=0x80000; WS_Y=0xC0000; XST=256
L_F=0; L_DN=16; L_TS=32; L_QF=64; L_REF=264; L_E=276; L_ML=288; L_Q=512; L_OB=1024; L_O=2048; L_P=6144
L_WQ=L_P+4096; L_WO=L_WQ+14336; LDS_SZ=L_WO+16384
SPIN=1<<19
DPM="row_mask:0xf bank_mask:0xf"
DP4=["quad_perm:[1,0,3,2]","quad_perm:[2,3,0,1]","row_half_mirror","row_mirror"]

DOC = r"""
; ---------------------------------------------------------------------------------------------
; One persistent launch, 256 workgroups (one per CU) of 8 waves.
;   wg -> team x = wg&7, head h = 2x + bit3, batch b = bit4, split s = wg>>5
;   The workgroup owns 16 chunks of 64 keys of (b,h): chunk k covers keys (s + 8k)*64 ...
; Waves 0-3 stream: the weight tiles (-> LDS), all K chunks (scores -> LDS), then all V chunks (MFMA with
;   p = exp2(c*(score - wave max)); the true softmax max / sum are applied when the waves are merged).
; Wave 4: q = x @ wq (a 112x64 slice per workgroup, exchanged through d_ws), later the
;   (max, sum) exchange of the 8 workgroups of (b,h).
; Wave 5: load balancing.  HBM is saturated with 5 loads in flight per wave; a wave that is
;   behind the chip-wide mean progress keeps 6 or 7 in flight so that all CUs finish together.
;   The clock is only read to compare progress; nothing waits on it and no result depends on it.
; Waves 4-7 tail: merge o, exchange it inside the team, multiply by a 128x64 tile of wo,
;   hand the partial outputs to 28 reducer workgroups which write d_out.
; Hand-offs through d_ws carry a per-launch tag (d_ws word 0 + 1) so that leftovers of an earlier
;   launch are never taken for data; stores are write-through (sc1) unless every team member
;   reported the same XCC id, in which case the shared L2 is enough.
; All polling loops are bounded; s_sleep only appears as their back-off.
; ---------------------------------------------------------------------------------------------
""".strip("\n")

def gen(name, U=4, lv=(5,6,7), th=(0,30), a0=10, tau0=107.6, n1=5, P=8, NC=3, D=2, GD=5, qe=12, qback=16, pad=250, unr=False, w7early=True, tpre=False, full=True, NS=64, opre="skvqxy", mlfull=True, ww=7, qs=0, reord=True, msk=True, late=True, lead=None, lk0=9, lk1=15, leadv=False, hdr=""):
    o=[]
    def a(s): o.extend(s.split("\n"))
    def c(s): o.append("; "+s)
    fk=lv[0]
    a(hdr+f"; @launch grid=(256,1,1) block=(512,1,1) lds={LDS_SZ}")
    a('.amdgcn_target "amdgcn-amd-amdhsa--gfx950"')
    a(DOC)
    a(f".text\n.globl {MAIN}\n.p2align 8\n.type {MAIN},@function\n{MAIN}:")
    sW=20; sBH=21; sS=22; sX=23; sTK=24; sK=25; sC=26; sT=27; sT2=28; sAT=29; sLOC=30; sXV=31; sTAG=32; sE=33; sI=34; sTV=35; sSP=36; sH=37; sB=38
    sA=40; sNOW=42; sEX=44; sIDX=46; sREF=48; sTAU=49; sLV=50
    a("s_cmp_ge_u32 s2, 256\ns_cbranch_scc1 L_end")
    c("s[4:5]=x s[6:7]=K s[8:9]=V s[10:11]=wq s[12:13]=wo s[14:15]=out s[16:17]=dbg s[18:19]=ws")
    a("s_load_dwordx16 s[4:19], s[0:1], 0")
    a(f"s_memrealtime s[{sNOW}:{sNOW+1}]")
    c("v1 = wave, v2 = lane, v3 = lane>>4, v4 = lane&15")
    a("v_lshrrev_b32 v1, 6, v0\nv_and_b32 v2, 63, v0")
    a(f"v_readfirstlane_b32 s{sW}, v1")
    a("v_lshrrev_b32 v3, 4, v2\nv_and_b32 v4, 15, v2")
    a(f"s_and_b32 s{sX}, s2, 7\ns_bfe_u32 s{sT}, s2, 0x10003\ns_lshl1_add_u32 s{sH}, s{sX}, s{sT}\ns_and_b32 s{sT}, s2, 16\ns_or_b32 s{sBH}, s{sH}, s{sT}\ns_lshr_b32 s{sS}, s2, 5")
    a(f"s_cmp_ge_u32 s{sW}, 4\ns_cbranch_scc1 L_helper")
    c("================= streaming waves 0-3 =================")
    Q=8; MK=16; PB=20; ACC=28; S=36; M=40; T=41; VP=45; VZ=46; VONE=0; VL=48; VTS=7; VR=52; VO=Q+3
    RB=54; NV=RB+U*32
    def kaddr():
        c("a 32KB chunk is read as 4 groups x 4 waves x 2KB (4 keys); lane = (key lane>>4, 16B piece lane&15), two halves per key")
        a(f"v_lshlrev_b32 v5, 9, v3\nv_lshl_add_u32 v5, v4, 4, v5")
        a(f"s_add_u32 s{sT2}, s{sBH}, s{sS}\ns_add_u32 s{sT2}, s{sT2}, s{sW}\ns_lshl_b32 s{sT2}, s{sT2}, 11")
        for g in range(4):
            a(f"s_and_b32 s{sT2}, s{sT2}, 0x7fff\nv_add_u32 v{VL+g}, s{sT2}, v5")
            if g<3: a(f"s_add_u32 s{sT2}, s{sT2}, 0x2000")
        a(f"s_lshl_b32 s{sT}, s{sBH}, 7\ns_add_u32 s{sT}, s{sT}, s{sS}\ns_lshl_b32 s{sT}, s{sT}, 15")
    if not reord: kaddr()
    c("weights go first: wq slice rows 112*rq + 8t.. (t = wave + 4j), wo tile rows (4x + (i&3))*128 + 32*wave + 8j..")
    a(f"s_lshr_b32 s{sB}, s{sBH}, 4\ns_lshr_b32 s{sT2}, s{sS}, 2\ns_lshl1_add_u32 s{sT2}, s{sB}, s{sT2}\ns_mul_i32 s{sT2}, s{sT2}, 112\ns_lshl3_add_u32 s{sT2}, s{sW}, s{sT2}")
    a(f"v_lshrrev_b32 v8, 3, v2\nv_and_b32 v9, 7, v2\nv_add_u32 v10, s{sT2}, v8\nv_lshlrev_b32 v10, 13, v10\nv_lshl_add_u32 v10, v9, 4, v10")
    a(f"s_and_b32 s{sT2}, s{sS}, 3\ns_lshl2_add_u32 s{sT2}, s{sH}, s{sT2}\ns_lshl_b32 s{sT2}, s{sT2}, 7\nv_add_u32 v10, s{sT2}, v10")
    def waddr():
        a(f"s_bfe_u32 s{sT2}, s2, 0x20003\ns_lshl2_add_u32 s{sT2}, s{sX}, s{sT2}\ns_lshl2_add_u32 s{sT2}, s{sT2}, s{sW}\ns_lshl_b32 s{sT2}, s{sT2}, 5")
        a(f"v_add_u32 v8, s{sT2}, v8\nv_mul_u32_u24 v8, 896, v8\ns_min_u32 s{sT2}, s{sS}, 6\ns_lshl_b32 s{sT2}, s{sT2}, 7\nv_add_u32 v8, s{sT2}, v8")
        a(f"v_and_b32 v11, 1, v3\nv_lshlrev_b32 v11, 1, v11\nv_xor_b32 v11, v11, v9\nv_lshl_add_u32 v11, v11, 4, v8")
        if msk: a(f"s_cmp_eq_u32 s{sS}, 7\ns_cselect_b64 s[{sA}:{sA+1}], 0xff, -1")
    if not reord: waddr()
    a(f"s_lshl_b32 s{sTK}, s{sW}, 10\ns_add_u32 m0, s{sTK}, {L_WQ}\ns_lshl_b32 s{sI}, s{sW}, 12")
    def ld(slot,g,e):
        r=RB+slot*32+g*8+4*e
        a(f"global_load_dwordx4 v[{r}:{r+3}], v{VL+g}, s[6:7]{' offset:256' if e else ''} nt")
    def nextchunk(): a("s_add_u32 s6, s6, 0x40000\ns_addc_u32 s7, s7, 0")
    a("s_waitcnt lgkmcnt(0)")
    def init():
        c("LDS flags = -1, progress reference = 'far ahead', MFMA selector masks, accumulators")
        a(f"v_mov_b32 v{T}, -1\nv_lshlrev_b32 v6, 2, v2\nds_write_b32 v6, v{T} offset:{L_F}\nv_mov_b32 v{VR}, s{sNOW}\nv_mov_b32 v{VR+1}, 0x100000\nv_mov_b32 v{VZ}, 0\nds_write_b64 v{VZ}, v[{VR}:{VR+1}] offset:{L_REF}")
        a(f"s_add_u32 s8, s8, s{sT}\ns_addc_u32 s9, s9, 0")
        a(f"v_and_b32 v{T}, 1, v2\nv_lshlrev_b32 v{T}, 4, v{T}\nv_mov_b32 v{T+1}, 0xffff\nv_lshlrev_b32 v{T}, v{T}, v{T+1}\nv_bfe_u32 v{T+1}, v2, 1, 2")
        for k in range(4): a(f"v_cmp_eq_u32 vcc, {k}, v{T+1}\nv_mov_b32 v{ACC+2*k}, 0\nv_mov_b32 v{ACC+2*k+1}, 0\nv_cndmask_b32 v{MK+k}, 0, v{T}, vcc")
        a(f"s_mov_b32 s{sC}, {hex(C_SCALE)}\nv_mov_b32 v{M}, 0xff7fffff")
        a(f"s_mov_b32 s{sK}, {U}\nv_lshlrev_b32 v5, 4, v4")
        a(f"s_mov_b32 s{sLV}, 0\nv_mov_b32 v{VONE}, 1")
        a(f"v_lshlrev_b32 v{VTS}, 3, v1\ns_mov_b32 s{sEX}, 0x10001\ns_mov_b32 s{sEX+1}, 0x10001")
        a(f"s_mov_b32 s{sIDX}, 0\ns_movk_i32 s{sIDX+1}, 256")
        a(f"v_lshlrev_b32 v{VP}, 6, v1\nv_lshl_add_u32 v{VP}, v3, 4, v{VP}")
        a(f"s_add_u32 s6, s6, s{sT}\ns_addc_u32 s7, s7, 0\ns_mov_b32 s{sSP}, {SPIN}")
    for j in range(4):
        if j==3: a(f"s_cmp_ge_u32 s{sW}, 2\ns_cbranch_scc1 L_nq3")
        if j: a(f"s_add_u32 m0, s{sTK}, {L_WQ+j*4096}\nv_add_u32 v10, 0x40000, v10")
        a("global_load_lds_dwordx4 v10, s[10:11] nt")
    a("L_nq3:")
    if reord: waddr()
    for j in range(4):
        if 4+j==min(ww,7):
            if reord: kaddr()
            init()
        a(f"s_add_u32 m0, s{sI}, {L_WO+j*1024}")
        if j: a(f"v_xor_b32 v11, 64, v11\nv_add_u32 v11, {8*896}, v11")
        if 4+j>=ww: a(f"s_waitcnt vmcnt({ww-1})")
        elif not j: a("s_nop 0")
        if msk: a(f"s_mov_b64 exec, s[{sA}:{sA+1}]")
        a("global_load_lds_dwordx4 v11, s[12:13] nt")
        if msk: a("s_mov_b64 exec, -1")
    c(f"prefetch {U} K chunks while q is being produced")
    n=0
    for u in range(U):
        for g in range(4):
            for e in range(2):
                a(f"s_waitcnt vmcnt({fk-1})")
                ld(u,g,e); n+=1
                if n==1:
                    c("the wq slice has landed and the LDS flags are set: release waves 4-7")
                    a("s_waitcnt lgkmcnt(0)\ns_barrier")
        nextchunk()
    c("pick up q (bf16) once wave 4 has raised the flag")
    a(f"L_qw:\nds_read_b32 v{T}, v{VZ} offset:{L_QF}")
    a(f"ds_read_b128 v[{Q}:{Q+3}], v5 offset:{L_Q}\nds_read_b128 v[{Q+4}:{Q+7}], v5 offset:{L_Q+256}")
    a(f"s_sub_u32 s{sSP}, s{sSP}, 1\ns_cbranch_scc1 L_kloop\ns_waitcnt lgkmcnt(0)\nv_cmp_eq_u32 vcc, -1, v{T}\ns_cbranch_vccnz L_qw")
    def lw(lb):
        for i in range(len(lv)-1,-1,-1):
            a(f"s_waitcnt vmcnt({lv[i]-1})")
            if i: a(f"s_cmp_ge_i32 s{sLV}, {i}\ns_cbranch_scc1 L_o{lb}")
        if lead is not None and (lb.startswith("k") or leadv):
            a(f"s_cmp_ge_i32 s{sLV}, 0\ns_cbranch_scc1 L_o{lb}\ns_waitcnt vmcnt({lv[0]-2})")
        a(f"L_o{lb}:")
    def mark():
        a(f"s_memrealtime s[{sNOW}:{sNOW+1}]\nds_read_b64 v[{VR}:{VR+1}], v{VZ} offset:{L_REF}")
    def level():
        c("report progress; number of loads kept in flight for the next chunk from the lag behind the mean")
        a(f"v_readfirstlane_b32 s{sREF}, v{VR}\nv_readfirstlane_b32 s{sTAU}, v{VR+1}\nv_mov_b32 v{VR}, s{sNOW}\nv_mov_b32 v{VR+1}, s{sK}\nds_write_b64 v{VTS}, v[{VR}:{VR+1}] offset:{L_TS}")
        a(f"s_sub_u32 s{sT}, s{sNOW}, s{sREF}\ns_lshl_b32 s{sT}, s{sT}, 4\ns_mul_i32 s{sT2}, s{sK}, s{sTAU}\ns_sub_u32 s{sT}, s{sT}, s{sT2}")
        for i,t in enumerate(th): a(f"s_cmp_gt_i32 s{sT}, {t*16}\ns_cselect_b32 s{sLV}, {i+1}, {'s%d'%sLV if i else 0}")
        if lead is not None:
            a(f"s_cmp_lt_i32 s{sT}, {lead*16}\ns_cselect_b32 s{sT}, -1, s{sLV}\ns_bitcmp1_b32 {hex(lmask)}, s{sK}\ns_cselect_b32 s{sLV}, s{sT}, s{sLV}")
    lmask=sum(1<<k for k in range(lk0,lk1))|(sum(1<<k for k in range(24,31)) if leadv else 0)
    def kbody(slot, loop):
        for g in range(4):
            r=RB+slot*32+g*8
            a(f"v_mov_b32 v{S+g}, 0")
            for e in range(2):
                for k in range(4*e,4*e+4): a(f"v_dot2c_f32_bf16 v{S+g}, v{r+k}, v{Q+k}")
                if loop:
                    if e==1 and g==3:
                        a("s_waitcnt lgkmcnt(0)"); level()
                    lw(f"k{slot}_{g}_{e}"); ld(slot,g,e)
            if loop and g==2: mark()
        for d in DP4:
            for g in range(4): a(f"v_add_f32_dpp v{S+g}, v{S+g}, v{S+g} {d} {DPM}")
        if loop: a(f"v_add_u32 v{T}, s{sIDX+slot}, v{VP}")
        a(f"v_max3_f32 v{M}, v{S}, v{S+1}, v{M}\nv_max3_f32 v{M}, v{S+2}, v{S+3}, v{M}")
        a(f"s_mov_b64 exec, s[{sEX}:{sEX+1}]")
        if loop: a(f"ds_write_b128 v{T}, v[{S}:{S+3}] offset:{L_P}")
        else: a(f"ds_write_b128 v{VP}, v[{S}:{S+3}] offset:{L_P+slot*256}")
        a("s_mov_b64 exec, -1")
    c(f"---- K phase: consume a chunk, refill its registers with chunk s{sK} (16,17 = first V chunks)")
    a("L_kloop:")
    for u in range(2):
        if u==0: a(f"s_cmp_eq_u32 s{sK}, 16\ns_cselect_b64 s[6:7], s[8:9], s[6:7]")
        kbody(u,True)
        nextchunk()
        a(f"s_lshl_b32 s{sIDX+u}, s{sK}, 8\ns_add_u32 s{sK}, s{sK}, 1")
        for x in range(2,U):
            if (x-1)%2==u: a(f"s_cmp_eq_u32 s{sK}, {U+x}\ns_cbranch_scc1 L_x{x}")
        a(f"L_xr{u}:")
    a(f"s_cmp_lt_u32 s{sK}, 18\ns_cbranch_scc1 L_kloop")
    def cvt():
        for g in range(4): a(f"v_cvt_pk_bf16_f32 v{S+g}, v{S+g}, v{S+g}")
    def ands(g,pb):
        for k in range(4): a(f"v_and_b32 v{pb+k}, v{S+g}, v{MK+k}")
    def mm1(slot,g,e,pb):
        r=RB+slot*32+g*8+4*e; d=ACC+4*e
        a(f"v_mfma_f32_16x16x32_bf16 v[{d}:{d+3}], v[{pb}:{pb+3}], v[{r}:{r+3}], v[{d}:{d+3}]")
    def mm(slot,g,pb): mm1(slot,g,0,pb); mm1(slot,g,1,pb)
    c("---- wave max over its 256 scores, scores -> exp2(c*(s - max)) in place")
    a(f"v_lshrrev_b32 v6, 2, v2\nv_lshlrev_b32 v6, 8, v6\nv_and_b32 v5, 3, v2\nv_lshl_add_u32 v6, v5, 4, v6\nv_lshl_add_u32 v6, v1, 6, v6")
    a(f"v_mov_b32 v{T}, v{M}\nds_read_b128 v[{S}:{S+3}], v6 offset:{L_P}\nv_lshlrev_b32 v5, 2, v1")
    a(f"v_permlane16_swap_b32 v{M}, v{T}\nv_max_f32 v{T+1}, v{M}, v{T}\nv_max_f32 v{T+2}, v{M}, v{T}\nv_lshrrev_b32 v{VO}, 1, v3\nv_lshlrev_b32 v{VO}, 9, v{VO}")
    a(f"v_permlane32_swap_b32 v{T+1}, v{T+2}\nv_max_f32 v{M}, v{T+1}, v{T+2}\nv_mul_f32 v{M}, s{sC}, v{M}")
    a(f"s_waitcnt lgkmcnt(0)\nds_write_b32 v5, v{M} offset:{L_ML}")
    for g in range(4): a(f"v_fma_f32 v{S+g}, v{S+g}, s{sC}, -v{M}")
    for g in range(4): a(f"v_exp_f32 v{S+g}, v{S+g}")
    a(f"s_nop 0\nds_write_b128 v6, v[{S}:{S+3}] offset:{L_P}\nds_read_b128 v[{S}:{S+3}], v{VP} offset:{L_P}")
    a(f"ds_write_b32 v5, v{VONE} offset:{L_DN}")
    a(f"v_lshl_add_u32 v{VO}, v4, 5, v{VO}\nv_and_b32 v5, 1, v3\nv_lshl_add_u32 v{VO}, v5, 4, v{VO}\nv_lshl_add_u32 v{VO}, v1, 10, v{VO}")
    a("s_waitcnt lgkmcnt(1)")
    cvt(); ands(0,PB)
    a("s_nop 1")
    c("---- V phase: D[e][n] += sum_key p[key]*delta(e,e') * V[key][8n+e']  (A = masked p, B = raw V registers)")
    a("L_vloop:")
    for u in range(2):
        for g in range(4):
            mm(u,g,PB+4*(g&1))
            lw(f"{u}_{g}_0"); ld(u,g,0)
            if g<3: ands(g+1,PB+4*((g+1)&1))
            else:
                a("s_waitcnt lgkmcnt(0)")
                cvt(); level(); ands(0,PB)
            lw(f"{u}_{g}_1"); ld(u,g,1)
            if g==2:
                mark()
                a(f"v_add_u32 v{VP}, 256, v{VP}\nds_read_b128 v[{S}:{S+3}], v{VP} offset:{L_P}")
        nextchunk()
        a(f"s_add_u32 s{sK}, s{sK}, 1")
    a(f"s_cmp_lt_u32 s{sK}, 32\ns_cbranch_scc1 L_vloop")
    c("---- last two chunks")
    for g in range(4):
        a(f"s_waitcnt vmcnt({14-2*g})")
        mm(0,g,PB+4*(g&1))
        if g<3: ands(g+1,PB+4*((g+1)&1))
        if g==2: a(f"ds_read_b128 v[{S}:{S+3}], v{VP} offset:{L_P+256}")
        if g<2: a("s_nop 0")
    a("s_waitcnt lgkmcnt(0)")
    cvt()
    for g in range(4): ands(g,RB+4*g)
    for g in range(3):
        a(f"s_waitcnt vmcnt({6-2*g})"); mm(1,g,RB+4*g)
    a("s_waitcnt vmcnt(1)"); mm1(1,3,0,RB+12)
    a("s_waitcnt vmcnt(0)"); mm1(1,3,1,RB+12)
    a("s_mov_b32 exec_hi, 0\ns_nop 4")
    a(f"ds_write_b128 v{VO}, v[{ACC}:{ACC+3}] offset:{L_O}")
    a("s_not_b64 exec, exec")
    a(f"ds_write_b128 v{VO}, v[{ACC+4}:{ACC+7}] offset:{L_O}")
    a("s_waitcnt lgkmcnt(0)\ns_barrier\ns_endpgm")
    for x in range(2,U):
        c(f"start-up chunk {x} (no refill)")
        a(f"L_x{x}:")
        kbody(x,False)
        a(f"s_branch L_xr{(x-1)%2}")
    c("================= waves 4-7 =================")
    a("L_helper:")
    a(f"s_lshr_b32 s{sI}, s2, 3\nv_lshrrev_b32 v5, 3, v2\nv_and_b32 v7, 7, v2")
    a(f"s_cmp_eq_u32 s{sW}, 4\ns_cbranch_scc1 L_isq\ns_cmp_eq_u32 s{sW}, 7\ns_cbranch_scc1 L_w7")
    a("s_barrier\ns_branch L_hwait")
    c("wave 7: pull this kernel's code into L2, then hop over it (EXEC=0, branches only) to fill the instruction cache")
    a("L_w7:")
    a(f"s_getpc_b64 s[{sA}:{sA+1}]\nL_pc:\ns_sub_u32 s{sA}, s{sA}, L_pc-{MAIN}\ns_subb_u32 s{sA+1}, s{sA+1}, 0\nv_lshlrev_b32 v6, 6, v2")
    if not w7early: a("s_barrier")
    a(f"global_load_dword v10, v6, s[{sA}:{sA+1}]\nv_add_u32 v6, 0x1000, v6\nv_min_u32 v9, L_last-{MAIN}, v6\nglobal_load_dword v10, v9, s[{sA}:{sA+1}]")
    a(f"v_add_u32 v6, 0x1000, v6\nv_min_u32 v9, L_last-{MAIN}, v6\nglobal_load_dword v10, v9, s[{sA}:{sA+1}]")
    if "s" in opre:
        c("touch the d_ws lines this workgroup hands data over in and the K/V pages, before HBM is busy (values unused)")
        a(f"s_lshl3_add_u32 s{sT2}, s{sBH}, s{sS}\ns_lshl_b32 s{sT2}, s{sT2}, 10\ns_add_u32 s{sT2}, s{sT2}, {WS_OP}\nv_lshl_add_u32 v9, v2, 4, s{sT2}\ns_waitcnt lgkmcnt(0)\nglobal_load_dword v10, v9, s[18:19]")
    if "k" in opre or "v" in opre:
        a(f"s_lshl_b32 s{sT}, s{sBH}, 22\nv_and_b32 v9, 1, v2\nv_lshlrev_b32 v9, 21, v9\nv_add_u32 v9, s{sT}, v9")
        if "k" in opre: a("global_load_dword v10, v9, s[6:7] nt")
        if "v" in opre: a("global_load_dword v10, v9, s[8:9] nt")
    if "q" in opre:
        a(f"s_lshr_b32 s{sB}, s{sBH}, 4\ns_lshl3_add_u32 s{sT2}, s{sB}, s{sS}\ns_lshl_b32 s{sT2}, s{sT2}, 8\ns_lshl_b32 s{sT}, s{sH}, 13\ns_add_u32 s{sT2}, s{sT2}, s{sT}\ns_add_u32 s{sT2}, s{sT2}, {WS_QP}")
        a(f"v_lshrrev_b32 v9, 5, v2\nv_lshlrev_b32 v9, 12, v9\nv_lshl_add_u32 v9, v4, 4, v9\nv_add_u32 v9, s{sT2}, v9\nglobal_load_dword v10, v9, s[18:19]")
    if "x" in opre:
        a(f"s_lshl_b32 s{sT}, s{sX}, 8\ns_add_u32 s{sT}, s{sT}, {WS_XI}\nv_lshl_add_u32 v9, v2, 2, s{sT}\nglobal_load_dword v10, v9, s[18:19]")
    if "y" in opre:
        a(f"s_and_b32 s{sT}, s{sI}, 3\ns_lshl2_add_u32 s{sT}, s{sX}, s{sT}\ns_lshl_b32 s{sT2}, s{sS}, 7\ns_add_u32 s{sT}, s{sT}, s{sT2}\ns_lshl_b32 s{sT}, s{sT}, 7\ns_add_u32 s{sT}, s{sT}, {WS_Y}")
        a(f"v_lshlrev_b32 v9, 12, v3\nv_lshl_add_u32 v9, v4, 3, v9\nv_add_u32 v9, s{sT}, v9\nglobal_load_dword v10, v9, s[18:19]")
    if w7early: a("s_barrier")
    a("s_waitcnt vmcnt(0)")
    if pad: a("s_mov_b64 exec, 0\ns_branch L_pad0")
    else: a("s_branch L_hwait")
    c("wave 4: partial q over rows 112*rq .., columns 256h + 64*cq .., both batches  (rq = 2b + (s>>2), cq = s&3)")
    a("L_isq:")
    a("s_setprio 3")
    a(f"s_lshr_b32 s{sB}, s{sBH}, 4\ns_lshr_b32 s{sT2}, s{sS}, 2\ns_lshl1_add_u32 s{sTK}, s{sB}, s{sT2}\ns_mul_i32 s{sT}, s{sTK}, 112")
    a(f"s_and_b32 s{sK}, s{sS}, 3")
    a(f"v_and_b32 v6, 1, v2\nv_mul_u32_u24 v6, 896, v6\nv_lshl_add_u32 v6, v3, 3, v6\ns_lshl_b32 s{sT}, s{sT}, 1\nv_add_u32 v6, s{sT}, v6")
    a(f"s_waitcnt lgkmcnt(0)\ns_load_dword s{sE}, s[18:19], 0")
    for u in range(7): a(f"global_load_dwordx2 v[{16+2*u}:{17+2*u}], v6, s[4:5] offset:{u*32}")
    a("v_lshrrev_b32 v7, 2, v2\nv_lshlrev_b32 v7, 7, v7\nv_and_b32 v8, 3, v2\nv_lshl_add_u32 v7, v8, 3, v7")
    a(f"s_lshl_b32 s{sT}, s{sH}, 13\ns_lshl_b32 s{sT2}, s{sTK}, 10\ns_add_u32 s{sT2}, s{sT2}, s{sT}\ns_lshl_b32 s{sK}, s{sK}, 8\ns_add_u32 s{sT2}, s{sT2}, s{sK}\ns_add_u32 s{sT2}, s{sT2}, {WS_QP+2048}")
    a(f"v_lshl_add_u32 v8, v2, 2, s{sT2}")
    a(f"s_lshl_b32 s{sT2}, s{sB}, 12\ns_add_u32 s{sT}, s{sT}, s{sT2}\ns_add_u32 s{sT}, s{sT}, {WS_QP}\nv_lshl_add_u32 v9, v2, 4, s{sT}")
    c("team marker: launch tag ^ (XCC id << 28)")
    a(f"s_lshl_b32 s{sT}, s{sX}, 8\ns_add_u32 s{sT}, s{sT}, {WS_XI}\nv_and_b32 v14, 31, v2\nv_lshl_add_u32 v14, v14, 2, s{sT}\ns_lshl2_add_u32 s{sT}, s{sI}, s{sT}\nv_mov_b32 v12, s{sT}")
    a(f"s_getreg_b32 s{sXV}, hwreg(HW_REG_XCC_ID, 0, 4)\ns_lshl_b32 s{sXV}, s{sXV}, 28")
    a(f"s_waitcnt lgkmcnt(0)\ns_add_u32 s{sE}, s{sE}, 1\ns_xor_b32 s{sXV}, s{sXV}, s{sE}\nv_mov_b32 v13, s{sXV}\nglobal_store_dword v12, v13, s[18:19]")
    a(f"s_and_b32 s{sTAG}, s{sE}, {TAGM}\nv_mov_b32 v10, s{sTAG}\ns_movk_i32 s{sC}, {TAGM}")
    a("s_barrier")
    if qs: a(f"s_sleep {qs}")
    a(f"global_load_dword v15, v14, s[18:19] sc1\ns_waitcnt vmcnt(2)" if not late else "s_waitcnt vmcnt(1)")
    B0=48; D0=32
    def trs(u):
        for k in range(4): a(f"ds_read_b64_tr_b16 v[{B0+u*8+2*k}:{B0+u*8+2*k+1}], v7 offset:{L_WQ+u*2048+k*32}")
    trs(0); trs(1); trs(2)
    for u in range(7):
        if u+3<7:
            a("s_waitcnt lgkmcnt(8)"); trs(u+3)
        else: a(f"s_waitcnt lgkmcnt({4*(6-u)})")
        for k in range(4):
            cc="0" if u==0 else f"v[{D0+4*k}:{D0+4*k+3}]"
            a(f"v_mfma_f32_16x16x16_bf16 v[{D0+4*k}:{D0+4*k+3}], v[{16+2*u}:{17+2*u}], v[{B0+u*8+2*k}:{B0+u*8+2*k+1}], {cc}")
    a("s_nop 5" if not late else "global_load_dword v15, v14, s[18:19] sc1\ns_nop 4")
    for k in range(1,4):
        for bb in range(2): a(f"v_mov_b32_dpp v{D0+bb}, v{D0+4*k+bb} quad_perm:[0,1,2,3] row_mask:{hex(1<<k)} bank_mask:0xf")
        if k<3: a("s_nop 0")
    for bb in range(2): a(f"v_bfi_b32 v{D0+bb}, s{sC}, v10, v{D0+bb}")
    a(f"s_waitcnt vmcnt(0)\nv_cmp_ne_u32 vcc, s{sXV}, v15\ns_cbranch_vccnz L_qrem")
    a(f"global_store_dword v8, v{D0}, s[18:19] offset:-2048\nglobal_store_dword v8, v{D0+1}, s[18:19] offset:2048\ns_branch L_qpub\nL_qrem:")
    a(f"global_store_dword v8, v{D0}, s[18:19] offset:-2048 sc1\nglobal_store_dword v8, v{D0+1}, s[18:19] offset:2048 sc1")
    a(f"L_qpub:\ns_mov_b32 s{sSP}, {SPIN}\ns_waitcnt vmcnt(0)")
    c("gather the four partials of q[b][h]")
    a(f"L_qpoll:\ns_sleep {qback}")
    for k in range(4): a(f"global_load_dwordx4 v[{16+4*k}:{19+4*k}], v9, s[18:19] offset:{k*1024} sc1")
    a(f"s_sub_u32 s{sSP}, s{sSP}, 1\ns_cbranch_scc1 L_qgo")
    a("s_waitcnt vmcnt(0)")
    for k in range(16): a(f"v_xor_b32 v{16+k}, s{sTAG}, v{16+k}")
    a("v_or3_b32 v12, v16, v17, v18")
    for k in range(3,15,2): a(f"v_or3_b32 v12, v12, v{16+k}, v{17+k}")
    a(f"v_or_b32 v12, v12, v31\nv_and_b32 v12, s{sC}, v12\nv_cmp_ne_u32 vcc, 0, v12\ns_cbranch_vccnz L_qpoll")
    a("L_qgo:")
    for r in range(4): a(f"v_add_f32 v{16+r}, v{16+r}, v{20+r}\nv_add_f32 v{24+r}, v{24+r}, v{28+r}")
    for r in range(4): a(f"v_add_f32 v{16+r}, v{16+r}, v{24+r}")
    a(f"v_cvt_pk_bf16_f32 v16, v16, v17\nv_cvt_pk_bf16_f32 v17, v18, v19\nv_lshlrev_b32 v5, 3, v2\nds_write_b64 v5, v[16:17] offset:{L_Q}")
    a(f"v_mov_b32 v5, 0\nv_mov_b32 v7, s{sE}\nds_write_b32 v5, v7 offset:{L_E}\nds_write_b32 v5, v5 offset:{L_QF}")
    a("s_setprio 0\ns_branch L_hgo")
    if pad: a("@PADEND@\ns_mov_b64 exec, -1")
    a(f"L_hwait:\nv_mov_b32 v5, 0\ns_mov_b32 s{sSP}, {SPIN}")
    a(f"L_hw:\ns_sleep 4\nds_read_b32 v8, v5 offset:{L_QF}\ns_sub_u32 s{sSP}, s{sSP}, 1\ns_cbranch_scc1 L_hgo\ns_waitcnt lgkmcnt(0)\nv_cmp_eq_u32 vcc, -1, v8\ns_cbranch_vccnz L_hw")
    WO=64
    c(f"---- addresses for the tail; s{sK} = wave-4, s{sB} = 4x + (i&3)")
    a("L_hgo:")
    a(f"v_mov_b32 v28, 0\nds_read_b32 v6, v28 offset:{L_E}")
    a(f"s_sub_u32 s{sK}, s{sW}, 4\ns_movk_i32 s{sC}, {TAGM}\ns_not_b32 s{sAT}, s{sC}")
    a(f"s_and_b32 s{sT}, s{sI}, 3\ns_lshl2_add_u32 s{sB}, s{sX}, s{sT}\nv_and_b32 v7, 7, v2\nv_lshlrev_b32 v27, 4, v2")
    a(f"s_lshl_b32 s{sT}, s{sX}, 8\ns_add_u32 s{sT}, s{sT}, {WS_XI}\nv_and_b32 v14, 31, v2\nv_lshl_add_u32 v14, v14, 2, s{sT}")
    a("global_load_dword v11, v14, s[18:19] sc1")
    c("team 'projection done' markers: v12 own, v14 all 28")
    a(f"s_add_u32 s{sT}, s{sT}, 128\nv_min_u32 v14, 27, v2\nv_lshl_add_u32 v14, v14, 2, s{sT}\ns_lshl2_add_u32 s{sT}, s{sI}, s{sT}\nv_mov_b32 v12, s{sT}")
    a(f"s_waitcnt lgkmcnt(0)\nv_readfirstlane_b32 s{sE}, v6\nv_mov_b32 v13, v6")
    a(f"s_getreg_b32 s{sXV}, hwreg(HW_REG_XCC_ID, 0, 4)\ns_lshl_b32 s{sXV}, s{sXV}, 28\ns_xor_b32 s{sXV}, s{sXV}, s{sE}")
    a(f"s_and_b32 s{sTAG}, s{sE}, {TAGM}\nv_mov_b32 v15, s{sTAG}")
    c("o gather: v20 (batch 0), v25 (batch 1): 8 producers x 32 rows")
    a(f"s_lshr_b32 s{sT}, s{sB}, 1\ns_lshl_b32 s{sT}, s{sT}, 13\ns_and_b32 s{sT2}, s{sB}, 1\ns_lshl2_add_u32 s{sT2}, s{sT2}, s{sK}\ns_lshl_b32 s{sT2}, s{sT2}, 7\ns_add_u32 s{sT}, s{sT}, s{sT2}\ns_add_u32 s{sT}, s{sT}, {WS_OP}")
    a(f"v_lshrrev_b32 v6, 3, v2\nv_lshlrev_b32 v6, 10, v6\nv_lshl_add_u32 v6, v7, 4, v6\nv_add_u32 v20, s{sT}, v6\nv_add_u32 v25, 0x20000, v20")
    c("own o: LDS v21, d_ws v22")
    a(f"s_lshl_b32 s{sT}, s{sK}, 8\nv_lshl_add_u32 v21, v2, 2, s{sT}\ns_lshl3_add_u32 s{sT2}, s{sBH}, s{sS}\ns_lshl_b32 s{sT2}, s{sT2}, 10\ns_add_u32 s{sT2}, s{sT2}, {WS_OP}\nv_add_u32 v22, s{sT2}, v21\nv_add_u32 v21, {L_O}, v21")
    c("partial outputs: store v23, reducer gather v24, d_out v26")
    a(f"s_lshl2_add_u32 s{sT}, s{sS}, s{sK}\ns_lshl_b32 s{sT}, s{sT}, 5\ns_add_u32 s{sT}, s{sT}, s{sB}\ns_lshl_b32 s{sT}, s{sT}, 7\ns_add_u32 s{sT}, s{sT}, {WS_Y}\nv_lshl_add_u32 v23, v2, 2, s{sT}")
    a(f"s_lshl_b32 s{sT}, s{sB}, 12\ns_lshl_b32 s{sT2}, s{sK}, 5\ns_add_u32 s{sT}, s{sT}, s{sT2}\ns_add_u32 s{sT}, s{sT}, {WS_Y}")
    a(f"v_lshrrev_b32 v6, 1, v2\nv_lshlrev_b32 v6, 7, v6\nv_and_b32 v8, 1, v2\nv_lshl_add_u32 v6, v8, 4, v6\nv_add_u32 v24, s{sT}, v6")
    a(f"s_lshr_b32 s{sT}, s{sK}, 1\ns_mul_i32 s{sT}, s{sT}, 896\ns_lshl_b32 s{sT2}, s{sB}, 5\ns_add_u32 s{sT}, s{sT}, s{sT2}\ns_and_b32 s{sT2}, s{sK}, 1\ns_lshl4_add_u32 s{sT}, s{sT2}, s{sT}\nv_lshl_add_u32 v26, v8, 3, s{sT}\nv_lshl_add_u32 v26, v3, 1, v26")
    c("LDS: v29 bf16 o write, v30 A-operand read, v9 transposing wo read")
    a(f"s_lshl_b32 s{sT}, s{sK}, 6\nv_lshl_add_u32 v29, v7, 3, s{sT}\nv_lshl_add_u32 v29, v3, 1, v29\nv_bfe_u32 v6, v2, 3, 1\nv_lshl_add_u32 v29, v6, 8, v29\nv_lshlrev_b32 v30, 4, v3\nv_lshl_add_u32 v30, v8, 8, v30")
    a(f"v_and_b32 v10, 1, v3\nv_lshl_add_u32 v6, v10, 1, v6\nv_xor_b32 v6, s{sK}, v6\nv_bfe_u32 v9, v2, 2, 2\nv_lshl_add_u32 v9, v3, 3, v9\nv_lshlrev_b32 v9, 7, v9\nv_lshl_add_u32 v9, v6, 5, v9\nv_and_b32 v6, 3, v2\nv_lshl_add_u32 v9, v6, 3, v9")
    c(f"s{sLOC} = 1 when all 32 team members are on this XCD")
    a(f"s_waitcnt vmcnt(0)\nv_cmp_ne_u32 vcc, s{sXV}, v11\ns_cmp_eq_u64 vcc, 0\ns_cselect_b32 s{sLOC}, 1, 0")
    a(f"s_cmp_eq_u32 s{sW}, 5\ns_cbranch_scc1 L_bal\ns_cmp_lg_u32 s{sW}, 4\ns_cbranch_scc1 L_nogat")
    def pwait(lb,val,sl):
        a(f"s_mov_b32 s{sSP}, {SPIN}\nL_{lb}:\ns_sleep {sl}")
        a(f"ds_read_b64 v[48:49], v28 offset:{L_TS}\ns_sub_u32 s{sSP}, s{sSP}, 1\ns_cbranch_scc1 L_{lb}go\ns_waitcnt lgkmcnt(0)\nv_cmp_gt_i32 vcc, {val}, v49\ns_cbranch_vccnz L_{lb}\nL_{lb}go:")
    c("---- wave 4: workgroup (max, sum) after the K phase, exchanged inside (b,h) -> factor exp2(wave max - M)/L per wave")
    a(f"v_and_b32 v16, 12, v2\ns_mov_b32 s{sSP}, {SPIN}")
    a(f"L_c1:\ns_sleep 8\nds_read_b32 v17, v16 offset:{L_DN}\ns_sub_u32 s{sSP}, s{sSP}, 1\ns_cbranch_scc1 L_c1go\ns_waitcnt lgkmcnt(0)\nv_cmp_eq_u32 vcc, -1, v17\ns_cbranch_vccnz L_c1\nL_c1go:")
    a(f"ds_read_b32 v17, v16 offset:{L_ML}")
    for i in range(4): a(f"ds_read_b128 v[{32+4*i}:{35+4*i}], v27 offset:{L_P+i*1024}")
    a(f"s_mul_i32 s{sT}, s2, {XST}\ns_add_u32 s{sT}, s{sT}, {WS_X}\nv_add_u32 v18, s{sT}, v27")
    a("s_waitcnt lgkmcnt(0)")
    a(f"v_max_f32_dpp v56, v17, v17 row_ror:4 {DPM}\nv_add_f32 v32, v32, v33\nv_add_f32 v34, v34, v35")
    a(f"v_max_f32_dpp v56, v56, v56 row_ror:8 {DPM}\nv_and_b32 v56, s{sAT}, v56\nv_sub_f32 v19, v17, v56\nv_exp_f32 v19, v19")
    for r in range(36,48): a(f"v_add_f32 v{32+2*(r&1)}, v{32+2*(r&1)}, v{r}")
    a("v_add_f32 v32, v32, v34\nv_mul_f32 v57, v32, v19")
    for d in DP4: a(f"s_nop 1\nv_add_f32_dpp v57, v57, v57 {d} {DPM}")
    a("v_mov_b32 v58, v57\ns_nop 1\nv_permlane16_swap_b32 v57, v58\nv_add_f32 v57, v57, v58\nv_mov_b32 v58, v57\ns_nop 1\nv_permlane32_swap_b32 v57, v58\nv_add_f32 v57, v57, v58")
    a(f"v_or_b32 v56, v56, v15\nv_bfi_b32 v57, s{sC}, v15, v57\nv_mov_b32 v58, s{sE}\nv_mov_b32 v59, s{sE}")
    a("s_mov_b64 exec, 0xff" if mlfull else "s_mov_b64 exec, 1")
    a(f"s_cmp_eq_u32 s{sLOC}, 0\ns_cbranch_scc1 L_mrem\nglobal_store_dwordx4 v18, v[56:59], s[18:19]\ns_branch L_mdone\nL_mrem:")
    a("global_store_dwordx4 v18, v[56:59], s[18:19] sc1\nL_mdone:\ns_mov_b64 exec, -1")
    a(f"s_and_b32 s{sT}, s2, 31\ns_mul_i32 s{sT}, s{sT}, {XST}\ns_add_u32 s{sT}, s{sT}, {WS_X}\nv_mul_u32_u24 v18, {32*XST}, v7\nv_add_u32 v18, s{sT}, v18")
    pwait("c2",17+GD,8)
    a(f"s_mov_b32 s{sSP}, {SPIN}\ns_branch L_xp1")
    a("L_xp:\ns_sleep 32\nL_xp1:")
    a("global_load_dwordx4 v[56:59], v18, s[18:19] sc1")
    a(f"s_sub_u32 s{sSP}, s{sSP}, 1\ns_cbranch_scc1 L_xgo\ns_waitcnt vmcnt(0)")
    a(f"v_xor_b32 v56, s{sTAG}, v56\nv_xor_b32 v57, s{sTAG}, v57\nv_xor_b32 v59, s{sE}, v59\nv_or_b32 v31, v56, v57")
    a(f"v_and_or_b32 v31, v31, s{sC}, v59\nv_cmp_ne_u32 vcc, 0, v31\ns_cbranch_vccnz L_xp\nL_xgo:")
    a(f"v_max_f32_dpp v32, v56, v56 {DP4[0]} {DPM}\ns_nop 1\nv_max_f32_dpp v32, v32, v32 {DP4[1]} {DPM}\ns_nop 1\nv_max_f32_dpp v32, v32, v32 {DP4[2]} {DPM}")
    a("v_sub_f32 v56, v56, v32\nv_sub_f32 v17, v17, v32\nv_exp_f32 v56, v56\nv_exp_f32 v17, v17\nv_mul_f32 v33, v56, v57")
    for d in DP4[:3]: a(f"s_nop 1\nv_add_f32_dpp v33, v33, v33 {d} {DPM}")
    a(f"v_rcp_f32 v33, v33\ns_nop 0\nv_mul_f32 v17, v17, v33\nds_write_b32 v16, v17 offset:{L_F}")
    a("s_branch L_nogat")
    sN=sTK; sPM=sH
    c(f"---- wave 5: mean progress mark of workgroups 0..63 at chunks {', '.join(str(n1+P*i) for i in range(NC))} -> reference line (offset, slope)")
    a("L_bal:")
    a(f"s_mul_i32 s{sT}, s2, {XST}\ns_add_u32 s{sT}, s{sT}, {WS_T}\nv_lshl_add_u32 v18, v4, 3, s{sT}\nv_and_b32 v19, {NS-1}, v2\nv_mul_u32_u24 v19, {XST}, v19\nv_add_u32 v19, {WS_T}, v19")
    a(f"s_mov_b32 s{sN}, {n1}\ns_mov_b32 s{sTV}, {int(tau0*16)}\nv_mov_b32 v51, s{sE}\ns_mov_b32 s{sPM}, 0")
    if tpre:
        a(f"s_cmp_ge_u32 s2, {NS}\ns_cbranch_scc1 L_pc0\nv_min_u32 v52, {NC-1}, v2\nv_lshl_add_u32 v52, v52, 14, v18\nglobal_load_dword v53, v52, s[18:19]")
    a("L_pc0:")
    pwait("p1",f"s{sN}",4)
    a(f"v_subrev_u32 v49, s{sN}, v49\nv_mul_u32_u24 v49, {int(tau0)}, v49\nv_sub_u32 v50, v48, v49")
    a(f"s_cmp_ge_u32 s2, {NS}\ns_cbranch_scc1 L_pc1\ns_mov_b64 exec, {'0xffff' if full else 1}\nglobal_store_dwordx2 v18, v[50:51], s[18:19] sc1\ns_mov_b64 exec, -1\nL_pc1:")
    a(f"s_add_u32 s{sT}, s{sN}, {D}")
    pwait("p2",f"s{sT}",4)
    a(f"s_mov_b32 s{sSP}, {SPIN}\ns_branch L_pp1\nL_pp:\ns_sleep 32\nL_pp1:")
    a("global_load_dwordx2 v[52:53], v19, s[18:19] sc1")
    a(f"s_sub_u32 s{sSP}, s{sSP}, 1\ns_cbranch_scc1 L_ppgo\ns_waitcnt vmcnt(0)\nv_cmp_ne_u32 vcc, s{sE}, v53\ns_and_b64 exec, exec, vcc\ns_cbranch_scc1 L_pp\nL_ppgo:\ns_mov_b64 exec, -1")
    a(f"v_sub_u32 v52, v52, v50\nv_add_u32 v18, {64*XST}, v18\nv_add_u32 v19, {64*XST}, v19")
    for d in DP4: a(f"v_add_u32_dpp v52, v52, v52 {d} {DPM}\ns_nop 1")
    a(f"v_readlane_b32 s{sT}, v52, 0\nv_readlane_b32 s{sT2}, v52, 16\nv_readlane_b32 s{sREF}, v52, 32\nv_readlane_b32 s{sTAU}, v52, 48\nv_readfirstlane_b32 s{sXV}, v50")
    a(f"s_add_u32 s{sT}, s{sT}, s{sT2}\ns_add_u32 s{sREF}, s{sREF}, s{sTAU}\ns_add_u32 s{sT}, s{sT}, s{sREF}\ns_ashr_i32 s{sT}, s{sT}, 6\ns_add_u32 s{sT}, s{sT}, s{sXV}")
    a(f"s_sub_u32 s{sT2}, s{sT}, s{sPM}\ns_mul_i32 s{sT2}, s{sT2}, {int(16*256/P)}\ns_lshr_b32 s{sT2}, s{sT2}, 8\ns_max_u32 s{sT2}, s{sT2}, {int(tau0*16)}\ns_cmp_eq_u32 s{sN}, {n1}\ns_cselect_b32 s{sTV}, s{sTV}, s{sT2}\ns_mov_b32 s{sPM}, s{sT}")
    a(f"s_mul_i32 s{sT2}, s{sN}, s{sTV}\ns_lshr_b32 s{sT2}, s{sT2}, 4\ns_sub_u32 s{sT}, s{sT}, s{sT2}\ns_add_u32 s{sT}, s{sT}, {a0}\nv_mov_b32 v52, s{sT}\nv_mov_b32 v53, s{sTV}\nds_write_b64 v28, v[52:53] offset:{L_REF}")
    a(f"s_add_u32 s{sN}, s{sN}, {P}\ns_cmp_lt_u32 s{sN}, {n1+P*NC}\ns_cbranch_scc1 L_pc0")
    c("every workgroup has read the tag word by now (the marks cover all heads): advance it for the next launch")
    a(f"s_cmp_lg_u32 s2, 255\ns_cbranch_scc1 L_nogat\nglobal_store_dword v28, v51, s[18:19] sc1")
    c("---- all four: pick up the per-wave factors, wait for the streaming waves")
    a("L_nogat:")
    a(f"s_mov_b32 s{sSP}, {SPIN}\ns_branch L_f1\nL_f0:\ns_sleep 8\nL_f1:\nds_read_b128 v[44:47], v28 offset:{L_F}\ns_sub_u32 s{sSP}, s{sSP}, 1\ns_cbranch_scc1 L_fgo\ns_waitcnt lgkmcnt(0)\nv_cmp_eq_u32 vcc, -1, v44\ns_cbranch_vccnz L_f0\nL_fgo:")
    if "l" in opre: a("global_load_dword v11, v22, s[18:19]")
    if "w" in opre: a(f"s_cmp_eq_u32 s{sLOC}, 0\ns_cbranch_scc1 L_npw\nv_xor_b32 v11, 1, v15\nglobal_store_dword v22, v11, s[18:19]\nL_npw:")
    a(f"s_mov_b32 s{sSP}, {SPIN}\ns_cmp_lg_u32 s{sLOC}, 0")
    a("s_waitcnt vmcnt(0) lgkmcnt(0)\ns_barrier\nL_tail0:")
    a("ds_read2st64_b32 v[32:33], v21 offset0:0 offset1:4\nds_read2st64_b32 v[34:35], v21 offset0:8 offset1:12")
    a("s_waitcnt lgkmcnt(0)")
    a(f"v_pk_mul_f32 v[32:33], v[32:33], v[44:45]\nv_pk_fma_f32 v[32:33], v[34:35], v[46:47], v[32:33]\nv_add_f32 v32, v32, v33\nv_bfi_b32 v32, s{sC}, v15, v32")
    a("s_cbranch_scc0 L_orem\nglobal_store_dword v22, v32, s[18:19]\nL_odone:")
    a(f"s_cmp_ge_u32 s{sI}, 28\ns_cbranch_scc1 L_final")
    c("---- projection workgroups: sum 8 partial o per batch, bf16, times the wo tile")
    a("global_load_dwordx4 v[36:39], v20, s[18:19] sc1\nglobal_load_dwordx4 v[40:43], v25, s[18:19] sc1")
    for kp in range(4):
        for j in range(2):
            r=WO+kp*4+j*2
            a(f"ds_read_b64_tr_b16 v[{r}:{r+1}], v9 offset:{L_WO+kp*4096+j*512}")
    a("s_branch L_h1a")
    a("L_h1poll:")
    a("global_load_dwordx4 v[36:39], v20, s[18:19] sc1\nglobal_load_dwordx4 v[40:43], v25, s[18:19] sc1")
    a(f"s_sub_u32 s{sSP}, s{sSP}, 1\ns_cbranch_scc1 L_h1go")
    a("L_h1a:\ns_waitcnt vmcnt(0)")
    for r in range(36,44): a(f"v_xor_b32 v{r}, s{sTAG}, v{r}")
    a(f"v_or3_b32 v31, v36, v37, v38\nv_or3_b32 v32, v39, v40, v41\nv_or3_b32 v31, v31, v42, v43\nv_or_b32 v31, v31, v32\nv_and_b32 v31, s{sC}, v31")
    a("v_cmp_ne_u32 vcc, 0, v31\ns_and_b64 exec, exec, vcc\ns_cbranch_scc1 L_h1poll\nL_h1go:\ns_mov_b64 exec, -1")
    a("v_permlane32_swap_b32 v36, v38\nv_permlane32_swap_b32 v37, v39\nv_permlane32_swap_b32 v40, v42\nv_permlane32_swap_b32 v41, v43")
    a("v_add_f32 v36, v36, v38\nv_add_f32 v37, v37, v39\nv_add_f32 v40, v40, v42\nv_add_f32 v41, v41, v43")
    a("v_permlane16_swap_b32 v36, v37\nv_add_f32 v36, v36, v37\nv_permlane16_swap_b32 v40, v41\nv_add_f32 v40, v40, v41")
    a("v_add_f32_dpp v37, v36, v36 row_ror:8 row_mask:0xf bank_mask:0x3\ns_nop 1\nv_add_f32_dpp v37, v40, v40 row_ror:8 row_mask:0xf bank_mask:0xc\nv_cvt_pk_bf16_f32 v37, v37, v37")
    a(f"ds_write_b16 v29, v37 offset:{L_OB}\ns_waitcnt lgkmcnt(0)\ns_barrier")
    for kp in range(4): a(f"ds_read_b128 v[{40+4*kp}:{43+4*kp}], v30 offset:{L_OB+kp*64}")
    for kp in range(4):
        a(f"s_waitcnt lgkmcnt({3-kp})")
        cc="0" if kp==0 else "v[56:59]"
        a(f"v_mfma_f32_16x16x32_bf16 v[56:59], v[{40+4*kp}:{43+4*kp}], v[{WO+kp*4}:{WO+kp*4+3}], {cc}")
    a(f"s_mov_b32 exec_hi, 0\ns_nop 6")
    a(f"v_mov_b32_dpp v56, v57 quad_perm:[0,1,2,3] row_mask:0x2 bank_mask:0xf\nv_bfi_b32 v56, s{sC}, v15, v56")
    a("global_store_dword v23, v56, s[18:19] sc1\nglobal_store_dword v12, v13, s[18:19]\ns_endpgm")
    c("---- reducer workgroups: 32 partials x 8 outputs per wave; first read once the own team is through")
    a("L_final:")
    a(f"s_cmp_eq_u32 s{sX}, 7\ns_cbranch_scc1 L_end\ns_cmp_eq_u32 s{sLOC}, 0\ns_cbranch_scc1 L_h2poll")
    a(f"L_g2:\nglobal_load_dword v32, v14, s[18:19] sc1\ns_sub_u32 s{sSP}, s{sSP}, 1\ns_cbranch_scc1 L_h2go\ns_waitcnt vmcnt(0)\nv_cmp_ne_u32 vcc, s{sE}, v32\ns_cbranch_vccnz L_g2")
    a("L_h2poll:\nglobal_load_dwordx4 v[32:35], v24, s[18:19] sc1")
    a(f"s_sub_u32 s{sSP}, s{sSP}, 1\ns_cbranch_scc1 L_h2go\ns_waitcnt vmcnt(0)")
    for r in range(4): a(f"v_xor_b32 v{32+r}, s{sTAG}, v{32+r}")
    a(f"v_or3_b32 v31, v32, v33, v34\nv_or_b32 v31, v31, v35\nv_and_b32 v31, s{sC}, v31")
    a("v_cmp_ne_u32 vcc, 0, v31\ns_and_b64 exec, exec, vcc\ns_cbranch_scc1 L_h2poll\nL_h2go:\ns_mov_b64 exec, -1")
    a("v_permlane32_swap_b32 v32, v34\nv_permlane32_swap_b32 v33, v35")
    a("v_add_f32 v32, v32, v34\nv_add_f32 v33, v33, v35")
    a("s_nop 1\nv_permlane16_swap_b32 v32, v33\nv_add_f32 v32, v32, v33")
    for d in ("row_ror:8","row_ror:4","row_ror:2"): a(f"s_nop 1\nv_add_f32_dpp v32, v32, v32 {d} {DPM}")
    a("s_mov_b32 exec_lo, 0x00030003\ns_mov_b32 exec_hi, 0x00030003")
    a("v_cvt_pk_bf16_f32 v32, v32, v32\nglobal_store_short v26, v32, s[14:15]")
    a("L_end:\ns_endpgm")
    a("L_orem:\nglobal_store_dword v22, v32, s[18:19] sc1\nL_last:\ns_branch L_odone")
    a(f""".section .rodata,"a"
.p2align 6
.amdhsa_kernel {MAIN}
  .amdhsa_next_free_vgpr {NV}
  .amdhsa_next_free_sgpr 56
  .amdhsa_accum_offset {(NV+3)//4*4}
  .amdhsa_group_segment_fixed_size 0
  .amdhsa_kernarg_size 64
  .amdhsa_user_sgpr_count 2
  .amdhsa_user_sgpr_kernarg_segment_ptr 1
  .amdhsa_system_sgpr_workgroup_id_x 1
.end_amdhsa_kernel""")
    if pad:
        out=[]; on=False; acc=0; n=0; prev=""
        def sz(l):
            if l.endswith(":") or not l or l.startswith(";"): return 0
            op=l.split()[0]
            if op.startswith(("global_","ds_","v_mfma","v_max3","v_fma","v_cvt_pk","v_lshl_add","s_memreal","v_pk","v_bfi","v_or3")) or "dpp" in op or "0x" in l: return 8
            return 4
        for l in o:
            if l in ("L_kloop:","L_tail0:"): on=True; acc=pad
            if l in ("L_helper:","L_end:"): on=False
            if on and acc>=pad and sz(l) and "exec, exec, vcc" not in prev and l!="s_mov_b64 exec, -1":
                out += [f"L_pad{n}:", f"s_cbranch_execz L_pad{n+1}"]; n+=1; acc=4
            out.append(l); acc+=sz(l)
            if sz(l): prev=l
        o=[l.replace("@PADEND@",f"L_pad{n}:") for l in out]
    txt=[]
    incode=False
    for l in o:
        if l==MAIN+":": incode=True
        if l.startswith(".section"): incode=False
        txt.append(("    "+l) if incode and not l.endswith(":") else l)
    open(name,"w").write("\n".join(txt)+"\n")
    return build(name)
if __name__=="__main__":
    hdr=open("standalone__mha_block_cached__decode.s.ref").read().split("; Override")[0]
    print(gen("final4.s",hdr=hdr))
```

```python
import sys
from asm import build
MAIN="standalone__mha_block_cached__decode_kernel"
C_SCALE=0x3db8aa3b
TAGM=0x3ff
WS_XI=0x1000; WS_X=0x10000; WS_T=0x20000; WS_QP=0x40000; WS_OP=0x80000; WS_Y=0xC0000; XST=256
L_F=0; L_DN=16; L_TS=32; L_QF=64; L_REF=264; L_E=276; L_ML=288; L_Q=512; L_OB=1024; L_O=2048; L_P=6144
L_WQ=L_P+4096; L_WO=L_WQ+14336; LDS_SZ=L_WO+16384
SPIN=1<<19
DPM="row_mask:0xf bank_mask:0xf"
DP4=["quad_perm:[1,0,3,2]","quad_perm:[2,3,0,1]","row_half_mirror","row_mirror"]

DOC = r"""
; ---------------------------------------------------------------------------------------------
; One persistent launch, 256 workgroups (one per CU) of 8 waves.
;   wg -> team x = wg&7, head h = 2x + bit3, batch b = bit4, split s = wg>>5
;   The workgroup owns 16 chunks of 64 keys of (b,h): chunk k covers keys (s + 8k)*64 ...
; Waves 0-3 stream: the weight tiles (-> LDS), all K chunks (scores -> LDS), then all V chunks (MFMA with
;   p = exp2(c*(score - wave max)); the true softmax max / sum are applied when the waves are merged).
; Wave 4: q = x @ wq (a 112x64 slice per workgroup, exchanged through d_ws), later the
;   (max, sum) exchange of the 8 workgroups of (b,h).
; Wave 5: load balancing.  HBM is saturated with 5 loads in flight per wave; a wave that is
;   behind the chip-wide mean progress keeps 6 or 7 in flight so that all CUs finish together.
;   The clock is only read to compare progress; nothing waits on it and no result depends on it.
; Waves 4-7 tail: merge o, exchange it inside the team, multiply by a 128x64 tile of wo,
;   hand the partial outputs to 28 reducer workgroups which write d_out.
; Hand-offs through d_ws carry a per-launch tag (d_ws word 0 + 1) so that leftovers of an earlier
;   launch are never taken for data; stores are write-through (sc1) unless every team member
;   reported the same XCC id, in which case the shared L2 is enough.
; All polling loops are bounded; s_sleep only appears as their back-off.
; ---------------------------------------------------------------------------------------------
""".strip("\n")

def gen(name, U=4, lv=(5,6,7), th=(0,30), a0=10, tau0=107.6, n1=5, P=8, NC=3, D=2, GD=5, qe=12, qback=16, pad=250, unr=False, w7early=True, tpre=False, full=True, NS=64, opre="skvqxy", mlfull=True, ww=7, qs=0, reord=True, msk=True, late=True, lead=None, lk0=9, lk1=15, leadv=False, dirty=0, dearly=False, ofl="", hoist=True, hdr=""):
    o=[]
    def a(s): o.extend(s.split("\n"))
    def c(s): o.append("; "+s)
    fk=lv[0]
    a(hdr+f"; @launch grid=(256,1,1) block=(512,1,1) lds={LDS_SZ}")
    a('.amdgcn_target "amdgcn-amd-amdhsa--gfx950"')
    a(DOC)
    a(f".text\n.globl {MAIN}\n.p2align 8\n.type {MAIN},@function\n{MAIN}:")
    sW=20; sBH=21; sS=22; sX=23; sTK=24; sK=25; sC=26; sT=27; sT2=28; sAT=29; sLOC=30; sXV=31; sTAG=32; sE=33; sI=34; sTV=35; sSP=36; sH=37; sB=38
    sA=40; sNOW=42; sEX=44; sIDX=46; sREF=48; sTAU=49; sLV=50
    a("s_cmp_ge_u32 s2, 256\ns_cbranch_scc1 L_end")
    c("s[4:5]=x s[6:7]=K s[8:9]=V s[10:11]=wq s[12:13]=wo s[14:15]=out s[16:17]=dbg s[18:19]=ws")
    a("s_load_dwordx16 s[4:19], s[0:1], 0")
    a(f"s_memrealtime s[{sNOW}:{sNOW+1}]")
    c("v1 = wave, v2 = lane, v3 = lane>>4, v4 = lane&15")
    a("v_lshrrev_b32 v1, 6, v0\nv_and_b32 v2, 63, v0")
    a(f"v_readfirstlane_b32 s{sW}, v1")
    a("v_lshrrev_b32 v3, 4, v2\nv_and_b32 v4, 15, v2")
    a(f"s_and_b32 s{sX}, s2, 7\ns_bfe_u32 s{sT}, s2, 0x10003\ns_lshl1_add_u32 s{sH}, s{sX}, s{sT}\ns_and_b32 s{sT}, s2, 16\ns_or_b32 s{sBH}, s{sH}, s{sT}\ns_lshr_b32 s{sS}, s2, 5")
    a(f"s_cmp_ge_u32 s{sW}, 4\ns_cbranch_scc1 L_helper")
    c("================= streaming waves 0-3 =================")
    Q=8; MK=16; PB=20; ACC=28; S=36; M=40; T=41; VP=45; VZ=46; VONE=0; VL=48; VTS=7; VR=52; VO=Q+3
    RB=54; NV=RB+U*32
    def kaddr():
        c("a 32KB chunk is read as 4 groups x 4 waves x 2KB (4 keys); lane = (key lane>>4, 16B piece lane&15), two halves per key")
        a(f"v_lshlrev_b32 v5, 9, v3\nv_lshl_add_u32 v5, v4, 4, v5")
        a(f"s_add_u32 s{sT2}, s{sBH}, s{sS}\ns_add_u32 s{sT2}, s{sT2}, s{sW}\ns_lshl_b32 s{sT2}, s{sT2}, 11")
        for g in range(4):
            a(f"s_and_b32 s{sT2}, s{sT2}, 0x7fff\nv_add_u32 v{VL+g}, s{sT2}, v5")
            if g<3: a(f"s_add_u32 s{sT2}, s{sT2}, 0x2000")
        a(f"s_lshl_b32 s{sT}, s{sBH}, 7\ns_add_u32 s{sT}, s{sT}, s{sS}\ns_lshl_b32 s{sT}, s{sT}, 15")
    if not reord: kaddr()
    c("weights go first: wq slice rows 112*rq + 8t.. (t = wave + 4j), wo tile rows (4x + (i&3))*128 + 32*wave + 8j..")
    a(f"s_lshr_b32 s{sB}, s{sBH}, 4\ns_lshr_b32 s{sT2}, s{sS}, 2\ns_lshl1_add_u32 s{sT2}, s{sB}, s{sT2}\ns_mul_i32 s{sT2}, s{sT2}, 112\ns_lshl3_add_u32 s{sT2}, s{sW}, s{sT2}")
    a(f"v_lshrrev_b32 v8, 3, v2\nv_and_b32 v9, 7, v2\nv_add_u32 v10, s{sT2}, v8\nv_lshlrev_b32 v10, 13, v10\nv_lshl_add_u32 v10, v9, 4, v10")
    a(f"s_and_b32 s{sT2}, s{sS}, 3\ns_lshl2_add_u32 s{sT2}, s{sH}, s{sT2}\ns_lshl_b32 s{sT2}, s{sT2}, 7\nv_add_u32 v10, s{sT2}, v10")
    def waddr():
        a(f"s_bfe_u32 s{sT2}, s2, 0x20003\ns_lshl2_add_u32 s{sT2}, s{sX}, s{sT2}\ns_lshl2_add_u32 s{sT2}, s{sT2}, s{sW}\ns_lshl_b32 s{sT2}, s{sT2}, 5")
        a(f"v_add_u32 v8, s{sT2}, v8\nv_mul_u32_u24 v8, 896, v8\ns_min_u32 s{sT2}, s{sS}, 6\ns_lshl_b32 s{sT2}, s{sT2}, 7\nv_add_u32 v8, s{sT2}, v8")
        a(f"v_and_b32 v11, 1, v3\nv_lshlrev_b32 v11, 1, v11\nv_xor_b32 v11, v11, v9\nv_lshl_add_u32 v11, v11, 4, v8")
        if msk: a(f"s_cmp_eq_u32 s{sS}, 7\ns_cselect_b64 s[{sA}:{sA+1}], 0xff, -1")
    if not reord: waddr()
    a(f"s_lshl_b32 s{sTK}, s{sW}, 10\ns_add_u32 m0, s{sTK}, {L_WQ}\ns_lshl_b32 s{sI}, s{sW}, 12")
    def ld(slot,g,e):
        r=RB+slot*32+g*8+4*e
        a(f"global_load_dwordx4 v[{r}:{r+3}], v{VL+g}, s[6:7]{' offset:256' if e else ''} nt")
    def nextchunk(): a("s_add_u32 s6, s6, 0x40000\ns_addc_u32 s7, s7, 0")
    a("s_waitcnt lgkmcnt(0)")
    def init():
        c("LDS flags = -1, progress reference = 'far ahead', MFMA selector masks, accumulators")
        a(f"v_mov_b32 v{T}, -1\nv_lshlrev_b32 v6, 2, v2\nds_write_b32 v6, v{T} offset:{L_F}\nv_mov_b32 v{VR}, s{sNOW}\nv_mov_b32 v{VR+1}, 0x100000\nv_mov_b32 v{VZ}, 0\nds_write_b64 v{VZ}, v[{VR}:{VR+1}] offset:{L_REF}")
        a(f"s_add_u32 s8, s8, s{sT}\ns_addc_u32 s9, s9, 0")
        a(f"v_and_b32 v{T}, 1, v2\nv_lshlrev_b32 v{T}, 4, v{T}\nv_mov_b32 v{T+1}, 0xffff\nv_lshlrev_b32 v{T}, v{T}, v{T+1}\nv_bfe_u32 v{T+1}, v2, 1, 2")
        for k in range(4): a(f"v_cmp_eq_u32 vcc, {k}, v{T+1}\nv_mov_b32 v{ACC+2*k}, 0\nv_mov_b32 v{ACC+2*k+1}, 0\nv_cndmask_b32 v{MK+k}, 0, v{T}, vcc")
        a(f"s_mov_b32 s{sC}, {hex(C_SCALE)}\nv_mov_b32 v{M}, 0xff7fffff")
        a(f"s_mov_b32 s{sK}, {U}\nv_lshlrev_b32 v5, 4, v4")
        a(f"s_mov_b32 s{sLV}, 0\nv_mov_b32 v{VONE}, 1")
        a(f"v_lshlrev_b32 v{VTS}, 3, v1\ns_mov_b32 s{sEX}, 0x10001\ns_mov_b32 s{sEX+1}, 0x10001")
        a(f"s_mov_b32 s{sIDX}, 0\ns_movk_i32 s{sIDX+1}, 256")
        a(f"v_lshlrev_b32 v{VP}, 6, v1\nv_lshl_add_u32 v{VP}, v3, 4, v{VP}")
        a(f"s_add_u32 s6, s6, s{sT}\ns_addc_u32 s7, s7, 0\ns_mov_b32 s{sSP}, {SPIN}")
    for j in range(4):
        if j==3: a(f"s_cmp_ge_u32 s{sW}, 2\ns_cbranch_scc1 L_nq3")
        if j: a(f"s_add_u32 m0, s{sTK}, {L_WQ+j*4096}\nv_add_u32 v10, 0x40000, v10")
        a("global_load_lds_dwordx4 v10, s[10:11] nt")
    a("L_nq3:")
    if reord: waddr()
    for j in range(4):
        if 4+j==min(ww,7):
            if reord: kaddr()
            init()
        a(f"s_add_u32 m0, s{sI}, {L_WO+j*1024}")
        if j: a(f"v_xor_b32 v11, 64, v11\nv_add_u32 v11, {8*896}, v11")
        if 4+j>=ww: a(f"s_waitcnt vmcnt({ww-1})")
        elif not j: a("s_nop 0")
        if msk: a(f"s_mov_b64 exec, s[{sA}:{sA+1}]")
        a("global_load_lds_dwordx4 v11, s[12:13] nt")
        if msk: a("s_mov_b64 exec, -1")
    c(f"prefetch {U} K chunks while q is being produced")
    n=0
    for u in range(U):
        for g in range(4):
            for e in range(2):
                a(f"s_waitcnt vmcnt({fk-1})")
                ld(u,g,e); n+=1
                if n==1:
                    c("the wq slice has landed and the LDS flags are set: release waves 4-7")
                    a("s_waitcnt lgkmcnt(0)\ns_barrier")
        nextchunk()
    c("pick up q (bf16) once wave 4 has raised the flag")
    a(f"L_qw:\nds_read_b32 v{T}, v{VZ} offset:{L_QF}")
    a(f"ds_read_b128 v[{Q}:{Q+3}], v5 offset:{L_Q}\nds_read_b128 v[{Q+4}:{Q+7}], v5 offset:{L_Q+256}")
    a(f"s_sub_u32 s{sSP}, s{sSP}, 1\ns_cbranch_scc1 L_kloop\ns_waitcnt lgkmcnt(0)\nv_cmp_eq_u32 vcc, -1, v{T}\ns_cbranch_vccnz L_qw")
    def lw(lb):
        for i in range(len(lv)-1,-1,-1):
            a(f"s_waitcnt vmcnt({lv[i]-1})")
            if i: a(f"s_cmp_ge_i32 s{sLV}, {i}\ns_cbranch_scc1 L_o{lb}")
        if lead is not None and (lb.startswith("k") or leadv):
            a(f"s_cmp_ge_i32 s{sLV}, 0\ns_cbranch_scc1 L_o{lb}\ns_waitcnt vmcnt({lv[0]-2})")
        a(f"L_o{lb}:")
    def mark():
        a(f"s_memrealtime s[{sNOW}:{sNOW+1}]\nds_read_b64 v[{VR}:{VR+1}], v{VZ} offset:{L_REF}")
    def level():
        c("report progress; number of loads kept in flight for the next chunk from the lag behind the mean")
        a(f"v_readfirstlane_b32 s{sREF}, v{VR}\nv_readfirstlane_b32 s{sTAU}, v{VR+1}\nv_mov_b32 v{VR}, s{sNOW}\nv_mov_b32 v{VR+1}, s{sK}\nds_write_b64 v{VTS}, v[{VR}:{VR+1}] offset:{L_TS}")
        a(f"s_sub_u32 s{sT}, s{sNOW}, s{sREF}\ns_lshl_b32 s{sT}, s{sT}, 4\ns_mul_i32 s{sT2}, s{sK}, s{sTAU}\ns_sub_u32 s{sT}, s{sT}, s{sT2}")
        for i,t in enumerate(th): a(f"s_cmp_gt_i32 s{sT}, {t*16}\ns_cselect_b32 s{sLV}, {i+1}, {'s%d'%sLV if i else 0}")
        if lead is not None:
            a(f"s_cmp_lt_i32 s{sT}, {lead*16}\ns_cselect_b32 s{sT}, -1, s{sLV}\ns_bitcmp1_b32 {hex(lmask)}, s{sK}\ns_cselect_b32 s{sLV}, s{sT}, s{sLV}")
    lmask=sum(1<<k for k in range(lk0,lk1))|(sum(1<<k for k in range(24,31)) if leadv else 0)
    def kbody(slot, loop):
        for g in range(4):
            r=RB+slot*32+g*8
            a(f"v_mov_b32 v{S+g}, 0")
            for e in range(2):
                for k in range(4*e,4*e+4): a(f"v_dot2c_f32_bf16 v{S+g}, v{r+k}, v{Q+k}")
                if loop:
                    if e==1 and g==3:
                        a("s_waitcnt lgkmcnt(0)"); level()
                    lw(f"k{slot}_{g}_{e}"); ld(slot,g,e)
            if loop and g==2: mark()
        for d in DP4:
            for g in range(4): a(f"v_add_f32_dpp v{S+g}, v{S+g}, v{S+g} {d} {DPM}")
        if loop: a(f"v_add_u32 v{T}, s{sIDX+slot}, v{VP}")
        a(f"v_max3_f32 v{M}, v{S}, v{S+1}, v{M}\nv_max3_f32 v{M}, v{S+2}, v{S+3}, v{M}")
        a(f"s_mov_b64 exec, s[{sEX}:{sEX+1}]")
        if loop: a(f"ds_write_b128 v{T}, v[{S}:{S+3}] offset:{L_P}")
        else: a(f"ds_write_b128 v{VP}, v[{S}:{S+3}] offset:{L_P+slot*256}")
        a("s_mov_b64 exec, -1")
    c(f"---- K phase: consume a chunk, refill its registers with chunk s{sK} (16,17 = first V chunks)")
    a("L_kloop:")
    for u in range(2):
        if u==0: a(f"s_cmp_eq_u32 s{sK}, 16\ns_cselect_b64 s[6:7], s[8:9], s[6:7]")
        kbody(u,True)
        nextchunk()
        a(f"s_lshl_b32 s{sIDX+u}, s{sK}, 8\ns_add_u32 s{sK}, s{sK}, 1")
        for x in range(2,U):
            if (x-1)%2==u: a(f"s_cmp_eq_u32 s{sK}, {U+x}\ns_cbranch_scc1 L_x{x}")
        a(f"L_xr{u}:")
    a(f"s_cmp_lt_u32 s{sK}, 18\ns_cbranch_scc1 L_kloop")
    def cvt():
        for g in range(4): a(f"v_cvt_pk_bf16_f32 v{S+g}, v{S+g}, v{S+g}")
    def ands(g,pb):
        for k in range(4): a(f"v_and_b32 v{pb+k}, v{S+g}, v{MK+k}")
    def mm1(slot,g,e,pb):
        r=RB+slot*32+g*8+4*e; d=ACC+4*e
        a(f"v_mfma_f32_16x16x32_bf16 v[{d}:{d+3}], v[{pb}:{pb+3}], v[{r}:{r+3}], v[{d}:{d+3}]")
    def mm(slot,g,pb): mm1(slot,g,0,pb); mm1(slot,g,1,pb)
    def dodirty():
        a(f"s_mov_b64 exec, -1\ns_lshl2_add_u32 s{sT}, s2, s{sW}\ns_lshl_b32 s{sT}, s{sT}, 12\ns_add_u32 s{sT}, s{sT}, 0x100000\nv_lshl_add_u32 v6, v2, 4, s{sT}")
        for k in range(dirty): a(f"global_store_dwordx4 v6, v[16:19], s[18:19] offset:{k*1024}")
    if dirty and dearly: dodirty()
    c("---- wave max over its 256 scores, scores -> exp2(c*(s - max)) in place")
    a(f"v_lshrrev_b32 v6, 2, v2\nv_lshlrev_b32 v6, 8, v6\nv_and_b32 v5, 3, v2\nv_lshl_add_u32 v6, v5, 4, v6\nv_lshl_add_u32 v6, v1, 6, v6")
    a(f"v_mov_b32 v{T}, v{M}\nds_read_b128 v[{S}:{S+3}], v6 offset:{L_P}\nv_lshlrev_b32 v5, 2, v1")
    a(f"v_permlane16_swap_b32 v{M}, v{T}\nv_max_f32 v{T+1}, v{M}, v{T}\nv_max_f32 v{T+2}, v{M}, v{T}\nv_lshrrev_b32 v{VO}, 1, v3\nv_lshlrev_b32 v{VO}, 9, v{VO}")
    a(f"v_permlane32_swap_b32 v{T+1}, v{T+2}\nv_max_f32 v{M}, v{T+1}, v{T+2}\nv_mul_f32 v{M}, s{sC}, v{M}")
    a(f"s_waitcnt lgkmcnt(0)\nds_write_b32 v5, v{M} offset:{L_ML}")
    for g in range(4): a(f"v_fma_f32 v{S+g}, v{S+g}, s{sC}, -v{M}")
    for g in range(4): a(f"v_exp_f32 v{S+g}, v{S+g}")
    a(f"s_nop 0\nds_write_b128 v6, v[{S}:{S+3}] offset:{L_P}\nds_read_b128 v[{S}:{S+3}], v{VP} offset:{L_P}")
    a(f"ds_write_b32 v5, v{VONE} offset:{L_DN}")
    a(f"v_lshl_add_u32 v{VO}, v4, 5, v{VO}\nv_and_b32 v5, 1, v3\nv_lshl_add_u32 v{VO}, v5, 4, v{VO}\nv_lshl_add_u32 v{VO}, v1, 10, v{VO}")
    a("s_waitcnt lgkmcnt(1)")
    cvt(); ands(0,PB)
    a("s_nop 1")
    c("---- V phase: D[e][n] += sum_key p[key]*delta(e,e') * V[key][8n+e']  (A = masked p, B = raw V registers)")
    a("L_vloop:")
    for u in range(2):
        for g in range(4):
            mm(u,g,PB+4*(g&1))
            lw(f"{u}_{g}_0"); ld(u,g,0)
            if g<3: ands(g+1,PB+4*((g+1)&1))
            else:
                a("s_waitcnt lgkmcnt(0)")
                cvt(); level(); ands(0,PB)
            lw(f"{u}_{g}_1"); ld(u,g,1)
            if g==2:
                mark()
                a(f"v_add_u32 v{VP}, 256, v{VP}\nds_read_b128 v[{S}:{S+3}], v{VP} offset:{L_P}")
        nextchunk()
        a(f"s_add_u32 s{sK}, s{sK}, 1")
    a(f"s_cmp_lt_u32 s{sK}, 32\ns_cbranch_scc1 L_vloop")
    c("---- last two chunks")
    for g in range(4):
        a(f"s_waitcnt vmcnt({14-2*g})")
        mm(0,g,PB+4*(g&1))
        if g<3: ands(g+1,PB+4*((g+1)&1))
        if g==2: a(f"ds_read_b128 v[{S}:{S+3}], v{VP} offset:{L_P+256}")
        if g<2: a("s_nop 0")
    a("s_waitcnt lgkmcnt(0)")
    cvt()
    for g in range(4): ands(g,RB+4*g)
    for g in range(3):
        a(f"s_waitcnt vmcnt({6-2*g})"); mm(1,g,RB+4*g)
    a("s_waitcnt vmcnt(1)"); mm1(1,3,0,RB+12)
    a("s_waitcnt vmcnt(0)"); mm1(1,3,1,RB+12)
    a("s_mov_b32 exec_hi, 0\ns_nop 4")
    a(f"ds_write_b128 v{VO}, v[{ACC}:{ACC+3}] offset:{L_O}")
    a("s_not_b64 exec, exec")
    a(f"ds_write_b128 v{VO}, v[{ACC+4}:{ACC+7}] offset:{L_O}")
    a("s_waitcnt lgkmcnt(0)\ns_barrier")
    if dirty and not dearly: dodirty()
    a("s_endpgm")
    for x in range(2,U):
        c(f"start-up chunk {x} (no refill)")
        a(f"L_x{x}:")
        kbody(x,False)
        a(f"s_branch L_xr{(x-1)%2}")
    c("================= waves 4-7 =================")
    a("L_helper:")
    a(f"s_lshr_b32 s{sI}, s2, 3\nv_lshrrev_b32 v5, 3, v2\nv_and_b32 v7, 7, v2")
    a(f"s_cmp_eq_u32 s{sW}, 4\ns_cbranch_scc1 L_isq\ns_cmp_eq_u32 s{sW}, 7\ns_cbranch_scc1 L_w7")
    a("s_barrier\ns_branch L_hwait")
    c("wave 7: pull this kernel's code into L2, then hop over it (EXEC=0, branches only) to fill the instruction cache")
    a("L_w7:")
    a(f"s_getpc_b64 s[{sA}:{sA+1}]\nL_pc:\ns_sub_u32 s{sA}, s{sA}, L_pc-{MAIN}\ns_subb_u32 s{sA+1}, s{sA+1}, 0\nv_lshlrev_b32 v6, 6, v2")
    if not w7early: a("s_barrier")
    a(f"global_load_dword v10, v6, s[{sA}:{sA+1}]\nv_add_u32 v6, 0x1000, v6\nv_min_u32 v9, L_last-{MAIN}, v6\nglobal_load_dword v10, v9, s[{sA}:{sA+1}]")
    a(f"v_add_u32 v6, 0x1000, v6\nv_min_u32 v9, L_last-{MAIN}, v6\nglobal_load_dword v10, v9, s[{sA}:{sA+1}]")
    if "s" in opre:
        c("touch the d_ws lines this workgroup hands data over in and the K/V pages, before HBM is busy (values unused)")
        a(f"s_lshl3_add_u32 s{sT2}, s{sBH}, s{sS}\ns_lshl_b32 s{sT2}, s{sT2}, 10\ns_add_u32 s{sT2}, s{sT2}, {WS_OP}\nv_lshl_add_u32 v9, v2, 4, s{sT2}\ns_waitcnt lgkmcnt(0)\nglobal_load_dword v10, v9, s[18:19]")
    if "k" in opre or "v" in opre:
        a(f"s_lshl_b32 s{sT}, s{sBH}, 22\nv_and_b32 v9, 1, v2\nv_lshlrev_b32 v9, 21, v9\nv_add_u32 v9, s{sT}, v9")
        if "k" in opre: a("global_load_dword v10, v9, s[6:7] nt")
        if "v" in opre: a("global_load_dword v10, v9, s[8:9] nt")
    if "o" in opre:
        a(f"s_min_u32 s{sT}, s{sX}, 6\ns_lshl_b32 s{sT}, s{sT}, 7\nv_and_b32 v9, 1, v2\nv_mul_u32_u24 v9, 896, v9\nv_add_u32 v9, s{sT}, v9\ns_cmp_lt_u32 s{sS}, 7\ns_cbranch_scc1 L_noo\nglobal_load_dword v10, v9, s[14:15]\nL_noo:")
    if "q" in opre:
        a(f"s_lshr_b32 s{sB}, s{sBH}, 4\ns_lshl3_add_u32 s{sT2}, s{sB}, s{sS}\ns_lshl_b32 s{sT2}, s{sT2}, 8\ns_lshl_b32 s{sT}, s{sH}, 13\ns_add_u32 s{sT2}, s{sT2}, s{sT}\ns_add_u32 s{sT2}, s{sT2}, {WS_QP}")
        a(f"v_lshrrev_b32 v9, 5, v2\nv_lshlrev_b32 v9, 12, v9\nv_lshl_add_u32 v9, v4, 4, v9\nv_add_u32 v9, s{sT2}, v9\nglobal_load_dword v10, v9, s[18:19]")
    if "x" in opre:
        a(f"s_lshl_b32 s{sT}, s{sX}, 8\ns_add_u32 s{sT}, s{sT}, {WS_XI}\nv_lshl_add_u32 v9, v2, 2, s{sT}\nglobal_load_dword v10, v9, s[18:19]")
    if "y" in opre:
        a(f"s_and_b32 s{sT}, s{sI}, 3\ns_lshl2_add_u32 s{sT}, s{sX}, s{sT}\ns_lshl_b32 s{sT2}, s{sS}, 7\ns_add_u32 s{sT}, s{sT}, s{sT2}\ns_lshl_b32 s{sT}, s{sT}, 7\ns_add_u32 s{sT}, s{sT}, {WS_Y}")
        a(f"v_lshlrev_b32 v9, 12, v3\nv_lshl_add_u32 v9, v4, 3, v9\nv_add_u32 v9, s{sT}, v9\nglobal_load_dword v10, v9, s[18:19]")
    if w7early: a("s_barrier")
    a("s_waitcnt vmcnt(0)")
    if pad: a("s_mov_b64 exec, 0\ns_branch L_pad0")
    else: a("s_branch L_hwait")
    c("wave 4: partial q over rows 112*rq .., columns 256h + 64*cq .., both batches  (rq = 2b + (s>>2), cq = s&3)")
    a("L_isq:")
    a("s_setprio 3")
    a(f"s_lshr_b32 s{sB}, s{sBH}, 4\ns_lshr_b32 s{sT2}, s{sS}, 2\ns_lshl1_add_u32 s{sTK}, s{sB}, s{sT2}\ns_mul_i32 s{sT}, s{sTK}, 112")
    a(f"s_and_b32 s{sK}, s{sS}, 3")
    a(f"v_and_b32 v6, 1, v2\nv_mul_u32_u24 v6, 896, v6\nv_lshl_add_u32 v6, v3, 3, v6\ns_lshl_b32 s{sT}, s{sT}, 1\nv_add_u32 v6, s{sT}, v6")
    a(f"s_waitcnt lgkmcnt(0)\ns_load_dword s{sE}, s[18:19], 0")
    for u in range(7): a(f"global_load_dwordx2 v[{16+2*u}:{17+2*u}], v6, s[4:5] offset:{u*32}")
    a("v_lshrrev_b32 v7, 2, v2\nv_lshlrev_b32 v7, 7, v7\nv_and_b32 v8, 3, v2\nv_lshl_add_u32 v7, v8, 3, v7")
    a(f"s_lshl_b32 s{sT}, s{sH}, 13\ns_lshl_b32 s{sT2}, s{sTK}, 10\ns_add_u32 s{sT2}, s{sT2}, s{sT}\ns_lshl_b32 s{sK}, s{sK}, 8\ns_add_u32 s{sT2}, s{sT2}, s{sK}\ns_add_u32 s{sT2}, s{sT2}, {WS_QP+2048}")
    a(f"v_lshl_add_u32 v8, v2, 2, s{sT2}")
    a(f"s_lshl_b32 s{sT2}, s{sB}, 12\ns_add_u32 s{sT}, s{sT}, s{sT2}\ns_add_u32 s{sT}, s{sT}, {WS_QP}\nv_lshl_add_u32 v9, v2, 4, s{sT}")
    c("team marker: launch tag ^ (XCC id << 28)")
    a(f"s_lshl_b32 s{sT}, s{sX}, 8\ns_add_u32 s{sT}, s{sT}, {WS_XI}\nv_and_b32 v14, 31, v2\nv_lshl_add_u32 v14, v14, 2, s{sT}\ns_lshl2_add_u32 s{sT}, s{sI}, s{sT}\nv_mov_b32 v12, s{sT}")
    a(f"s_getreg_b32 s{sXV}, hwreg(HW_REG_XCC_ID, 0, 4)\ns_lshl_b32 s{sXV}, s{sXV}, 28")
    a(f"s_waitcnt lgkmcnt(0)\ns_add_u32 s{sE}, s{sE}, 1\ns_xor_b32 s{sXV}, s{sXV}, s{sE}\nv_mov_b32 v13, s{sXV}\nglobal_store_dword v12, v13, s[18:19]")
    a(f"s_and_b32 s{sTAG}, s{sE}, {TAGM}\nv_mov_b32 v10, s{sTAG}\ns_movk_i32 s{sC}, {TAGM}")
    a("s_barrier")
    if qs: a(f"s_sleep {qs}")
    a(f"global_load_dword v15, v14, s[18:19] sc1\ns_waitcnt vmcnt(2)" if not late else "s_waitcnt vmcnt(1)")
    B0=48; D0=32
    def trs(u):
        for k in range(4): a(f"ds_read_b64_tr_b16 v[{B0+u*8+2*k}:{B0+u*8+2*k+1}], v7 offset:{L_WQ+u*2048+k*32}")
    trs(0); trs(1); trs(2)
    for u in range(7):
        if u+3<7:
            a("s_waitcnt lgkmcnt(8)"); trs(u+3)
        else: a(f"s_waitcnt lgkmcnt({4*(6-u)})")
        for k in range(4):
            cc="0" if u==0 else f"v[{D0+4*k}:{D0+4*k+3}]"
            a(f"v_mfma_f32_16x16x16_bf16 v[{D0+4*k}:{D0+4*k+3}], v[{16+2*u}:{17+2*u}], v[{B0+u*8+2*k}:{B0+u*8+2*k+1}], {cc}")
    a("s_nop 5" if not late else "global_load_dword v15, v14, s[18:19] sc1\ns_nop 4")
    for k in range(1,4):
        for bb in range(2): a(f"v_mov_b32_dpp v{D0+bb}, v{D0+4*k+bb} quad_perm:[0,1,2,3] row_mask:{hex(1<<k)} bank_mask:0xf")
        if k<3: a("s_nop 0")
    for bb in range(2): a(f"v_bfi_b32 v{D0+bb}, s{sC}, v10, v{D0+bb}")
    a(f"s_waitcnt vmcnt(0)\nv_cmp_ne_u32 vcc, s{sXV}, v15\ns_cbranch_vccnz L_qrem")
    a(f"global_store_dword v8, v{D0}, s[18:19] offset:-2048\nglobal_store_dword v8, v{D0+1}, s[18:19] offset:2048\ns_branch L_qpub\nL_qrem:")
    a(f"global_store_dword v8, v{D0}, s[18:19] offset:-2048 sc1\nglobal_store_dword v8, v{D0+1}, s[18:19] offset:2048 sc1")
    a(f"L_qpub:\ns_mov_b32 s{sSP}, {SPIN}\ns_waitcnt vmcnt(0)")
    c("gather the four partials of q[b][h]")
    a(f"L_qpoll:\ns_sleep {qback}")
    for k in range(4): a(f"global_load_dwordx4 v[{16+4*k}:{19+4*k}], v9, s[18:19] offset:{k*1024} sc1")
    a(f"s_sub_u32 s{sSP}, s{sSP}, 1\ns_cbranch_scc1 L_qgo")
    a("s_waitcnt vmcnt(0)")
    for k in range(16): a(f"v_xor_b32 v{16+k}, s{sTAG}, v{16+k}")
    a("v_or3_b32 v12, v16, v17, v18")
    for k in range(3,15,2): a(f"v_or3_b32 v12, v12, v{16+k}, v{17+k}")
    a(f"v_or_b32 v12, v12, v31\nv_and_b32 v12, s{sC}, v12\nv_cmp_ne_u32 vcc, 0, v12\ns_cbranch_vccnz L_qpoll")
    a("L_qgo:")
    for r in range(4): a(f"v_add_f32 v{16+r}, v{16+r}, v{20+r}\nv_add_f32 v{24+r}, v{24+r}, v{28+r}")
    for r in range(4): a(f"v_add_f32 v{16+r}, v{16+r}, v{24+r}")
    a(f"v_cvt_pk_bf16_f32 v16, v16, v17\nv_cvt_pk_bf16_f32 v17, v18, v19\nv_lshlrev_b32 v5, 3, v2\nds_write_b64 v5, v[16:17] offset:{L_Q}")
    a(f"v_mov_b32 v5, 0\nv_mov_b32 v7, s{sE}\nds_write_b32 v5, v7 offset:{L_E}\nds_write_b32 v5, v5 offset:{L_QF}")
    a("s_setprio 0\ns_branch L_hgo")
    if pad: a("@PADEND@\ns_mov_b64 exec, -1")
    a(f"L_hwait:\nv_mov_b32 v5, 0\ns_mov_b32 s{sSP}, {SPIN}")
    a(f"L_hw:\ns_sleep 4\nds_read_b32 v8, v5 offset:{L_QF}\ns_sub_u32 s{sSP}, s{sSP}, 1\ns_cbranch_scc1 L_hgo\ns_waitcnt lgkmcnt(0)\nv_cmp_eq_u32 vcc, -1, v8\ns_cbranch_vccnz L_hw")
    WO=64
    c(f"---- addresses for the tail; s{sK} = wave-4, s{sB} = 4x + (i&3)")
    a("L_hgo:")
    a(f"v_mov_b32 v28, 0\nds_read_b32 v6, v28 offset:{L_E}")
    a(f"s_sub_u32 s{sK}, s{sW}, 4\ns_movk_i32 s{sC}, {TAGM}\ns_not_b32 s{sAT}, s{sC}")
    a(f"s_and_b32 s{sT}, s{sI}, 3\ns_lshl2_add_u32 s{sB}, s{sX}, s{sT}\nv_and_b32 v7, 7, v2\nv_lshlrev_b32 v27, 4, v2")
    a(f"s_lshl_b32 s{sT}, s{sX}, 8\ns_add_u32 s{sT}, s{sT}, {WS_XI}\nv_and_b32 v14, 31, v2\nv_lshl_add_u32 v14, v14, 2, s{sT}")
    a("global_load_dword v11, v14, s[18:19] sc1")
    c("team 'projection done' markers: v12 own, v14 all 28")
    a(f"s_add_u32 s{sT}, s{sT}, 128\nv_min_u32 v14, 27, v2\nv_lshl_add_u32 v14, v14, 2, s{sT}\ns_lshl2_add_u32 s{sT}, s{sI}, s{sT}\nv_mov_b32 v12, s{sT}")
    a(f"s_waitcnt lgkmcnt(0)\nv_readfirstlane_b32 s{sE}, v6\nv_mov_b32 v13, v6")
    a(f"s_getreg_b32 s{sXV}, hwreg(HW_REG_XCC_ID, 0, 4)\ns_lshl_b32 s{sXV}, s{sXV}, 28\ns_xor_b32 s{sXV}, s{sXV}, s{sE}")
    a(f"s_and_b32 s{sTAG}, s{sE}, {TAGM}\nv_mov_b32 v15, s{sTAG}")
    c("o gather: v20 (batch 0), v25 (batch 1): 8 producers x 32 rows")
    a(f"s_lshr_b32 s{sT}, s{sB}, 1\ns_lshl_b32 s{sT}, s{sT}, 13\ns_and_b32 s{sT2}, s{sB}, 1\ns_lshl2_add_u32 s{sT2}, s{sT2}, s{sK}\ns_lshl_b32 s{sT2}, s{sT2}, 7\ns_add_u32 s{sT}, s{sT}, s{sT2}\ns_add_u32 s{sT}, s{sT}, {WS_OP}")
    a(f"v_lshrrev_b32 v6, 3, v2\nv_lshlrev_b32 v6, 10, v6\nv_lshl_add_u32 v6, v7, 4, v6\nv_add_u32 v20, s{sT}, v6\nv_add_u32 v25, 0x20000, v20")
    c("own o: LDS v21, d_ws v22")
    a(f"s_lshl_b32 s{sT}, s{sK}, 8\nv_lshl_add_u32 v21, v2, 2, s{sT}\ns_lshl3_add_u32 s{sT2}, s{sBH}, s{sS}\ns_lshl_b32 s{sT2}, s{sT2}, 10\ns_add_u32 s{sT2}, s{sT2}, {WS_OP}\nv_add_u32 v22, s{sT2}, v21\nv_add_u32 v21, {L_O}, v21")
    c("partial outputs: store v23, reducer gather v24, d_out v26")
    a(f"s_lshl2_add_u32 s{sT}, s{sS}, s{sK}\ns_lshl_b32 s{sT}, s{sT}, 5\ns_add_u32 s{sT}, s{sT}, s{sB}\ns_lshl_b32 s{sT}, s{sT}, 7\ns_add_u32 s{sT}, s{sT}, {WS_Y}\nv_lshl_add_u32 v23, v2, 2, s{sT}")
    a(f"s_lshl_b32 s{sT}, s{sB}, 12\ns_lshl_b32 s{sT2}, s{sK}, 5\ns_add_u32 s{sT}, s{sT}, s{sT2}\ns_add_u32 s{sT}, s{sT}, {WS_Y}")
    a(f"v_lshrrev_b32 v6, 1, v2\nv_lshlrev_b32 v6, 7, v6\nv_and_b32 v8, 1, v2\nv_lshl_add_u32 v6, v8, 4, v6\nv_add_u32 v24, s{sT}, v6")
    a(f"s_lshr_b32 s{sT}, s{sK}, 1\ns_mul_i32 s{sT}, s{sT}, 896\ns_lshl_b32 s{sT2}, s{sB}, 5\ns_add_u32 s{sT}, s{sT}, s{sT2}\ns_and_b32 s{sT2}, s{sK}, 1\ns_lshl4_add_u32 s{sT}, s{sT2}, s{sT}\nv_lshl_add_u32 v26, v8, 3, s{sT}\nv_lshl_add_u32 v26, v3, 1, v26")
    c("LDS: v29 bf16 o write, v30 A-operand read, v9 transposing wo read")
    a(f"s_lshl_b32 s{sT}, s{sK}, 6\nv_lshl_add_u32 v29, v7, 3, s{sT}\nv_lshl_add_u32 v29, v3, 1, v29\nv_bfe_u32 v6, v2, 3, 1\nv_lshl_add_u32 v29, v6, 8, v29\nv_lshlrev_b32 v30, 4, v3\nv_lshl_add_u32 v30, v8, 8, v30")
    a(f"v_and_b32 v10, 1, v3\nv_lshl_add_u32 v6, v10, 1, v6\nv_xor_b32 v6, s{sK}, v6\nv_bfe_u32 v9, v2, 2, 2\nv_lshl_add_u32 v9, v3, 3, v9\nv_lshlrev_b32 v9, 7, v9\nv_lshl_add_u32 v9, v6, 5, v9\nv_and_b32 v6, 3, v2\nv_lshl_add_u32 v9, v6, 3, v9")
    c(f"s{sLOC} = 1 when all 32 team members are on this XCD")
    a(f"s_waitcnt vmcnt(0)\nv_cmp_ne_u32 vcc, s{sXV}, v11\ns_cmp_eq_u64 vcc, 0\ns_cselect_b32 s{sLOC}, 1, 0")
    a(f"s_cmp_eq_u32 s{sW}, 5\ns_cbranch_scc1 L_bal\ns_cmp_lg_u32 s{sW}, 4\ns_cbranch_scc1 L_nogat")
    def pwait(lb,val,sl):
        a(f"s_mov_b32 s{sSP}, {SPIN}\nL_{lb}:\ns_sleep {sl}")
        a(f"ds_read_b64 v[48:49], v28 offset:{L_TS}\ns_sub_u32 s{sSP}, s{sSP}, 1\ns_cbranch_scc1 L_{lb}go\ns_waitcnt lgkmcnt(0)\nv_cmp_gt_i32 vcc, {val}, v49\ns_cbranch_vccnz L_{lb}\nL_{lb}go:")
    c("---- wave 4: workgroup (max, sum) after the K phase, exchanged inside (b,h) -> factor exp2(wave max - M)/L per wave")
    a(f"v_and_b32 v16, 12, v2\ns_mov_b32 s{sSP}, {SPIN}")
    a(f"L_c1:\ns_sleep 8\nds_read_b32 v17, v16 offset:{L_DN}\ns_sub_u32 s{sSP}, s{sSP}, 1\ns_cbranch_scc1 L_c1go\ns_waitcnt lgkmcnt(0)\nv_cmp_eq_u32 vcc, -1, v17\ns_cbranch_vccnz L_c1\nL_c1go:")
    a(f"ds_read_b32 v17, v16 offset:{L_ML}")
    for i in range(4): a(f"ds_read_b128 v[{32+4*i}:{35+4*i}], v27 offset:{L_P+i*1024}")
    a(f"s_mul_i32 s{sT}, s2, {XST}\ns_add_u32 s{sT}, s{sT}, {WS_X}\nv_add_u32 v18, s{sT}, v27")
    a("s_waitcnt lgkmcnt(0)")
    a(f"v_max_f32_dpp v56, v17, v17 row_ror:4 {DPM}\nv_add_f32 v32, v32, v33\nv_add_f32 v34, v34, v35")
    a(f"v_max_f32_dpp v56, v56, v56 row_ror:8 {DPM}\nv_and_b32 v56, s{sAT}, v56\nv_sub_f32 v19, v17, v56\nv_exp_f32 v19, v19")
    for r in range(36,48): a(f"v_add_f32 v{32+2*(r&1)}, v{32+2*(r&1)}, v{r}")
    a("v_add_f32 v32, v32, v34\nv_mul_f32 v57, v32, v19")
    for d in DP4: a(f"s_nop 1\nv_add_f32_dpp v57, v57, v57 {d} {DPM}")
    a("v_mov_b32 v58, v57\ns_nop 1\nv_permlane16_swap_b32 v57, v58\nv_add_f32 v57, v57, v58\nv_mov_b32 v58, v57\ns_nop 1\nv_permlane32_swap_b32 v57, v58\nv_add_f32 v57, v57, v58")
    a(f"v_or_b32 v56, v56, v15\nv_bfi_b32 v57, s{sC}, v15, v57\nv_mov_b32 v58, s{sE}\nv_mov_b32 v59, s{sE}")
    a("s_mov_b64 exec, 0xff" if mlfull else "s_mov_b64 exec, 1")
    a(f"s_cmp_eq_u32 s{sLOC}, 0\ns_cbranch_scc1 L_mrem\nglobal_store_dwordx4 v18, v[56:59], s[18:19]\ns_branch L_mdone\nL_mrem:")
    a("global_store_dwordx4 v18, v[56:59], s[18:19] sc1\nL_mdone:\ns_mov_b64 exec, -1")
    a(f"s_and_b32 s{sT}, s2, 31\ns_mul_i32 s{sT}, s{sT}, {XST}\ns_add_u32 s{sT}, s{sT}, {WS_X}\nv_mul_u32_u24 v18, {32*XST}, v7\nv_add_u32 v18, s{sT}, v18")
    pwait("c2",17+GD,8)
    a(f"s_mov_b32 s{sSP}, {SPIN}\ns_branch L_xp1")
    a("L_xp:\ns_sleep 32\nL_xp1:")
    a("global_load_dwordx4 v[56:59], v18, s[18:19] sc1")
    a(f"s_sub_u32 s{sSP}, s{sSP}, 1\ns_cbranch_scc1 L_xgo\ns_waitcnt vmcnt(0)")
    a(f"v_xor_b32 v56, s{sTAG}, v56\nv_xor_b32 v57, s{sTAG}, v57\nv_xor_b32 v59, s{sE}, v59\nv_or_b32 v31, v56, v57")
    a(f"v_and_or_b32 v31, v31, s{sC}, v59\nv_cmp_ne_u32 vcc, 0, v31\ns_cbranch_vccnz L_xp\nL_xgo:")
    a(f"v_max_f32_dpp v32, v56, v56 {DP4[0]} {DPM}\ns_nop 1\nv_max_f32_dpp v32, v32, v32 {DP4[1]} {DPM}\ns_nop 1\nv_max_f32_dpp v32, v32, v32 {DP4[2]} {DPM}")
    a("v_sub_f32 v56, v56, v32\nv_sub_f32 v17, v17, v32\nv_exp_f32 v56, v56\nv_exp_f32 v17, v17\nv_mul_f32 v33, v56, v57")
    for d in DP4[:3]: a(f"s_nop 1\nv_add_f32_dpp v33, v33, v33 {d} {DPM}")
    a(f"v_rcp_f32 v33, v33\ns_nop 0\nv_mul_f32 v17, v17, v33\nds_write_b32 v16, v17 offset:{L_F}")
    a("s_branch L_nogat")
    sN=sTK; sPM=sH
    c(f"---- wave 5: mean progress mark of workgroups 0..63 at chunks {', '.join(str(n1+P*i) for i in range(NC))} -> reference line (offset, slope)")
    a("L_bal:")
    a(f"s_mul_i32 s{sT}, s2, {XST}\ns_add_u32 s{sT}, s{sT}, {WS_T}\nv_lshl_add_u32 v18, v4, 3, s{sT}\nv_and_b32 v19, {NS-1}, v2\nv_mul_u32_u24 v19, {XST}, v19\nv_add_u32 v19, {WS_T}, v19")
    a(f"s_mov_b32 s{sN}, {n1}\ns_mov_b32 s{sTV}, {int(tau0*16)}\nv_mov_b32 v51, s{sE}\ns_mov_b32 s{sPM}, 0")
    if tpre:
        a(f"s_cmp_ge_u32 s2, {NS}\ns_cbranch_scc1 L_pc0\nv_min_u32 v52, {NC-1}, v2\nv_lshl_add_u32 v52, v52, 14, v18\nglobal_load_dword v53, v52, s[18:19]")
    a("L_pc0:")
    pwait("p1",f"s{sN}",4)
    a(f"v_subrev_u32 v49, s{sN}, v49\nv_mul_u32_u24 v49, {int(tau0)}, v49\nv_sub_u32 v50, v48, v49")
    a(f"s_cmp_ge_u32 s2, {NS}\ns_cbranch_scc1 L_pc1\ns_mov_b64 exec, {'0xffff' if full else 1}\nglobal_store_dwordx2 v18, v[50:51], s[18:19] sc1\ns_mov_b64 exec, -1\nL_pc1:")
    a(f"s_add_u32 s{sT}, s{sN}, {D}")
    pwait("p2",f"s{sT}",4)
    a(f"s_mov_b32 s{sSP}, {SPIN}\ns_branch L_pp1\nL_pp:\ns_sleep 32\nL_pp1:")
    a("global_load_dwordx2 v[52:53], v19, s[18:19] sc1")
    a(f"s_sub_u32 s{sSP}, s{sSP}, 1\ns_cbranch_scc1 L_ppgo\ns_waitcnt vmcnt(0)\nv_cmp_ne_u32 vcc, s{sE}, v53\ns_and_b64 exec, exec, vcc\ns_cbranch_scc1 L_pp\nL_ppgo:\ns_mov_b64 exec, -1")
    a(f"v_sub_u32 v52, v52, v50\nv_add_u32 v18, {64*XST}, v18\nv_add_u32 v19, {64*XST}, v19")
    for d in DP4: a(f"v_add_u32_dpp v52, v52, v52 {d} {DPM}\ns_nop 1")
    a(f"v_readlane_b32 s{sT}, v52, 0\nv_readlane_b32 s{sT2}, v52, 16\nv_readlane_b32 s{sREF}, v52, 32\nv_readlane_b32 s{sTAU}, v52, 48\nv_readfirstlane_b32 s{sXV}, v50")
    a(f"s_add_u32 s{sT}, s{sT}, s{sT2}\ns_add_u32 s{sREF}, s{sREF}, s{sTAU}\ns_add_u32 s{sT}, s{sT}, s{sREF}\ns_ashr_i32 s{sT}, s{sT}, 6\ns_add_u32 s{sT}, s{sT}, s{sXV}")
    a(f"s_sub_u32 s{sT2}, s{sT}, s{sPM}\ns_mul_i32 s{sT2}, s{sT2}, {int(16*256/P)}\ns_lshr_b32 s{sT2}, s{sT2}, 8\ns_max_u32 s{sT2}, s{sT2}, {int(tau0*16)}\ns_cmp_eq_u32 s{sN}, {n1}\ns_cselect_b32 s{sTV}, s{sTV}, s{sT2}\ns_mov_b32 s{sPM}, s{sT}")
    a(f"s_mul_i32 s{sT2}, s{sN}, s{sTV}\ns_lshr_b32 s{sT2}, s{sT2}, 4\ns_sub_u32 s{sT}, s{sT}, s{sT2}\ns_add_u32 s{sT}, s{sT}, {a0}\nv_mov_b32 v52, s{sT}\nv_mov_b32 v53, s{sTV}\nds_write_b64 v28, v[52:53] offset:{L_REF}")
    a(f"s_add_u32 s{sN}, s{sN}, {P}\ns_cmp_lt_u32 s{sN}, {n1+P*NC}\ns_cbranch_scc1 L_pc0")
    c("every workgroup has read the tag word by now (the marks cover all heads): advance it for the next launch")
    a(f"s_cmp_lg_u32 s2, 255\ns_cbranch_scc1 L_nogat\nglobal_store_dword v28, v51, s[18:19] sc1")
    c("---- all four: pick up the per-wave factors, wait for the streaming waves")
    a("L_nogat:")
    a(f"s_mov_b32 s{sSP}, {SPIN}\ns_branch L_f1\nL_f0:\ns_sleep 8\nL_f1:\nds_read_b128 v[44:47], v28 offset:{L_F}\ns_sub_u32 s{sSP}, s{sSP}, 1\ns_cbranch_scc1 L_fgo\ns_waitcnt lgkmcnt(0)\nv_cmp_eq_u32 vcc, -1, v44\ns_cbranch_vccnz L_f0\nL_fgo:")
    if "l" in opre: a("global_load_dword v11, v22, s[18:19]")
    if "w" in opre: a(f"s_cmp_eq_u32 s{sLOC}, 0\ns_cbranch_scc1 L_npw\nv_xor_b32 v11, 1, v15\nglobal_store_dword v22, v11, s[18:19]\nL_npw:")
    if "O" in opre:
        a(f"s_cmp_lt_u32 s{sS}, 7\ns_cbranch_scc1 L_noo2\ns_cmp_eq_u32 s{sX}, 7\ns_cbranch_scc1 L_noo2\nglobal_load_ushort v10, v26, s[14:15]\nL_noo2:")
    if hoist:
        c("wo tile as MFMA B operands (the factors imply that the streaming waves are past their weight loads)")
        for kp in range(4):
            for j in range(2):
                r=WO+kp*4+j*2
                a(f"ds_read_b64_tr_b16 v[{r}:{r+1}], v9 offset:{L_WO+kp*4096+j*512}")
    a(f"s_mov_b32 s{sSP}, {SPIN}\ns_cmp_lg_u32 s{sLOC}, 0")
    if hoist: a("@PAD@\ns_waitcnt vmcnt(0) lgkmcnt(0)\ns_barrier")
    else: a("s_waitcnt vmcnt(0) lgkmcnt(0)\ns_barrier\nL_tail0:")
    a("ds_read2st64_b32 v[32:33], v21 offset0:0 offset1:4\nds_read2st64_b32 v[34:35], v21 offset0:8 offset1:12")
    a("s_waitcnt lgkmcnt(0)")
    a(f"v_pk_mul_f32 v[32:33], v[32:33], v[44:45]\nv_pk_fma_f32 v[32:33], v[34:35], v[46:47], v[32:33]\nv_add_f32 v32, v32, v33\nv_bfi_b32 v32, s{sC}, v15, v32")
    a(f"s_cbranch_scc0 L_orem\nglobal_store_dword v22, v32, s[18:19] {ofl}\nL_odone:")
    a(f"s_cmp_ge_u32 s{sI}, 28\ns_cbranch_scc1 L_final")
    c("---- projection workgroups: sum 8 partial o per batch, bf16, times the wo tile")
    if not hoist:
        a("global_load_dwordx4 v[36:39], v20, s[18:19] sc1\nglobal_load_dwordx4 v[40:43], v25, s[18:19] sc1")
        for kp in range(4):
            for j in range(2):
                r=WO+kp*4+j*2
                a(f"ds_read_b64_tr_b16 v[{r}:{r+1}], v9 offset:{L_WO+kp*4096+j*512}")
        a("s_branch L_h1a")
    a("L_h1poll:")
    a("global_load_dwordx4 v[36:39], v20, s[18:19] sc1\nglobal_load_dwordx4 v[40:43], v25, s[18:19] sc1")
    a(f"s_sub_u32 s{sSP}, s{sSP}, 1\ns_cbranch_scc1 L_h1go")
    a("@PAD@\ns_waitcnt vmcnt(0)" if hoist else "L_h1a:\ns_waitcnt vmcnt(0)")
    for r in range(36,44): a(f"v_xor_b32 v{r}, s{sTAG}, v{r}")
    a(f"v_or3_b32 v31, v36, v37, v38\nv_or3_b32 v32, v39, v40, v41\nv_or3_b32 v31, v31, v42, v43\nv_or_b32 v31, v31, v32\nv_and_b32 v31, s{sC}, v31")
    a("v_cmp_ne_u32 vcc, 0, v31\ns_and_b64 exec, exec, vcc\ns_cbranch_scc1 L_h1poll\nL_h1go:\ns_mov_b64 exec, -1")
    a("v_permlane32_swap_b32 v36, v38\nv_permlane32_swap_b32 v37, v39\nv_permlane32_swap_b32 v40, v42\nv_permlane32_swap_b32 v41, v43")
    a("v_add_f32 v36, v36, v38\nv_add_f32 v37, v37, v39\nv_add_f32 v40, v40, v42\nv_add_f32 v41, v41, v43")
    a("v_permlane16_swap_b32 v36, v37\nv_add_f32 v36, v36, v37\nv_permlane16_swap_b32 v40, v41\nv_add_f32 v40, v40, v41")
    a("v_add_f32_dpp v37, v36, v36 row_ror:8 row_mask:0xf bank_mask:0x3\ns_nop 1\nv_add_f32_dpp v37, v40, v40 row_ror:8 row_mask:0xf bank_mask:0xc\nv_cvt_pk_bf16_f32 v37, v37, v37")
    a(f"ds_write_b16 v29, v37 offset:{L_OB}\ns_waitcnt lgkmcnt(0)\ns_barrier")
    for kp in range(4): a(f"ds_read_b128 v[{40+4*kp}:{43+4*kp}], v30 offset:{L_OB+kp*64}")
    if hoist: a("@PAD@")
    for kp in range(4):
        a(f"s_waitcnt lgkmcnt({3-kp})")
        cc="0" if kp==0 else "v[56:59]"
        a(f"v_mfma_f32_16x16x32_bf16 v[56:59], v[{40+4*kp}:{43+4*kp}], v[{WO+kp*4}:{WO+kp*4+3}], {cc}")
    a(f"s_mov_b32 exec_hi, 0\ns_nop 6")
    a(f"v_mov_b32_dpp v56, v57 quad_perm:[0,1,2,3] row_mask:0x2 bank_mask:0xf\nv_bfi_b32 v56, s{sC}, v15, v56")
    a("global_store_dword v23, v56, s[18:19] sc1\nglobal_store_dword v12, v13, s[18:19]\ns_endpgm")
    c("---- reducer workgroups: 32 partials x 8 outputs per wave; first read once the own team is through")
    a("L_final:")
    a(f"s_cmp_eq_u32 s{sX}, 7\ns_cbranch_scc1 L_end\ns_cmp_eq_u32 s{sLOC}, 0\ns_cbranch_scc1 L_h2poll")
    a(f"L_g2:\nglobal_load_dword v32, v14, s[18:19] sc1\ns_sub_u32 s{sSP}, s{sSP}, 1\ns_cbranch_scc1 L_h2go\ns_waitcnt vmcnt(0)\nv_cmp_ne_u32 vcc, s{sE}, v32\ns_cbranch_vccnz L_g2")
    a("L_h2poll:\nglobal_load_dwordx4 v[32:35], v24, s[18:19] sc1")
    if hoist: a("@PAD@")
    a(f"s_sub_u32 s{sSP}, s{sSP}, 1\ns_cbranch_scc1 L_h2go\ns_waitcnt vmcnt(0)")
    for r in range(4): a(f"v_xor_b32 v{32+r}, s{sTAG}, v{32+r}")
    a(f"v_or3_b32 v31, v32, v33, v34\nv_or_b32 v31, v31, v35\nv_and_b32 v31, s{sC}, v31")
    a("v_cmp_ne_u32 vcc, 0, v31\ns_and_b64 exec, exec, vcc\ns_cbranch_scc1 L_h2poll\nL_h2go:\ns_mov_b64 exec, -1")
    a("v_permlane32_swap_b32 v32, v34\nv_permlane32_swap_b32 v33, v35")
    a("v_add_f32 v32, v32, v34\nv_add_f32 v33, v33, v35")
    a("s_nop 1\nv_permlane16_swap_b32 v32, v33\nv_add_f32 v32, v32, v33")
    for d in ("row_ror:8","row_ror:4","row_ror:2"): a(f"s_nop 1\nv_add_f32_dpp v32, v32, v32 {d} {DPM}")
    a("s_mov_b32 exec_lo, 0x00030003\ns_mov_b32 exec_hi, 0x00030003")
    a("v_cvt_pk_bf16_f32 v32, v32, v32\nglobal_store_short v26, v32, s[14:15]")
    a("L_end:\ns_endpgm")
    a("L_orem:\nglobal_store_dword v22, v32, s[18:19] sc1\nL_last:\ns_branch L_odone")
    a(f""".section .rodata,"a"
.p2align 6
.amdhsa_kernel {MAIN}
  .amdhsa_next_free_vgpr {NV}
  .amdhsa_next_free_sgpr 56
  .amdhsa_accum_offset {(NV+3)//4*4}
  .amdhsa_group_segment_fixed_size 0
  .amdhsa_kernarg_size 64
  .amdhsa_user_sgpr_count 2
  .amdhsa_user_sgpr_kernarg_segment_ptr 1
  .amdhsa_system_sgpr_workgroup_id_x 1
.end_amdhsa_kernel""")
    if pad:
        out=[]; on=False; acc=0; n=0; prev=""
        def sz(l):
            if l.endswith(":") or not l or l.startswith(";"): return 0
            op=l.split()[0]
            if op.startswith(("global_","ds_","v_mfma","v_max3","v_fma","v_cvt_pk","v_lshl_add","s_memreal","v_pk","v_bfi","v_or3")) or "dpp" in op or "0x" in l: return 8
            return 4
        for l in o:
            if l=="@PAD@":
                out += [f"L_pad{n}:", f"s_cbranch_execz L_pad{n+1}"]; n+=1; continue
            if l in ("L_kloop:","L_tail0:"): on=True; acc=pad
            if l in ("L_helper:","L_end:"): on=False
            if on and acc>=pad and sz(l) and "exec, exec, vcc" not in prev and l!="s_mov_b64 exec, -1":
                out += [f"L_pad{n}:", f"s_cbranch_execz L_pad{n+1}"]; n+=1; acc=4
            out.append(l); acc+=sz(l)
            if sz(l): prev=l
        o=[l.replace("@PADEND@",f"L_pad{n}:") for l in out]
    txt=[]
    incode=False
    for l in o:
        if l==MAIN+":": incode=True
        if l.startswith(".section"): incode=False
        txt.append(("    "+l) if incode and not l.endswith(":") else l)
    open(name,"w").write("\n".join(txt)+"\n")
    return build(name)
if __name__=="__main__":
    hdr=open("standalone__mha_block_cached__decode.s.ref").read().split("; Override")[0]
    print(gen("final5.s",hdr=hdr))
```

```python
import gen_f4 as H
L=[]
def G(n,**k): L.append(H.gen(n+".s",**k))
G("a"); G("a0_0",a0=0); G("a0_20",a0=20); G("t107",tau0=107.0); G("t1064",tau0=106.4); G("n4",n1=4,P=8); G("n4p9",n1=4,P=9); G("d1",D=1); G("th20",th=(0,20)); G("l568",lv=(5,6,8)); G("gd8",GD=8); G("a_")
print(" ".join(L))
```

```python
import sys
from asm import build
MAIN="standalone__mha_block_cached__decode_kernel"
C_SCALE=0x3db8aa3b
TAGM=0x3ff
WS_XI=0x1000; WS_X=0x10000; WS_T=0x20000; WS_QP=0x40000; WS_OP=0x80000; WS_Y=0xC0000; XST=256
L_F=0; L_DN=16; L_TS=32; L_QF=64; L_REF=264; L_E=276; L_ML=288; L_Q=512; L_OB=1024; L_O=2048; L_P=6144
L_WQ=L_P+4096; L_WO=L_WQ+14336; LDS_SZ=L_WO+16384
SPIN=1<<19
DPM="row_mask:0xf bank_mask:0xf"
DP4=["quad_perm:[1,0,3,2]","quad_perm:[2,3,0,1]","row_half_mirror","row_mirror"]

DOC = r"""
; ---------------------------------------------------------------------------------------------
; One persistent launch, 256 workgroups (one per CU) of 8 waves.
;   wg -> team x = wg&7, head h = 2x + bit3, batch b = bit4, split s = wg>>5
;   The workgroup owns 16 chunks of 64 keys of (b,h): chunk k covers keys (s + 8k)*64 ...
; Waves 0-3 stream: the weight tiles (-> LDS), all K chunks (scores -> LDS), then all V chunks (MFMA with
;   p = exp2(c*(score - wave max)); the true softmax max / sum are applied when the waves are merged).
; Wave 4: q = x @ wq (a 112x64 slice per workgroup, exchanged through d_ws), later the
;   (max, sum) exchange of the 8 workgroups of (b,h).
; Wave 5: load balancing.  HBM is saturated with 5 loads in flight per wave; a wave that is
;   behind the chip-wide mean progress keeps 6 or 7 in flight so that all CUs finish together.
;   The clock is only read to compare progress; nothing waits on it and no result depends on it.
; Waves 4-7 tail: merge o, exchange it inside the team, multiply by a 128x64 tile of wo,
;   hand the partial outputs to 28 reducer workgroups which write d_out.
; Hand-offs through d_ws carry a per-launch tag (d_ws word 0 + 1) so that leftovers of an earlier
;   launch are never taken for data; stores are write-through (sc1) unless every team member
;   reported the same XCC id, in which case the shared L2 is enough.
; All polling loops are bounded; s_sleep only appears as their back-off.
; ---------------------------------------------------------------------------------------------
""".strip("\n")

def gen(name, U=4, lv=(5,6,7), th=(0,30), a0=10, tau0=107.6, n1=5, P=8, NC=3, D=2, GD=5, qe=12, qback=16, pad=250, unr=False, w7early=True, tpre=False, full=True, NS=64, opre="skvqxy", mlfull=True, ww=7, qs=0, reord=True, msk=True, late=True, lead=None, lk0=9, lk1=15, leadv=False, dirty=0, dearly=False, ofl="", hoist=True, probe=False, R=1, sp=4, gm=False, cond=False, hdr=""):
    o=[]
    def a(s): o.extend(s.split("\n"))
    def c(s): o.append("; "+s)
    fk=lv[0]
    a(hdr+f"; @launch grid=(256,1,1) block=(512,1,1) lds={LDS_SZ}")
    a('.amdgcn_target "amdgcn-amd-amdhsa--gfx950"')
    a(DOC)
    a(f".text\n.globl {MAIN}\n.p2align 8\n.type {MAIN},@function\n{MAIN}:")
    sW=20; sBH=21; sS=22; sX=23; sTK=24; sK=25; sC=26; sT=27; sT2=28; sAT=29; sLOC=30; sXV=31; sTAG=32; sE=33; sI=34; sTV=35; sSP=36; sH=37; sB=38
    sA=40; sNOW=42; sEX=44; sIDX=46; sREF=48; sTAU=49; sLV=50
    a("s_cmp_ge_u32 s2, 256\ns_cbranch_scc1 L_end")
    c("s[4:5]=x s[6:7]=K s[8:9]=V s[10:11]=wq s[12:13]=wo s[14:15]=out s[16:17]=dbg s[18:19]=ws")
    a("s_load_dwordx16 s[4:19], s[0:1], 0")
    a(f"s_memrealtime s[{sNOW}:{sNOW+1}]")
    c("v1 = wave, v2 = lane, v3 = lane>>4, v4 = lane&15")
    a("v_lshrrev_b32 v1, 6, v0\nv_and_b32 v2, 63, v0")
    a(f"v_readfirstlane_b32 s{sW}, v1")
    a("v_lshrrev_b32 v3, 4, v2\nv_and_b32 v4, 15, v2")
    a(f"s_and_b32 s{sX}, s2, 7\ns_bfe_u32 s{sT}, s2, 0x10003\ns_lshl1_add_u32 s{sH}, s{sX}, s{sT}\ns_and_b32 s{sT}, s2, 16\ns_or_b32 s{sBH}, s{sH}, s{sT}\ns_lshr_b32 s{sS}, s2, 5")
    a(f"s_cmp_ge_u32 s{sW}, 4\ns_cbranch_scc1 L_helper")
    c("================= streaming waves 0-3 =================")
    Q=8; MK=16; PB=20; ACC=28; S=36; M=40; T=41; VP=45; VZ=46; VONE=0; VL=48; VTS=7; VR=52; VO=Q+3
    RB=54; NV=RB+U*32
    def kaddr():
        c("a 32KB chunk is read as 4 groups x 4 waves x 2KB (4 keys); lane = (key lane>>4, 16B piece lane&15), two halves per key")
        a(f"v_lshlrev_b32 v5, 9, v3\nv_lshl_add_u32 v5, v4, 4, v5")
        a(f"s_add_u32 s{sT2}, s{sBH}, s{sS}\ns_add_u32 s{sT2}, s{sT2}, s{sW}\ns_lshl_b32 s{sT2}, s{sT2}, 11")
        for g in range(4):
            a(f"s_and_b32 s{sT2}, s{sT2}, 0x7fff\nv_add_u32 v{VL+g}, s{sT2}, v5")
            if g<3: a(f"s_add_u32 s{sT2}, s{sT2}, 0x2000")
        a(f"s_lshl_b32 s{sT}, s{sBH}, 7\ns_add_u32 s{sT}, s{sT}, s{sS}\ns_lshl_b32 s{sT}, s{sT}, 15")
    if not reord: kaddr()
    c("weights go first: wq slice rows 112*rq + 8t.. (t = wave + 4j), wo tile rows (4x + (i&3))*128 + 32*wave + 8j..")
    a(f"s_lshr_b32 s{sB}, s{sBH}, 4\ns_lshr_b32 s{sT2}, s{sS}, 2\ns_lshl1_add_u32 s{sT2}, s{sB}, s{sT2}\ns_mul_i32 s{sT2}, s{sT2}, 112\ns_lshl3_add_u32 s{sT2}, s{sW}, s{sT2}")
    a(f"v_lshrrev_b32 v8, 3, v2\nv_and_b32 v9, 7, v2\nv_add_u32 v10, s{sT2}, v8\nv_lshlrev_b32 v10, 13, v10\nv_lshl_add_u32 v10, v9, 4, v10")
    a(f"s_and_b32 s{sT2}, s{sS}, 3\ns_lshl2_add_u32 s{sT2}, s{sH}, s{sT2}\ns_lshl_b32 s{sT2}, s{sT2}, 7\nv_add_u32 v10, s{sT2}, v10")
    def waddr():
        a(f"s_bfe_u32 s{sT2}, s2, 0x20003\ns_lshl2_add_u32 s{sT2}, s{sX}, s{sT2}\ns_lshl2_add_u32 s{sT2}, s{sT2}, s{sW}\ns_lshl_b32 s{sT2}, s{sT2}, 5")
        a(f"v_add_u32 v8, s{sT2}, v8\nv_mul_u32_u24 v8, 896, v8\ns_min_u32 s{sT2}, s{sS}, 6\ns_lshl_b32 s{sT2}, s{sT2}, 7\nv_add_u32 v8, s{sT2}, v8")
        a(f"v_and_b32 v11, 1, v3\nv_lshlrev_b32 v11, 1, v11\nv_xor_b32 v11, v11, v9\nv_lshl_add_u32 v11, v11, 4, v8")
        if msk: a(f"s_cmp_eq_u32 s{sS}, 7\ns_cselect_b64 s[{sA}:{sA+1}], 0xff, -1")
    if not reord: waddr()
    a(f"s_lshl_b32 s{sTK}, s{sW}, 10\ns_add_u32 m0, s{sTK}, {L_WQ}\ns_lshl_b32 s{sI}, s{sW}, 12")
    def ld(slot,g,e):
        r=RB+slot*32+g*8+4*e
        a(f"global_load_dwordx4 v[{r}:{r+3}], v{VL+g}, s[6:7]{' offset:256' if e else ''} nt")
    def nextchunk(): a("s_add_u32 s6, s6, 0x40000\ns_addc_u32 s7, s7, 0")
    a("s_waitcnt lgkmcnt(0)")
    def init():
        c("LDS flags = -1, progress reference = 'far ahead', MFMA selector masks, accumulators")
        a(f"v_mov_b32 v{T}, -1\nv_lshlrev_b32 v6, 2, v2\nds_write_b32 v6, v{T} offset:{L_F}\nv_mov_b32 v{VR}, s{sNOW}\nv_mov_b32 v{VR+1}, 0x100000\nv_mov_b32 v{VZ}, 0\nds_write_b64 v{VZ}, v[{VR}:{VR+1}] offset:{L_REF}")
        a(f"s_add_u32 s8, s8, s{sT}\ns_addc_u32 s9, s9, 0")
        a(f"v_and_b32 v{T}, 1, v2\nv_lshlrev_b32 v{T}, 4, v{T}\nv_mov_b32 v{T+1}, 0xffff\nv_lshlrev_b32 v{T}, v{T}, v{T+1}\nv_bfe_u32 v{T+1}, v2, 1, 2")
        for k in range(4): a(f"v_cmp_eq_u32 vcc, {k}, v{T+1}\nv_mov_b32 v{ACC+2*k}, 0\nv_mov_b32 v{ACC+2*k+1}, 0\nv_cndmask_b32 v{MK+k}, 0, v{T}, vcc")
        a(f"s_mov_b32 s{sC}, {hex(C_SCALE)}\nv_mov_b32 v{M}, 0xff7fffff")
        a(f"s_mov_b32 s{sK}, {U}\nv_lshlrev_b32 v5, 4, v4")
        a(f"s_mov_b32 s{sLV}, 0\nv_mov_b32 v{VONE}, 1")
        a(f"v_lshlrev_b32 v{VTS}, 3, v1\ns_mov_b32 s{sEX}, 0x10001\ns_mov_b32 s{sEX+1}, 0x10001")
        a(f"s_mov_b32 s{sIDX}, 0\ns_movk_i32 s{sIDX+1}, 256")
        a(f"v_lshlrev_b32 v{VP}, 6, v1\nv_lshl_add_u32 v{VP}, v3, 4, v{VP}")
        a(f"s_add_u32 s6, s6, s{sT}\ns_addc_u32 s7, s7, 0\ns_mov_b32 s{sSP}, {SPIN*8}")
    for j in range(4):
        if j==3: a(f"s_cmp_ge_u32 s{sW}, 2\ns_cbranch_scc1 L_nq3")
        if j: a(f"s_add_u32 m0, s{sTK}, {L_WQ+j*4096}\nv_add_u32 v10, 0x40000, v10")
        a("global_load_lds_dwordx4 v10, s[10:11] nt")
    a("L_nq3:")
    if reord: waddr()
    for j in range(4):
        if 4+j==min(ww,7):
            if reord: kaddr()
            init()
        a(f"s_add_u32 m0, s{sI}, {L_WO+j*1024}")
        if j: a(f"v_xor_b32 v11, 64, v11\nv_add_u32 v11, {8*896}, v11")
        if 4+j>=ww: a(f"s_waitcnt vmcnt({ww-1})")
        elif not j: a("s_nop 0")
        if msk: a(f"s_mov_b64 exec, s[{sA}:{sA+1}]")
        a("global_load_lds_dwordx4 v11, s[12:13] nt")
        if msk: a("s_mov_b64 exec, -1")
    c(f"prefetch {U} K chunks while q is being produced")
    n=0
    for u in range(U):
        for g in range(4):
            for e in range(2):
                a(f"s_waitcnt vmcnt({fk-1})")
                ld(u,g,e); n+=1
                if n==1:
                    c("the wq slice has landed and the LDS flags are set: release waves 4-7")
                    a("s_waitcnt lgkmcnt(0)\ns_barrier")
        nextchunk()
    c("pick up q (bf16) once wave 4 has raised the flag")
    a(f"L_qw:\nds_read_b32 v{T}, v{VZ} offset:{L_QF}")
    a(f"ds_read_b128 v[{Q}:{Q+3}], v5 offset:{L_Q}\nds_read_b128 v[{Q+4}:{Q+7}], v5 offset:{L_Q+256}")
    a(f"s_sub_u32 s{sSP}, s{sSP}, 1\ns_cbranch_scc1 L_kloop\ns_waitcnt lgkmcnt(0)\nv_cmp_eq_u32 vcc, -1, v{T}\ns_cbranch_vccnz L_qw")
    def lw(lb):
        for i in range(len(lv)-1,-1,-1):
            a(f"s_waitcnt vmcnt({lv[i]-1})")
            if i: a(f"s_cmp_ge_i32 s{sLV}, {i}\ns_cbranch_scc1 L_o{lb}")
        if lead is not None and (lb.startswith("k") or leadv):
            a(f"s_cmp_ge_i32 s{sLV}, 0\ns_cbranch_scc1 L_o{lb}\ns_waitcnt vmcnt({lv[0]-2})")
        a(f"L_o{lb}:")
    def mark():
        a(f"s_memrealtime s[{sNOW}:{sNOW+1}]\nds_read_b64 v[{VR}:{VR+1}], v{VZ} offset:{L_REF}")
    def level():
        c("report progress; number of loads kept in flight for the next chunk from the lag behind the mean")
        a(f"v_readfirstlane_b32 s{sREF}, v{VR}\nv_readfirstlane_b32 s{sTAU}, v{VR+1}\nv_mov_b32 v{VR}, s{sNOW}\nv_mov_b32 v{VR+1}, s{sK}\nds_write_b64 v{VTS}, v[{VR}:{VR+1}] offset:{L_TS}")
        a(f"s_sub_u32 s{sT}, s{sNOW}, s{sREF}\ns_lshl_b32 s{sT}, s{sT}, 4\ns_mul_i32 s{sT2}, s{sK}, s{sTAU}\ns_sub_u32 s{sT}, s{sT}, s{sT2}")
        for i,t in enumerate(th): a(f"s_cmp_gt_i32 s{sT}, {t*16}\ns_cselect_b32 s{sLV}, {i+1}, {'s%d'%sLV if i else 0}")
        if lead is not None:
            a(f"s_cmp_lt_i32 s{sT}, {lead*16}\ns_cselect_b32 s{sT}, -1, s{sLV}\ns_bitcmp1_b32 {hex(lmask)}, s{sK}\ns_cselect_b32 s{sLV}, s{sT}, s{sLV}")
    lmask=sum(1<<k for k in range(lk0,lk1))|(sum(1<<k for k in range(24,31)) if leadv else 0)
    def kbody(slot, loop):
        for g in range(4):
            r=RB+slot*32+g*8
            a(f"v_mov_b32 v{S+g}, 0")
            for e in range(2):
                for k in range(4*e,4*e+4): a(f"v_dot2c_f32_bf16 v{S+g}, v{r+k}, v{Q+k}")
                if loop:
                    if e==1 and g==3:
                        a("s_waitcnt lgkmcnt(0)"); level()
                    lw(f"k{slot}_{g}_{e}"); ld(slot,g,e)
            if loop and g==2: mark()
        for d in DP4:
            for g in range(4): a(f"v_add_f32_dpp v{S+g}, v{S+g}, v{S+g} {d} {DPM}")
        if loop: a(f"v_add_u32 v{T}, s{sIDX+slot}, v{VP}")
        a(f"v_max3_f32 v{M}, v{S}, v{S+1}, v{M}\nv_max3_f32 v{M}, v{S+2}, v{S+3}, v{M}")
        a(f"s_mov_b64 exec, s[{sEX}:{sEX+1}]")
        if loop: a(f"ds_write_b128 v{T}, v[{S}:{S+3}] offset:{L_P}")
        else: a(f"ds_write_b128 v{VP}, v[{S}:{S+3}] offset:{L_P+slot*256}")
        a("s_mov_b64 exec, -1")
    c(f"---- K phase: consume a chunk, refill its registers with chunk s{sK} (16,17 = first V chunks)")
    a("L_kloop:")
    for u in range(2):
        if u==0: a(f"s_cmp_eq_u32 s{sK}, 16\ns_cselect_b64 s[6:7], s[8:9], s[6:7]")
        kbody(u,True)
        nextchunk()
        a(f"s_lshl_b32 s{sIDX+u}, s{sK}, 8\ns_add_u32 s{sK}, s{sK}, 1")
        for x in range(2,U):
            if (x-1)%2==u: a(f"s_cmp_eq_u32 s{sK}, {U+x}\ns_cbranch_scc1 L_x{x}")
        a(f"L_xr{u}:")
    a(f"s_cmp_lt_u32 s{sK}, 18\ns_cbranch_scc1 L_kloop")
    def cvt():
        for g in range(4): a(f"v_cvt_pk_bf16_f32 v{S+g}, v{S+g}, v{S+g}")
    def ands(g,pb):
        for k in range(4): a(f"v_and_b32 v{pb+k}, v{S+g}, v{MK+k}")
    def mm1(slot,g,e,pb):
        r=RB+slot*32+g*8+4*e; d=ACC+4*e
        a(f"v_mfma_f32_16x16x32_bf16 v[{d}:{d+3}], v[{pb}:{pb+3}], v[{r}:{r+3}], v[{d}:{d+3}]")
    def mm(slot,g,pb): mm1(slot,g,0,pb); mm1(slot,g,1,pb)
    def dodirty():
        a(f"s_mov_b64 exec, -1\ns_lshl2_add_u32 s{sT}, s2, s{sW}\ns_lshl_b32 s{sT}, s{sT}, 12\ns_add_u32 s{sT}, s{sT}, 0x100000\nv_lshl_add_u32 v6, v2, 4, s{sT}")
        for k in range(dirty): a(f"global_store_dwordx4 v6, v[16:19], s[18:19] offset:{k*1024}")
    if dirty and dearly: dodirty()
    c("---- wave max over its 256 scores, scores -> exp2(c*(s - max)) in place")
    a(f"v_lshrrev_b32 v6, 2, v2\nv_lshlrev_b32 v6, 8, v6\nv_and_b32 v5, 3, v2\nv_lshl_add_u32 v6, v5, 4, v6\nv_lshl_add_u32 v6, v1, 6, v6")
    a(f"v_mov_b32 v{T}, v{M}\nds_read_b128 v[{S}:{S+3}], v6 offset:{L_P}\nv_lshlrev_b32 v5, 2, v1")
    a(f"v_permlane16_swap_b32 v{M}, v{T}\nv_max_f32 v{T+1}, v{M}, v{T}\nv_max_f32 v{T+2}, v{M}, v{T}\nv_lshrrev_b32 v{VO}, 1, v3\nv_lshlrev_b32 v{VO}, 9, v{VO}")
    a(f"v_permlane32_swap_b32 v{T+1}, v{T+2}\nv_max_f32 v{M}, v{T+1}, v{T+2}\nv_mul_f32 v{M}, s{sC}, v{M}")
    a(f"s_waitcnt lgkmcnt(0)\nds_write_b32 v5, v{M} offset:{L_ML}")
    for g in range(4): a(f"v_fma_f32 v{S+g}, v{S+g}, s{sC}, -v{M}")
    for g in range(4): a(f"v_exp_f32 v{S+g}, v{S+g}")
    a(f"s_nop 0\nds_write_b128 v6, v[{S}:{S+3}] offset:{L_P}\nds_read_b128 v[{S}:{S+3}], v{VP} offset:{L_P}")
    a(f"ds_write_b32 v5, v{VONE} offset:{L_DN}")
    a(f"v_lshl_add_u32 v{VO}, v4, 5, v{VO}\nv_and_b32 v5, 1, v3\nv_lshl_add_u32 v{VO}, v5, 4, v{VO}\nv_lshl_add_u32 v{VO}, v1, 10, v{VO}")
    a("s_waitcnt lgkmcnt(1)")
    cvt(); ands(0,PB)
    a("s_nop 1")
    c("---- V phase: D[e][n] += sum_key p[key]*delta(e,e') * V[key][8n+e']  (A = masked p, B = raw V registers)")
    a("L_vloop:")
    for u in range(2):
        for g in range(4):
            mm(u,g,PB+4*(g&1))
            lw(f"{u}_{g}_0"); ld(u,g,0)
            if g<3: ands(g+1,PB+4*((g+1)&1))
            else:
                a("s_waitcnt lgkmcnt(0)")
                cvt(); level(); ands(0,PB)
            lw(f"{u}_{g}_1"); ld(u,g,1)
            if g==2:
                mark()
                a(f"v_add_u32 v{VP}, 256, v{VP}\nds_read_b128 v[{S}:{S+3}], v{VP} offset:{L_P}")
        nextchunk()
        a(f"s_add_u32 s{sK}, s{sK}, 1")
    a(f"s_cmp_lt_u32 s{sK}, 32\ns_cbranch_scc1 L_vloop")
    c("---- last two chunks")
    for g in range(4):
        a(f"s_waitcnt vmcnt({14-2*g})")
        mm(0,g,PB+4*(g&1))
        if g<3: ands(g+1,PB+4*((g+1)&1))
        if g==2: a(f"ds_read_b128 v[{S}:{S+3}], v{VP} offset:{L_P+256}")
        if g<2: a("s_nop 0")
    a("s_waitcnt lgkmcnt(0)")
    cvt()
    for g in range(4): ands(g,RB+4*g)
    for g in range(3):
        a(f"s_waitcnt vmcnt({6-2*g})"); mm(1,g,RB+4*g)
    a("s_waitcnt vmcnt(1)"); mm1(1,3,0,RB+12)
    a("s_waitcnt vmcnt(0)"); mm1(1,3,1,RB+12)
    a("s_mov_b32 exec_hi, 0\ns_nop 4")
    a(f"ds_write_b128 v{VO}, v[{ACC}:{ACC+3}] offset:{L_O}")
    a("s_not_b64 exec, exec")
    a(f"ds_write_b128 v{VO}, v[{ACC+4}:{ACC+7}] offset:{L_O}")
    a("s_waitcnt lgkmcnt(0)\ns_barrier")
    if dirty and not dearly: dodirty()
    a("s_endpgm")
    for x in range(2,U):
        c(f"start-up chunk {x} (no refill)")
        a(f"L_x{x}:")
        kbody(x,False)
        a(f"s_branch L_xr{(x-1)%2}")
    c("================= waves 4-7 =================")
    a("L_helper:")
    a(f"s_lshr_b32 s{sI}, s2, 3\nv_lshrrev_b32 v5, 3, v2\nv_and_b32 v7, 7, v2")
    a(f"s_cmp_eq_u32 s{sW}, 4\ns_cbranch_scc1 L_isq\ns_cmp_eq_u32 s{sW}, 7\ns_cbranch_scc1 L_w7")
    a("s_barrier\ns_branch L_hwait")
    c("wave 7: pull this kernel's code into L2, then hop over it (EXEC=0, branches only) to fill the instruction cache")
    a("L_w7:")
    a(f"s_getpc_b64 s[{sA}:{sA+1}]\nL_pc:\ns_sub_u32 s{sA}, s{sA}, L_pc-{MAIN}\ns_subb_u32 s{sA+1}, s{sA+1}, 0\nv_lshlrev_b32 v6, 6, v2")
    if not w7early: a("s_barrier")
    a(f"global_load_dword v10, v6, s[{sA}:{sA+1}]\nv_add_u32 v6, 0x1000, v6\nv_min_u32 v9, L_last-{MAIN}, v6\nglobal_load_dword v10, v9, s[{sA}:{sA+1}]")
    a(f"v_add_u32 v6, 0x1000, v6\nv_min_u32 v9, L_last-{MAIN}, v6\nglobal_load_dword v10, v9, s[{sA}:{sA+1}]")
    if "s" in opre:
        c("touch the d_ws lines this workgroup hands data over in and the K/V pages, before HBM is busy (values unused)")
        a(f"s_lshl3_add_u32 s{sT2}, s{sBH}, s{sS}\ns_lshl_b32 s{sT2}, s{sT2}, 10\ns_add_u32 s{sT2}, s{sT2}, {WS_OP}\nv_lshl_add_u32 v9, v2, 4, s{sT2}\ns_waitcnt lgkmcnt(0)\nglobal_load_dword v10, v9, s[18:19]")
    if "k" in opre or "v" in opre:
        a(f"s_lshl_b32 s{sT}, s{sBH}, 22\nv_and_b32 v9, 1, v2\nv_lshlrev_b32 v9, 21, v9\nv_add_u32 v9, s{sT}, v9")
        if "k" in opre: a("global_load_dword v10, v9, s[6:7] nt")
        if "v" in opre: a("global_load_dword v10, v9, s[8:9] nt")
    if "o" in opre:
        a(f"s_min_u32 s{sT}, s{sX}, 6\ns_lshl_b32 s{sT}, s{sT}, 7\nv_and_b32 v9, 1, v2\nv_mul_u32_u24 v9, 896, v9\nv_add_u32 v9, s{sT}, v9\ns_cmp_lt_u32 s{sS}, 7\ns_cbranch_scc1 L_noo\nglobal_load_dword v10, v9, s[14:15]\nL_noo:")
    if "q" in opre:
        a(f"s_lshr_b32 s{sB}, s{sBH}, 4\ns_lshl3_add_u32 s{sT2}, s{sB}, s{sS}\ns_lshl_b32 s{sT2}, s{sT2}, 8\ns_lshl_b32 s{sT}, s{sH}, 13\ns_add_u32 s{sT2}, s{sT2}, s{sT}\ns_add_u32 s{sT2}, s{sT2}, {WS_QP}")
        a(f"v_lshrrev_b32 v9, 5, v2\nv_lshlrev_b32 v9, 12, v9\nv_lshl_add_u32 v9, v4, 4, v9\nv_add_u32 v9, s{sT2}, v9\nglobal_load_dword v10, v9, s[18:19]")
    if "x" in opre:
        a(f"s_lshl_b32 s{sT}, s{sX}, 8\ns_add_u32 s{sT}, s{sT}, {WS_XI}\nv_lshl_add_u32 v9, v2, 2, s{sT}\nglobal_load_dword v10, v9, s[18:19]")
    if "y" in opre:
        a(f"s_and_b32 s{sT}, s{sI}, 3\ns_lshl2_add_u32 s{sT}, s{sX}, s{sT}\ns_lshl_b32 s{sT2}, s{sS}, 7\ns_add_u32 s{sT}, s{sT}, s{sT2}\ns_lshl_b32 s{sT}, s{sT}, 7\ns_add_u32 s{sT}, s{sT}, {WS_Y}")
        a(f"v_lshlrev_b32 v9, 12, v3\nv_lshl_add_u32 v9, v4, 3, v9\nv_add_u32 v9, s{sT}, v9\nglobal_load_dword v10, v9, s[18:19]")
        for r in range(1,R): a("v_add_u32 v9, 0x20000, v9\nglobal_load_dword v10, v9, s[18:19]")
    if w7early: a("s_barrier")
    a("s_waitcnt vmcnt(0)")
    if pad: a("s_mov_b64 exec, 0\ns_branch L_pad0")
    else: a("s_branch L_hwait")
    c("wave 4: partial q over rows 112*rq .., columns 256h + 64*cq .., both batches  (rq = 2b + (s>>2), cq = s&3)")
    a("L_isq:")
    a("s_setprio 3")
    a(f"s_lshr_b32 s{sB}, s{sBH}, 4\ns_lshr_b32 s{sT2}, s{sS}, 2\ns_lshl1_add_u32 s{sTK}, s{sB}, s{sT2}\ns_mul_i32 s{sT}, s{sTK}, 112")
    a(f"s_and_b32 s{sK}, s{sS}, 3")
    a(f"v_and_b32 v6, 1, v2\nv_mul_u32_u24 v6, 896, v6\nv_lshl_add_u32 v6, v3, 3, v6\ns_lshl_b32 s{sT}, s{sT}, 1\nv_add_u32 v6, s{sT}, v6")
    a(f"s_waitcnt lgkmcnt(0)\ns_load_dword s{sE}, s[18:19], 0")
    for u in range(7): a(f"global_load_dwordx2 v[{16+2*u}:{17+2*u}], v6, s[4:5] offset:{u*32}")
    a("v_lshrrev_b32 v7, 2, v2\nv_lshlrev_b32 v7, 7, v7\nv_and_b32 v8, 3, v2\nv_lshl_add_u32 v7, v8, 3, v7")
    a(f"s_lshl_b32 s{sT}, s{sH}, 13\ns_lshl_b32 s{sT2}, s{sTK}, 10\ns_add_u32 s{sT2}, s{sT2}, s{sT}\ns_lshl_b32 s{sK}, s{sK}, 8\ns_add_u32 s{sT2}, s{sT2}, s{sK}\ns_add_u32 s{sT2}, s{sT2}, {WS_QP+2048}")
    a(f"v_lshl_add_u32 v8, v2, 2, s{sT2}")
    a(f"s_lshl_b32 s{sT2}, s{sB}, 12\ns_add_u32 s{sT}, s{sT}, s{sT2}\ns_add_u32 s{sT}, s{sT}, {WS_QP}\nv_lshl_add_u32 v9, v2, 4, s{sT}")
    c("team marker: launch tag ^ (XCC id << 28)")
    a(f"s_lshl_b32 s{sT}, s{sX}, 8\ns_add_u32 s{sT}, s{sT}, {WS_XI}\nv_and_b32 v14, 31, v2\nv_lshl_add_u32 v14, v14, 2, s{sT}\ns_lshl2_add_u32 s{sT}, s{sI}, s{sT}\nv_mov_b32 v12, s{sT}")
    a(f"s_getreg_b32 s{sXV}, hwreg(HW_REG_XCC_ID, 0, 4)\ns_lshl_b32 s{sXV}, s{sXV}, 28")
    a(f"s_waitcnt lgkmcnt(0)\ns_add_u32 s{sE}, s{sE}, 1\ns_xor_b32 s{sXV}, s{sXV}, s{sE}\nv_mov_b32 v13, s{sXV}\nglobal_store_dword v12, v13, s[18:19]")
    a(f"s_and_b32 s{sTAG}, s{sE}, {TAGM}\nv_mov_b32 v10, s{sTAG}\ns_movk_i32 s{sC}, {TAGM}")
    a("s_barrier")
    if qs: a(f"s_sleep {qs}")
    a(f"global_load_dword v15, v14, s[18:19] sc1\ns_waitcnt vmcnt(2)" if not late else "s_waitcnt vmcnt(1)")
    B0=48; D0=32
    def trs(u):
        for k in range(4): a(f"ds_read_b64_tr_b16 v[{B0+u*8+2*k}:{B0+u*8+2*k+1}], v7 offset:{L_WQ+u*2048+k*32}")
    trs(0); trs(1); trs(2)
    for u in range(7):
        if u+3<7:
            a("s_waitcnt lgkmcnt(8)"); trs(u+3)
        else: a(f"s_waitcnt lgkmcnt({4*(6-u)})")
        for k in range(4):
            cc="0" if u==0 else f"v[{D0+4*k}:{D0+4*k+3}]"
            a(f"v_mfma_f32_16x16x16_bf16 v[{D0+4*k}:{D0+4*k+3}], v[{16+2*u}:{17+2*u}], v[{B0+u*8+2*k}:{B0+u*8+2*k+1}], {cc}")
    a("s_nop 5" if not late else "global_load_dword v15, v14, s[18:19] sc1\ns_nop 4")
    for k in range(1,4):
        for bb in range(2): a(f"v_mov_b32_dpp v{D0+bb}, v{D0+4*k+bb} quad_perm:[0,1,2,3] row_mask:{hex(1<<k)} bank_mask:0xf")
        if k<3: a("s_nop 0")
    for bb in range(2): a(f"v_bfi_b32 v{D0+bb}, s{sC}, v10, v{D0+bb}")
    a(f"s_waitcnt vmcnt(0)\nv_cmp_ne_u32 vcc, s{sXV}, v15\ns_cbranch_vccnz L_qrem")
    a(f"global_store_dword v8, v{D0}, s[18:19] offset:-2048\nglobal_store_dword v8, v{D0+1}, s[18:19] offset:2048\ns_branch L_qpub\nL_qrem:")
    a(f"global_store_dword v8, v{D0}, s[18:19] offset:-2048 sc1\nglobal_store_dword v8, v{D0+1}, s[18:19] offset:2048 sc1")
    a(f"L_qpub:\ns_mov_b32 s{sSP}, {SPIN}\ns_waitcnt vmcnt(0)")
    c("gather the four partials of q[b][h]")
    a(f"L_qpoll:\ns_sleep {qback}")
    for k in range(4): a(f"global_load_dwordx4 v[{16+4*k}:{19+4*k}], v9, s[18:19] offset:{k*1024} sc1")
    a(f"s_sub_u32 s{sSP}, s{sSP}, 1\ns_cbranch_scc1 L_qgo")
    a("s_waitcnt vmcnt(0)")
    for k in range(16): a(f"v_xor_b32 v{16+k}, s{sTAG}, v{16+k}")
    a("v_or3_b32 v12, v16, v17, v18")
    for k in range(3,15,2): a(f"v_or3_b32 v12, v12, v{16+k}, v{17+k}")
    a(f"v_or_b32 v12, v12, v31\nv_and_b32 v12, s{sC}, v12\nv_cmp_ne_u32 vcc, 0, v12\ns_cbranch_vccnz L_qpoll")
    a("L_qgo:")
    for r in range(4): a(f"v_add_f32 v{16+r}, v{16+r}, v{20+r}\nv_add_f32 v{24+r}, v{24+r}, v{28+r}")
    for r in range(4): a(f"v_add_f32 v{16+r}, v{16+r}, v{24+r}")
    a(f"v_cvt_pk_bf16_f32 v16, v16, v17\nv_cvt_pk_bf16_f32 v17, v18, v19\nv_lshlrev_b32 v5, 3, v2\nds_write_b64 v5, v[16:17] offset:{L_Q}")
    a(f"v_mov_b32 v5, 0\nv_mov_b32 v7, s{sE}\nds_write_b32 v5, v7 offset:{L_E}\nds_write_b32 v5, v5 offset:{L_QF}")
    a("s_setprio 0\ns_branch L_hgo")
    if pad: a("@PADEND@\ns_mov_b64 exec, -1")
    a(f"L_hwait:\nv_mov_b32 v5, 0\ns_mov_b32 s{sSP}, {SPIN*4}")
    a(f"L_hw:\ns_sleep 4\nds_read_b32 v8, v5 offset:{L_QF}\ns_sub_u32 s{sSP}, s{sSP}, 1\ns_cbranch_scc1 L_hgo\ns_waitcnt lgkmcnt(0)\nv_cmp_eq_u32 vcc, -1, v8\ns_cbranch_vccnz L_hw")
    WO=64
    c(f"---- addresses for the tail; s{sK} = wave-4, s{sB} = 4x + (i&3)")
    a("L_hgo:")
    a(f"v_mov_b32 v28, 0\nds_read_b32 v6, v28 offset:{L_E}")
    a(f"s_sub_u32 s{sK}, s{sW}, 4\ns_movk_i32 s{sC}, {TAGM}\ns_not_b32 s{sAT}, s{sC}")
    a(f"s_and_b32 s{sT}, s{sI}, 3\ns_lshl2_add_u32 s{sB}, s{sX}, s{sT}\nv_and_b32 v7, 7, v2\nv_lshlrev_b32 v27, 4, v2")
    a(f"s_lshl_b32 s{sT}, s{sX}, 8\ns_add_u32 s{sT}, s{sT}, {WS_XI}\nv_and_b32 v14, 31, v2\nv_lshl_add_u32 v14, v14, 2, s{sT}")
    a("global_load_dword v11, v14, s[18:19] sc1")
    c("team 'projection done' markers: v12 own, v14 all 28")
    a(f"s_add_u32 s{sT}, s{sT}, 128\nv_min_u32 v14, 27, v2\nv_lshl_add_u32 v14, v14, 2, s{sT}\ns_lshl2_add_u32 s{sT}, s{sI}, s{sT}\nv_mov_b32 v12, s{sT}")
    a(f"s_waitcnt lgkmcnt(0)\nv_readfirstlane_b32 s{sE}, v6\nv_mov_b32 v13, v6")
    a(f"s_getreg_b32 s{sXV}, hwreg(HW_REG_XCC_ID, 0, 4)\ns_lshl_b32 s{sXV}, s{sXV}, 28\ns_xor_b32 s{sXV}, s{sXV}, s{sE}")
    a(f"s_and_b32 s{sTAG}, s{sE}, {TAGM}\nv_mov_b32 v15, s{sTAG}")
    c("o gather: v20 (batch 0), v25 (batch 1): 8 producers x 32 rows")
    a(f"s_lshr_b32 s{sT}, s{sB}, 1\ns_lshl_b32 s{sT}, s{sT}, 13\ns_and_b32 s{sT2}, s{sB}, 1\ns_lshl2_add_u32 s{sT2}, s{sT2}, s{sK}\ns_lshl_b32 s{sT2}, s{sT2}, 7\ns_add_u32 s{sT}, s{sT}, s{sT2}\ns_add_u32 s{sT}, s{sT}, {WS_OP}")
    a(f"v_lshrrev_b32 v6, 3, v2\nv_lshlrev_b32 v6, 10, v6\nv_lshl_add_u32 v6, v7, 4, v6\nv_add_u32 v20, s{sT}, v6\nv_add_u32 v25, 0x20000, v20")
    c("own o: LDS v21, d_ws v22")
    a(f"s_lshl_b32 s{sT}, s{sK}, 8\nv_lshl_add_u32 v21, v2, 2, s{sT}\ns_lshl3_add_u32 s{sT2}, s{sBH}, s{sS}\ns_lshl_b32 s{sT2}, s{sT2}, 10\ns_add_u32 s{sT2}, s{sT2}, {WS_OP}\nv_add_u32 v22, s{sT2}, v21\nv_add_u32 v21, {L_O}, v21")
    c("partial outputs: store v23, reducer gather v24, d_out v26")
    a(f"s_lshl2_add_u32 s{sT}, s{sS}, s{sK}\ns_lshl_b32 s{sT}, s{sT}, 5\ns_add_u32 s{sT}, s{sT}, s{sB}\ns_lshl_b32 s{sT}, s{sT}, 7\ns_add_u32 s{sT}, s{sT}, {WS_Y}\nv_lshl_add_u32 v23, v2, 2, s{sT}")
    a(f"s_lshl_b32 s{sT}, s{sB}, 12\ns_lshl_b32 s{sT2}, s{sK}, 5\ns_add_u32 s{sT}, s{sT}, s{sT2}\ns_add_u32 s{sT}, s{sT}, {WS_Y}")
    a(f"v_lshrrev_b32 v6, 1, v2\nv_lshlrev_b32 v6, 7, v6\nv_and_b32 v8, 1, v2\nv_lshl_add_u32 v6, v8, 4, v6\nv_add_u32 v24, s{sT}, v6")
    a(f"s_lshr_b32 s{sT}, s{sK}, 1\ns_mul_i32 s{sT}, s{sT}, 896\ns_lshl_b32 s{sT2}, s{sB}, 5\ns_add_u32 s{sT}, s{sT}, s{sT2}\ns_and_b32 s{sT2}, s{sK}, 1\ns_lshl4_add_u32 s{sT}, s{sT2}, s{sT}\nv_lshl_add_u32 v26, v8, 3, s{sT}\nv_lshl_add_u32 v26, v3, 1, v26")
    c("LDS: v29 bf16 o write, v30 A-operand read, v9 transposing wo read")
    a(f"s_lshl_b32 s{sT}, s{sK}, 6\nv_lshl_add_u32 v29, v7, 3, s{sT}\nv_lshl_add_u32 v29, v3, 1, v29\nv_bfe_u32 v6, v2, 3, 1\nv_lshl_add_u32 v29, v6, 8, v29\nv_lshlrev_b32 v30, 4, v3\nv_lshl_add_u32 v30, v8, 8, v30")
    a(f"v_and_b32 v10, 1, v3\nv_lshl_add_u32 v6, v10, 1, v6\nv_xor_b32 v6, s{sK}, v6\nv_bfe_u32 v9, v2, 2, 2\nv_lshl_add_u32 v9, v3, 3, v9\nv_lshlrev_b32 v9, 7, v9\nv_lshl_add_u32 v9, v6, 5, v9\nv_and_b32 v6, 3, v2\nv_lshl_add_u32 v9, v6, 3, v9")
    c(f"s{sLOC} = 1 when all 32 team members are on this XCD")
    a(f"s_waitcnt vmcnt(0)\nv_cmp_ne_u32 vcc, s{sXV}, v11\ns_cmp_eq_u64 vcc, 0\ns_cselect_b32 s{sLOC}, 1, 0")
    a(f"s_cmp_eq_u32 s{sW}, 5\ns_cbranch_scc1 L_bal\ns_cmp_lg_u32 s{sW}, 4\ns_cbranch_scc1 L_nogat")
    def pwait(lb,val,sl):
        a(f"s_mov_b32 s{sSP}, {SPIN}\nL_{lb}:\ns_sleep {sl}")
        a(f"ds_read_b64 v[48:49], v28 offset:{L_TS}\ns_sub_u32 s{sSP}, s{sSP}, 1\ns_cbranch_scc1 L_{lb}go\ns_waitcnt lgkmcnt(0)\nv_cmp_gt_i32 vcc, {val}, v49\ns_cbranch_vccnz L_{lb}\nL_{lb}go:")
    c("---- wave 4: workgroup (max, sum) after the K phase, exchanged inside (b,h) -> factor exp2(wave max - M)/L per wave")
    a(f"v_and_b32 v16, 12, v2\ns_mov_b32 s{sSP}, {SPIN}")
    a(f"L_c1:\ns_sleep 8\nds_read_b32 v17, v16 offset:{L_DN}\ns_sub_u32 s{sSP}, s{sSP}, 1\ns_cbranch_scc1 L_c1go\ns_waitcnt lgkmcnt(0)\nv_cmp_eq_u32 vcc, -1, v17\ns_cbranch_vccnz L_c1\nL_c1go:")
    a(f"ds_read_b32 v17, v16 offset:{L_ML}")
    for i in range(4): a(f"ds_read_b128 v[{32+4*i}:{35+4*i}], v27 offset:{L_P+i*1024}")
    a(f"s_mul_i32 s{sT}, s2, {XST}\ns_add_u32 s{sT}, s{sT}, {WS_X}\nv_add_u32 v18, s{sT}, v27")
    a("s_waitcnt lgkmcnt(0)")
    a(f"v_max_f32_dpp v56, v17, v17 row_ror:4 {DPM}\nv_add_f32 v32, v32, v33\nv_add_f32 v34, v34, v35")
    a(f"v_max_f32_dpp v56, v56, v56 row_ror:8 {DPM}\nv_and_b32 v56, s{sAT}, v56\nv_sub_f32 v19, v17, v56\nv_exp_f32 v19, v19")
    for r in range(36,48): a(f"v_add_f32 v{32+2*(r&1)}, v{32+2*(r&1)}, v{r}")
    a("v_add_f32 v32, v32, v34\nv_mul_f32 v57, v32, v19")
    for d in DP4: a(f"s_nop 1\nv_add_f32_dpp v57, v57, v57 {d} {DPM}")
    a("v_mov_b32 v58, v57\ns_nop 1\nv_permlane16_swap_b32 v57, v58\nv_add_f32 v57, v57, v58\nv_mov_b32 v58, v57\ns_nop 1\nv_permlane32_swap_b32 v57, v58\nv_add_f32 v57, v57, v58")
    a(f"v_or_b32 v56, v56, v15\nv_bfi_b32 v57, s{sC}, v15, v57\nv_mov_b32 v58, s{sE}\nv_mov_b32 v59, s{sE}")
    a("s_mov_b64 exec, 0xff" if mlfull else "s_mov_b64 exec, 1")
    a(f"s_cmp_eq_u32 s{sLOC}, 0\ns_cbranch_scc1 L_mrem\nglobal_store_dwordx4 v18, v[56:59], s[18:19]\ns_branch L_mdone\nL_mrem:")
    a("global_store_dwordx4 v18, v[56:59], s[18:19] sc1\nL_mdone:\ns_mov_b64 exec, -1")
    a(f"s_and_b32 s{sT}, s2, 31\ns_mul_i32 s{sT}, s{sT}, {XST}\ns_add_u32 s{sT}, s{sT}, {WS_X}\nv_mul_u32_u24 v18, {32*XST}, v7\nv_add_u32 v18, s{sT}, v18")
    pwait("c2",17+GD,8)
    a(f"s_mov_b32 s{sSP}, {SPIN}\ns_branch L_xp1")
    a("L_xp:\ns_sleep 32\nL_xp1:")
    a("global_load_dwordx4 v[56:59], v18, s[18:19] sc1")
    a(f"s_sub_u32 s{sSP}, s{sSP}, 1\ns_cbranch_scc1 L_xgo\ns_waitcnt vmcnt(0)")
    a(f"v_xor_b32 v56, s{sTAG}, v56\nv_xor_b32 v57, s{sTAG}, v57\nv_xor_b32 v59, s{sE}, v59\nv_or_b32 v31, v56, v57")
    a(f"v_and_or_b32 v31, v31, s{sC}, v59\nv_cmp_ne_u32 vcc, 0, v31\ns_cbranch_vccnz L_xp\nL_xgo:")
    a(f"v_max_f32_dpp v32, v56, v56 {DP4[0]} {DPM}\ns_nop 1\nv_max_f32_dpp v32, v32, v32 {DP4[1]} {DPM}\ns_nop 1\nv_max_f32_dpp v32, v32, v32 {DP4[2]} {DPM}")
    a("v_sub_f32 v56, v56, v32\nv_sub_f32 v17, v17, v32\nv_exp_f32 v56, v56\nv_exp_f32 v17, v17\nv_mul_f32 v33, v56, v57")
    for d in DP4[:3]: a(f"s_nop 1\nv_add_f32_dpp v33, v33, v33 {d} {DPM}")
    a(f"v_rcp_f32 v33, v33\ns_nop 0\nv_mul_f32 v17, v17, v33\nds_write_b32 v16, v17 offset:{L_F}")
    a("s_branch L_nogat")
    sN=sTK; sPM=sH
    c(f"---- wave 5: mean progress mark of workgroups 0..63 at chunks {', '.join(str(n1+P*i) for i in range(NC))} -> reference line (offset, slope)")
    a("L_bal:")
    a(f"s_mul_i32 s{sT}, s2, {XST}\ns_add_u32 s{sT}, s{sT}, {WS_T}\nv_lshl_add_u32 v18, v4, 3, s{sT}\nv_and_b32 v19, {NS-1}, v2\nv_mul_u32_u24 v19, {XST}, v19\nv_add_u32 v19, {WS_T}, v19")
    a(f"s_mov_b32 s{sN}, {n1}\ns_mov_b32 s{sTV}, {int(tau0*16)}\nv_mov_b32 v51, s{sE}\ns_mov_b32 s{sPM}, 0")
    if tpre:
        a(f"s_cmp_ge_u32 s2, {NS}\ns_cbranch_scc1 L_pc0\nv_min_u32 v52, {NC-1}, v2\nv_lshl_add_u32 v52, v52, 14, v18\nglobal_load_dword v53, v52, s[18:19]")
    a("L_pc0:")
    pwait("p1",f"s{sN}",4)
    a(f"v_subrev_u32 v49, s{sN}, v49\nv_mul_u32_u24 v49, {int(tau0)}, v49\nv_sub_u32 v50, v48, v49")
    a(f"s_cmp_ge_u32 s2, {NS}\ns_cbranch_scc1 L_pc1\ns_mov_b64 exec, {'0xffff' if full else 1}\nglobal_store_dwordx2 v18, v[50:51], s[18:19] sc1\ns_mov_b64 exec, -1\nL_pc1:")
    a(f"s_add_u32 s{sT}, s{sN}, {D}")
    pwait("p2",f"s{sT}",4)
    a(f"s_mov_b32 s{sSP}, {SPIN}\ns_branch L_pp1\nL_pp:\ns_sleep 32\nL_pp1:")
    a("global_load_dwordx2 v[52:53], v19, s[18:19] sc1")
    a(f"s_sub_u32 s{sSP}, s{sSP}, 1\ns_cbranch_scc1 L_ppgo\ns_waitcnt vmcnt(0)\nv_cmp_ne_u32 vcc, s{sE}, v53\ns_and_b64 exec, exec, vcc\ns_cbranch_scc1 L_pp\nL_ppgo:\ns_mov_b64 exec, -1")
    a(f"v_sub_u32 v52, v52, v50\nv_add_u32 v18, {64*XST}, v18\nv_add_u32 v19, {64*XST}, v19")
    for d in DP4: a(f"v_add_u32_dpp v52, v52, v52 {d} {DPM}\ns_nop 1")
    a(f"v_readlane_b32 s{sT}, v52, 0\nv_readlane_b32 s{sT2}, v52, 16\nv_readlane_b32 s{sREF}, v52, 32\nv_readlane_b32 s{sTAU}, v52, 48\nv_readfirstlane_b32 s{sXV}, v50")
    a(f"s_add_u32 s{sT}, s{sT}, s{sT2}\ns_add_u32 s{sREF}, s{sREF}, s{sTAU}\ns_add_u32 s{sT}, s{sT}, s{sREF}\ns_ashr_i32 s{sT}, s{sT}, 6\ns_add_u32 s{sT}, s{sT}, s{sXV}")
    a(f"s_sub_u32 s{sT2}, s{sT}, s{sPM}\ns_mul_i32 s{sT2}, s{sT2}, {int(16*256/P)}\ns_lshr_b32 s{sT2}, s{sT2}, 8\ns_max_u32 s{sT2}, s{sT2}, {int(tau0*16)}\ns_cmp_eq_u32 s{sN}, {n1}\ns_cselect_b32 s{sTV}, s{sTV}, s{sT2}\ns_mov_b32 s{sPM}, s{sT}")
    a(f"s_mul_i32 s{sT2}, s{sN}, s{sTV}\ns_lshr_b32 s{sT2}, s{sT2}, 4\ns_sub_u32 s{sT}, s{sT}, s{sT2}\ns_add_u32 s{sT}, s{sT}, {a0}\nv_mov_b32 v52, s{sT}\nv_mov_b32 v53, s{sTV}\nds_write_b64 v28, v[52:53] offset:{L_REF}")
    a(f"s_add_u32 s{sN}, s{sN}, {P}\ns_cmp_lt_u32 s{sN}, {n1+P*NC}\ns_cbranch_scc1 L_pc0")
    c("every workgroup has read the tag word by now (the marks cover all heads): advance it for the next launch")
    a(f"s_cmp_lg_u32 s2, 255\ns_cbranch_scc1 L_nogat\nglobal_store_dword v28, v51, s[18:19] sc1")
    c("---- all four: pick up the per-wave factors, wait for the streaming waves")
    a("L_nogat:")
    a(f"s_mov_b32 s{sSP}, {SPIN}\ns_branch L_f1\nL_f0:\ns_sleep 8\nL_f1:\nds_read_b128 v[44:47], v28 offset:{L_F}\ns_sub_u32 s{sSP}, s{sSP}, 1\ns_cbranch_scc1 L_fgo\ns_waitcnt lgkmcnt(0)\nv_cmp_eq_u32 vcc, -1, v44\ns_cbranch_vccnz L_f0\nL_fgo:")
    if "l" in opre: a("global_load_dword v11, v22, s[18:19]")
    if "w" in opre: a(f"s_cmp_eq_u32 s{sLOC}, 0\ns_cbranch_scc1 L_npw\nv_xor_b32 v11, 1, v15\nglobal_store_dword v22, v11, s[18:19]\nL_npw:")
    if "O" in opre:
        a(f"s_cmp_lt_u32 s{sS}, 7\ns_cbranch_scc1 L_noo2\ns_cmp_eq_u32 s{sX}, 7\ns_cbranch_scc1 L_noo2\nglobal_load_ushort v10, v26, s[14:15]\nL_noo2:")
    for r in range(1,R): a(f"v_add_u32 v{80+r}, {hex(0x20000*r)}, v23\nv_add_u32 v{84+r}, {hex(0x20000*r)}, v24")
    if hoist:
        c("wo tile as MFMA B operands (the factors imply that the streaming waves are past their weight loads)")
        for kp in range(4):
            for j in range(2):
                r=WO+kp*4+j*2
                a(f"ds_read_b64_tr_b16 v[{r}:{r+1}], v9 offset:{L_WO+kp*4096+j*512}")
    a(f"s_mov_b32 s{sSP}, {SPIN*4}\ns_cmp_lg_u32 s{sLOC}, 0")
    if hoist: a("@PAD@\ns_waitcnt vmcnt(0) lgkmcnt(0)\ns_barrier")
    else: a("s_waitcnt vmcnt(0) lgkmcnt(0)\ns_barrier\nL_tail0:")
    a("ds_read2st64_b32 v[32:33], v21 offset0:0 offset1:4\nds_read2st64_b32 v[34:35], v21 offset0:8 offset1:12")
    a("s_waitcnt lgkmcnt(0)")
    a(f"v_pk_mul_f32 v[32:33], v[32:33], v[44:45]\nv_pk_fma_f32 v[32:33], v[34:35], v[46:47], v[32:33]\nv_add_f32 v32, v32, v33\nv_bfi_b32 v32, s{sC}, v15, v32")
    a(f"s_cbranch_scc0 L_orem\nglobal_store_dword v22, v32, s[18:19] {ofl}\nL_odone:")
    a(f"s_cmp_ge_u32 s{sI}, 28\ns_cbranch_scc1 L_final")
    c("---- projection workgroups: sum 8 partial o per batch, bf16, times the wo tile")
    if not hoist:
        a("global_load_dwordx4 v[36:39], v20, s[18:19] sc1\nglobal_load_dwordx4 v[40:43], v25, s[18:19] sc1")
        for kp in range(4):
            for j in range(2):
                r=WO+kp*4+j*2
                a(f"ds_read_b64_tr_b16 v[{r}:{r+1}], v9 offset:{L_WO+kp*4096+j*512}")
        a("s_branch L_h1a")
    a("L_h1poll:")
    a("global_load_dwordx4 v[36:39], v20, s[18:19] sc1\nglobal_load_dwordx4 v[40:43], v25, s[18:19] sc1")
    a(f"s_sub_u32 s{sSP}, s{sSP}, 1\ns_cbranch_scc1 L_h1go")
    a("@PAD@\ns_waitcnt vmcnt(0)" if hoist else "L_h1a:\ns_waitcnt vmcnt(0)")
    for r in range(36,44): a(f"v_xor_b32 v{r}, s{sTAG}, v{r}")
    a(f"v_or3_b32 v31, v36, v37, v38\nv_or3_b32 v32, v39, v40, v41\nv_or3_b32 v31, v31, v42, v43\nv_or_b32 v31, v31, v32\nv_and_b32 v31, s{sC}, v31")
    a("v_cmp_ne_u32 vcc, 0, v31\ns_and_b64 exec, exec, vcc\ns_cbranch_scc1 L_h1poll\nL_h1go:\ns_mov_b64 exec, -1")
    a("v_permlane32_swap_b32 v36, v38\nv_permlane32_swap_b32 v37, v39\nv_permlane32_swap_b32 v40, v42\nv_permlane32_swap_b32 v41, v43")
    a("v_add_f32 v36, v36, v38\nv_add_f32 v37, v37, v39\nv_add_f32 v40, v40, v42\nv_add_f32 v41, v41, v43")
    a("v_permlane16_swap_b32 v36, v37\nv_add_f32 v36, v36, v37\nv_permlane16_swap_b32 v40, v41\nv_add_f32 v40, v40, v41")
    a("v_add_f32_dpp v37, v36, v36 row_ror:8 row_mask:0xf bank_mask:0x3\ns_nop 1\nv_add_f32_dpp v37, v40, v40 row_ror:8 row_mask:0xf bank_mask:0xc\nv_cvt_pk_bf16_f32 v37, v37, v37")
    a(f"ds_write_b16 v29, v37 offset:{L_OB}")
    if gm==2: a("global_store_dword v12, v13, s[18:19]")
    a("s_waitcnt lgkmcnt(0)\ns_barrier")
    for kp in range(4): a(f"ds_read_b128 v[{40+4*kp}:{43+4*kp}], v30 offset:{L_OB+kp*64}")
    if hoist: a("@PAD@")
    if gm==1: a("global_store_dword v12, v13, s[18:19]")
    for kp in range(4):
        a(f"s_waitcnt lgkmcnt({3-kp})")
        cc="0" if kp==0 else "v[56:59]"
        a(f"v_mfma_f32_16x16x32_bf16 v[56:59], v[{40+4*kp}:{43+4*kp}], v[{WO+kp*4}:{WO+kp*4+3}], {cc}")
    a(f"s_mov_b32 exec_hi, 0\ns_nop 6")
    a(f"v_mov_b32_dpp v56, v57 quad_perm:[0,1,2,3] row_mask:0x2 bank_mask:0xf\nv_bfi_b32 v56, s{sC}, v15, v56")
    a("global_store_dword v23, v56, s[18:19] sc1")
    if not gm: a("global_store_dword v12, v13, s[18:19]")
    for r in range(1,R): a(f"global_store_dword v{80+r}, v56, s[18:19] sc1")
    a("s_endpgm")
    c("---- reducer workgroups: 32 partials x 8 outputs per wave; first read once the own team is through")
    a("L_final:")
    a(f"s_cmp_eq_u32 s{sX}, 7\ns_cbranch_scc1 L_end\ns_cmp_eq_u32 s{sLOC}, 0\ns_cbranch_scc1 L_h2poll")
    a(f"L_g2:\nglobal_load_dword v32, v14, s[18:19] sc1\ns_sub_u32 s{sSP}, s{sSP}, 1\ns_cbranch_scc1 L_h2go\ns_waitcnt vmcnt(0)\nv_cmp_ne_u32 vcc, s{sE}, v32\ns_cbranch_vccnz L_g2")
    if R>1 and cond:
        for r in range(1,R):
            a(f"global_load_dwordx4 v[32:35], v{84+r}, s[18:19] sc1\ns_waitcnt vmcnt(0)")
            for k in range(4): a(f"v_xor_b32 v{32+k}, s{sTAG}, v{32+k}")
            a(f"v_or3_b32 v31, v32, v33, v34\nv_or_b32 v31, v31, v35\nv_and_b32 v31, s{sC}, v31")
            a("v_cmp_ne_u32 vcc, 0, v31\ns_and_b64 exec, exec, vcc\ns_cbranch_scc0 L_h2go")
    elif R>1:
        for r in range(R):
            if r: a(f"s_sleep {sp}")
            a(f"global_load_dwordx4 v[{88+4*r}:{91+4*r}], v{84+r if r else 24}, s[18:19] sc1")
        for r in range(R):
            a(f"s_waitcnt vmcnt({R-1-r})")
            for k in range(4): a(f"v_xor_b32 v{32+k}, s{sTAG}, v{88+4*r+k}")
            a(f"v_or3_b32 v31, v32, v33, v34\nv_or_b32 v31, v31, v35\nv_and_b32 v31, s{sC}, v31")
            a("v_cmp_ne_u32 vcc, 0, v31\ns_and_b64 exec, exec, vcc\ns_cbranch_scc0 L_h2go")
    a("L_h2poll:\nglobal_load_dwordx4 v[32:35], v24, s[18:19] sc1")
    if hoist: a("@PAD@")
    a(f"s_sub_u32 s{sSP}, s{sSP}, 1\ns_cbranch_scc1 L_h2go\ns_waitcnt vmcnt(0)")
    for r in range(4): a(f"v_xor_b32 v{32+r}, s{sTAG}, v{32+r}")
    a(f"v_or3_b32 v31, v32, v33, v34\nv_or_b32 v31, v31, v35\nv_and_b32 v31, s{sC}, v31")
    a("v_cmp_ne_u32 vcc, 0, v31\ns_and_b64 exec, exec, vcc\ns_cbranch_scc1 L_h2poll\nL_h2go:\ns_mov_b64 exec, -1")
    a("v_permlane32_swap_b32 v32, v34\nv_permlane32_swap_b32 v33, v35")
    a("v_add_f32 v32, v32, v34\nv_add_f32 v33, v33, v35")
    a("s_nop 1\nv_permlane16_swap_b32 v32, v33\nv_add_f32 v32, v32, v33")
    for d in ("row_ror:8","row_ror:4","row_ror:2"): a(f"s_nop 1\nv_add_f32_dpp v32, v32, v32 {d} {DPM}")
    a("s_mov_b32 exec_lo, 0x00030003\ns_mov_b32 exec_hi, 0x00030003")
    a("v_cvt_pk_bf16_f32 v32, v32, v32\nglobal_store_short v26, v32, s[14:15]")
    if probe:
        a(f"s_memrealtime s[52:53]\ns_cmp_lg_u32 s2, 224\ns_cbranch_scc1 L_end\ns_cmp_lg_u32 s{sW}, 4\ns_cbranch_scc1 L_end")
        a(f"s_waitcnt lgkmcnt(0)\ns_sub_u32 s51, s52, s{sNOW}\ns_mul_i32 s51, s51, 20\ns_add_u32 s51, s51, 10000")
        a(f"L_pspin:\ns_memrealtime s[52:53]\ns_waitcnt lgkmcnt(0)\ns_sub_u32 s52, s52, s{sNOW}\ns_cmp_lt_u32 s52, s51\ns_cbranch_scc1 L_pspin")
    a("L_end:\ns_endpgm")
    a("L_orem:\nglobal_store_dword v22, v32, s[18:19] sc1\nL_last:\ns_branch L_odone")
    a(f""".section .rodata,"a"
.p2align 6
.amdhsa_kernel {MAIN}
  .amdhsa_next_free_vgpr {NV}
  .amdhsa_next_free_sgpr 56
  .amdhsa_accum_offset {(NV+3)//4*4}
  .amdhsa_group_segment_fixed_size 0
  .amdhsa_kernarg_size 64
  .amdhsa_user_sgpr_count 2
  .amdhsa_user_sgpr_kernarg_segment_ptr 1
  .amdhsa_system_sgpr_workgroup_id_x 1
.end_amdhsa_kernel""")
    if pad:
        out=[]; on=False; acc=0; n=0; prev=""
        def sz(l):
            if l.endswith(":") or not l or l.startswith(";"): return 0
            op=l.split()[0]
            if op.startswith(("global_","ds_","v_mfma","v_max3","v_fma","v_cvt_pk","v_lshl_add","s_memreal","v_pk","v_bfi","v_or3")) or "dpp" in op or "0x" in l: return 8
            return 4
        for l in o:
            if l=="@PAD@":
                out += [f"L_pad{n}:", f"s_cbranch_execz L_pad{n+1}"]; n+=1; continue
            if l in ("L_kloop:","L_tail0:"): on=True; acc=pad
            if l in ("L_helper:","L_end:"): on=False
            if on and acc>=pad and sz(l) and "exec, exec, vcc" not in prev and l!="s_mov_b64 exec, -1":
                out += [f"L_pad{n}:", f"s_cbranch_execz L_pad{n+1}"]; n+=1; acc=4
            out.append(l); acc+=sz(l)
            if sz(l): prev=l
        o=[l.replace("@PADEND@",f"L_pad{n}:") for l in out]
    txt=[]
    incode=False
    for l in o:
        if l==MAIN+":": incode=True
        if l.startswith(".section"): incode=False
        txt.append(("    "+l) if incode and not l.endswith(":") else l)
    open(name,"w").write("\n".join(txt)+"\n")
    return build(name)
if __name__=="__main__":
    hdr=open("standalone__mha_block_cached__decode.s.ref").read().split("; Override")[0]
    print(gen("final6.s",hdr=hdr))
```

```python
import sys
from asm import build
MAIN="standalone__mha_block_cached__decode_kernel"
C_SCALE=0x3db8aa3b
TAGM=0x3ff
WS_XI=0x1000; WS_X=0x10000; WS_T=0x20000; WS_QP=0x40000; WS_OP=0x80000; WS_Y=0xC0000; XST=256
L_F=0; L_DN=16; L_TS=32; L_QF=64; L_REF=264; L_E=276; L_ML=288; L_Q=512; L_OB=1024; L_O=2048; L_P=6144
L_WQ=L_P+4096; L_WO=L_WQ+14336; LDS_SZ=L_WO+16384
SPIN=1<<19
DPM="row_mask:0xf bank_mask:0xf"
DP4=["quad_perm:[1,0,3,2]","quad_perm:[2,3,0,1]","row_half_mirror","row_mirror"]

DOC = r"""
; ---------------------------------------------------------------------------------------------
; One persistent launch, 256 workgroups (one per CU) of 8 waves.
;   wg -> team x = wg&7, head h = 2x + bit3, batch b = bit4, split s = wg>>5
;   The workgroup owns 16 chunks of 64 keys of (b,h): chunk k covers keys (s + 8k)*64 ...
; Waves 0-3 stream: the weight tiles (-> LDS), all K chunks (scores -> LDS), then all V chunks (MFMA with
;   p = exp2(c*(score - wave max)); the true softmax max / sum are applied when the waves are merged).
; Wave 4: q = x @ wq (a 112x64 slice per workgroup, exchanged through d_ws), later the
;   (max, sum) exchange of the 8 workgroups of (b,h).
; Wave 5: load balancing.  HBM is saturated with 5 loads in flight per wave; a wave that is
;   behind the chip-wide mean progress keeps 6 or 7 in flight so that all CUs finish together.
;   The clock is only read to compare progress; nothing waits on it and no result depends on it.
; Waves 4-7 tail: merge o, exchange it inside the team, multiply by a 128x64 tile of wo,
;   hand the partial outputs to 28 reducer workgroups which write d_out.
; Hand-offs through d_ws carry a per-launch tag (d_ws word 0 + 1) so that leftovers of an earlier
;   launch are never taken for data; stores are write-through (sc1) unless every team member
;   reported the same XCC id, in which case the shared L2 is enough.
; All polling loops are bounded; s_sleep only appears as their back-off.
; ---------------------------------------------------------------------------------------------
""".strip("\n")

def gen(name, U=4, lv=(5,6,7), th=(0,30), a0=10, tau0=107.6, n1=5, P=8, NC=3, D=2, GD=5, qe=12, qback=16, pad=250, unr=False, w7early=True, tpre=False, full=True, NS=64, opre="skvqxy", mlfull=True, ww=7, qs=0, reord=True, msk=True, late=True, lead=None, lk0=9, lk1=15, leadv=False, dirty=0, dearly=False, ofl="", hoist=True, probe=False, R=1, sp=4, gm=False, cond=False, rnd=True, hdr=""):
    o=[]
    def a(s): o.extend(s.split("\n"))
    def c(s): o.append("; "+s)
    fk=lv[0]
    a(hdr+f"; @launch grid=(256,1,1) block=(512,1,1) lds={LDS_SZ}")
    a('.amdgcn_target "amdgcn-amd-amdhsa--gfx950"')
    a(DOC)
    a(f".text\n.globl {MAIN}\n.p2align 8\n.type {MAIN},@function\n{MAIN}:")
    sW=20; sBH=21; sS=22; sX=23; sTK=24; sK=25; sC=26; sT=27; sT2=28; sAT=29; sLOC=30; sXV=31; sTAG=32; sE=33; sI=34; sTV=35; sSP=36; sH=37; sB=38
    sA=40; sNOW=42; sEX=44; sIDX=46; sREF=48; sTAU=49; sLV=50
    a("s_cmp_ge_u32 s2, 256\ns_cbranch_scc1 L_end")
    c("s[4:5]=x s[6:7]=K s[8:9]=V s[10:11]=wq s[12:13]=wo s[14:15]=out s[16:17]=dbg s[18:19]=ws")
    a("s_load_dwordx16 s[4:19], s[0:1], 0")
    a(f"s_memrealtime s[{sNOW}:{sNOW+1}]")
    c("v1 = wave, v2 = lane, v3 = lane>>4, v4 = lane&15")
    a("v_lshrrev_b32 v1, 6, v0\nv_and_b32 v2, 63, v0")
    a(f"v_readfirstlane_b32 s{sW}, v1")
    a("v_lshrrev_b32 v3, 4, v2\nv_and_b32 v4, 15, v2")
    a(f"s_and_b32 s{sX}, s2, 7\ns_bfe_u32 s{sT}, s2, 0x10003\ns_lshl1_add_u32 s{sH}, s{sX}, s{sT}\ns_and_b32 s{sT}, s2, 16\ns_or_b32 s{sBH}, s{sH}, s{sT}\ns_lshr_b32 s{sS}, s2, 5")
    a(f"s_cmp_ge_u32 s{sW}, 4\ns_cbranch_scc1 L_helper")
    c("================= streaming waves 0-3 =================")
    Q=8; MK=16; PB=20; ACC=28; S=36; M=40; T=41; VP=45; VZ=46; VONE=0; VL=48; VTS=7; VR=52; VO=Q+3
    RB=54; NV=RB+U*32
    def kaddr():
        c("a 32KB chunk is read as 4 groups x 4 waves x 2KB (4 keys); lane = (key lane>>4, 16B piece lane&15), two halves per key")
        a(f"v_lshlrev_b32 v5, 9, v3\nv_lshl_add_u32 v5, v4, 4, v5")
        a(f"s_add_u32 s{sT2}, s{sBH}, s{sS}\ns_add_u32 s{sT2}, s{sT2}, s{sW}\ns_lshl_b32 s{sT2}, s{sT2}, 11")
        for g in range(4):
            a(f"s_and_b32 s{sT2}, s{sT2}, 0x7fff\nv_add_u32 v{VL+g}, s{sT2}, v5")
            if g<3: a(f"s_add_u32 s{sT2}, s{sT2}, 0x2000")
        a(f"s_lshl_b32 s{sT}, s{sBH}, 7\ns_add_u32 s{sT}, s{sT}, s{sS}\ns_lshl_b32 s{sT}, s{sT}, 15")
    if not reord: kaddr()
    c("weights go first: wq slice rows 112*rq + 8t.. (t = wave + 4j), wo tile rows (4x + (i&3))*128 + 32*wave + 8j..")
    a(f"s_lshr_b32 s{sB}, s{sBH}, 4\ns_lshr_b32 s{sT2}, s{sS}, 2\ns_lshl1_add_u32 s{sT2}, s{sB}, s{sT2}\ns_mul_i32 s{sT2}, s{sT2}, 112\ns_lshl3_add_u32 s{sT2}, s{sW}, s{sT2}")
    a(f"v_lshrrev_b32 v8, 3, v2\nv_and_b32 v9, 7, v2\nv_add_u32 v10, s{sT2}, v8\nv_lshlrev_b32 v10, 13, v10\nv_lshl_add_u32 v10, v9, 4, v10")
    a(f"s_and_b32 s{sT2}, s{sS}, 3\ns_lshl2_add_u32 s{sT2}, s{sH}, s{sT2}\ns_lshl_b32 s{sT2}, s{sT2}, 7\nv_add_u32 v10, s{sT2}, v10")
    def waddr():
        a(f"s_bfe_u32 s{sT2}, s2, 0x20003\ns_lshl2_add_u32 s{sT2}, s{sX}, s{sT2}\ns_lshl2_add_u32 s{sT2}, s{sT2}, s{sW}\ns_lshl_b32 s{sT2}, s{sT2}, 5")
        a(f"v_add_u32 v8, s{sT2}, v8\nv_mul_u32_u24 v8, 896, v8\ns_min_u32 s{sT2}, s{sS}, 6\ns_lshl_b32 s{sT2}, s{sT2}, 7\nv_add_u32 v8, s{sT2}, v8")
        a(f"v_and_b32 v11, 1, v3\nv_lshlrev_b32 v11, 1, v11\nv_xor_b32 v11, v11, v9\nv_lshl_add_u32 v11, v11, 4, v8")
        if msk: a(f"s_cmp_eq_u32 s{sS}, 7\ns_cselect_b64 s[{sA}:{sA+1}], 0xff, -1")
    if not reord: waddr()
    a(f"s_lshl_b32 s{sTK}, s{sW}, 10\ns_add_u32 m0, s{sTK}, {L_WQ}\ns_lshl_b32 s{sI}, s{sW}, 12")
    def ld(slot,g,e):
        r=RB+slot*32+g*8+4*e
        a(f"global_load_dwordx4 v[{r}:{r+3}], v{VL+g}, s[6:7]{' offset:256' if e else ''} nt")
    def nextchunk(): a("s_add_u32 s6, s6, 0x40000\ns_addc_u32 s7, s7, 0")
    a("s_waitcnt lgkmcnt(0)")
    def init():
        c("LDS flags = -1, progress reference = 'far ahead', MFMA selector masks, accumulators")
        a(f"v_mov_b32 v{T}, -1\nv_lshlrev_b32 v6, 2, v2\nds_write_b32 v6, v{T} offset:{L_F}\nv_mov_b32 v{VR}, s{sNOW}\nv_mov_b32 v{VR+1}, 0x100000\nv_mov_b32 v{VZ}, 0\nds_write_b64 v{VZ}, v[{VR}:{VR+1}] offset:{L_REF}")
        a(f"s_add_u32 s8, s8, s{sT}\ns_addc_u32 s9, s9, 0")
        a(f"v_and_b32 v{T}, 1, v2\nv_lshlrev_b32 v{T}, 4, v{T}\nv_mov_b32 v{T+1}, 0xffff\nv_lshlrev_b32 v{T}, v{T}, v{T+1}\nv_bfe_u32 v{T+1}, v2, 1, 2")
        for k in range(4): a(f"v_cmp_eq_u32 vcc, {k}, v{T+1}\nv_mov_b32 v{ACC+2*k}, 0\nv_mov_b32 v{ACC+2*k+1}, 0\nv_cndmask_b32 v{MK+k}, 0, v{T}, vcc")
        a(f"s_mov_b32 s{sC}, {hex(C_SCALE)}\nv_mov_b32 v{M}, 0xff7f0000")
        a(f"s_mov_b32 s{sK}, {U}\nv_lshlrev_b32 v5, 4, v4")
        a(f"s_mov_b32 s{sLV}, 0\nv_mov_b32 v{VONE}, 1")
        a(f"v_lshlrev_b32 v{VTS}, 3, v1\ns_mov_b32 s{sEX}, 0x10001\ns_mov_b32 s{sEX+1}, 0x10001")
        a(f"s_mov_b32 s{sIDX}, 0\ns_movk_i32 s{sIDX+1}, 256")
        a(f"v_lshlrev_b32 v{VP}, 6, v1\nv_lshl_add_u32 v{VP}, v3, 4, v{VP}")
        a(f"s_add_u32 s6, s6, s{sT}\ns_addc_u32 s7, s7, 0\ns_mov_b32 s{sSP}, {SPIN*8}")
    for j in range(4):
        if j==3: a(f"s_cmp_ge_u32 s{sW}, 2\ns_cbranch_scc1 L_nq3")
        if j: a(f"s_add_u32 m0, s{sTK}, {L_WQ+j*4096}\nv_add_u32 v10, 0x40000, v10")
        a("global_load_lds_dwordx4 v10, s[10:11] nt")
    a("L_nq3:")
    if reord: waddr()
    for j in range(4):
        if 4+j==min(ww,7):
            if reord: kaddr()
            init()
        a(f"s_add_u32 m0, s{sI}, {L_WO+j*1024}")
        if j: a(f"v_xor_b32 v11, 64, v11\nv_add_u32 v11, {8*896}, v11")
        if 4+j>=ww: a(f"s_waitcnt vmcnt({ww-1})")
        elif not j: a("s_nop 0")
        if msk: a(f"s_mov_b64 exec, s[{sA}:{sA+1}]")
        a("global_load_lds_dwordx4 v11, s[12:13] nt")
        if msk: a("s_mov_b64 exec, -1")
    c(f"prefetch {U} K chunks while q is being produced")
    n=0
    for u in range(U):
        for g in range(4):
            for e in range(2):
                a(f"s_waitcnt vmcnt({fk-1})")
                ld(u,g,e); n+=1
                if n==1:
                    c("the wq slice has landed and the LDS flags are set: release waves 4-7")
                    a("s_waitcnt lgkmcnt(0)\ns_barrier")
        nextchunk()
    c("pick up q (bf16) once wave 4 has raised the flag")
    a(f"L_qw:\nds_read_b32 v{T}, v{VZ} offset:{L_QF}")
    a(f"ds_read_b128 v[{Q}:{Q+3}], v5 offset:{L_Q}\nds_read_b128 v[{Q+4}:{Q+7}], v5 offset:{L_Q+256}")
    a(f"s_sub_u32 s{sSP}, s{sSP}, 1\ns_cbranch_scc1 L_kloop\ns_waitcnt lgkmcnt(0)\nv_cmp_eq_u32 vcc, -1, v{T}\ns_cbranch_vccnz L_qw")
    def lw(lb):
        for i in range(len(lv)-1,-1,-1):
            a(f"s_waitcnt vmcnt({lv[i]-1})")
            if i: a(f"s_cmp_ge_i32 s{sLV}, {i}\ns_cbranch_scc1 L_o{lb}")
        if lead is not None and (lb.startswith("k") or leadv):
            a(f"s_cmp_ge_i32 s{sLV}, 0\ns_cbranch_scc1 L_o{lb}\ns_waitcnt vmcnt({lv[0]-2})")
        a(f"L_o{lb}:")
    def mark():
        a(f"s_memrealtime s[{sNOW}:{sNOW+1}]\nds_read_b64 v[{VR}:{VR+1}], v{VZ} offset:{L_REF}")
    def level():
        c("report progress; number of loads kept in flight for the next chunk from the lag behind the mean")
        a(f"v_readfirstlane_b32 s{sREF}, v{VR}\nv_readfirstlane_b32 s{sTAU}, v{VR+1}\nv_mov_b32 v{VR}, s{sNOW}\nv_mov_b32 v{VR+1}, s{sK}\nds_write_b64 v{VTS}, v[{VR}:{VR+1}] offset:{L_TS}")
        a(f"s_sub_u32 s{sT}, s{sNOW}, s{sREF}\ns_lshl_b32 s{sT}, s{sT}, 4\ns_mul_i32 s{sT2}, s{sK}, s{sTAU}\ns_sub_u32 s{sT}, s{sT}, s{sT2}")
        for i,t in enumerate(th): a(f"s_cmp_gt_i32 s{sT}, {t*16}\ns_cselect_b32 s{sLV}, {i+1}, {'s%d'%sLV if i else 0}")
        if lead is not None:
            a(f"s_cmp_lt_i32 s{sT}, {lead*16}\ns_cselect_b32 s{sT}, -1, s{sLV}\ns_bitcmp1_b32 {hex(lmask)}, s{sK}\ns_cselect_b32 s{sLV}, s{sT}, s{sLV}")
    lmask=sum(1<<k for k in range(lk0,lk1))|(sum(1<<k for k in range(24,31)) if leadv else 0)
    def kbody(slot, loop):
        for g in range(4):
            r=RB+slot*32+g*8
            a(f"v_mov_b32 v{S+g}, 0")
            for e in range(2):
                for k in range(4*e,4*e+4): a(f"v_dot2c_f32_bf16 v{S+g}, v{r+k}, v{Q+k}")
                if loop:
                    if e==1 and g==3:
                        a("s_waitcnt lgkmcnt(0)"); level()
                    lw(f"k{slot}_{g}_{e}"); ld(slot,g,e)
            if loop and g==2: mark()
        for d in DP4:
            for g in range(4): a(f"v_add_f32_dpp v{S+g}, v{S+g}, v{S+g} {d} {DPM}")
        if loop: a(f"v_add_u32 v{T}, s{sIDX+slot}, v{VP}")
        a(f"v_max3_f32 v{M}, v{S}, v{S+1}, v{M}\nv_max3_f32 v{M}, v{S+2}, v{S+3}, v{M}")
        a(f"s_mov_b64 exec, s[{sEX}:{sEX+1}]")
        if loop: a(f"ds_write_b128 v{T}, v[{S}:{S+3}] offset:{L_P}")
        else: a(f"ds_write_b128 v{VP}, v[{S}:{S+3}] offset:{L_P+slot*256}")
        a("s_mov_b64 exec, -1")
    c(f"---- K phase: consume a chunk, refill its registers with chunk s{sK} (16,17 = first V chunks)")
    a("L_kloop:")
    for u in range(2):
        if u==0: a(f"s_cmp_eq_u32 s{sK}, 16\ns_cselect_b64 s[6:7], s[8:9], s[6:7]")
        kbody(u,True)
        nextchunk()
        a(f"s_lshl_b32 s{sIDX+u}, s{sK}, 8\ns_add_u32 s{sK}, s{sK}, 1")
        for x in range(2,U):
            if (x-1)%2==u: a(f"s_cmp_eq_u32 s{sK}, {U+x}\ns_cbranch_scc1 L_x{x}")
        a(f"L_xr{u}:")
    a(f"s_cmp_lt_u32 s{sK}, 18\ns_cbranch_scc1 L_kloop")
    def cvt():
        for g in range(4): a(f"v_cvt_pk_bf16_f32 v{S+g}, v{S+g}, v{S+g}")
    def ands(g,pb):
        for k in range(4): a(f"v_and_b32 v{pb+k}, v{S+g}, v{MK+k}")
    def mm1(slot,g,e,pb):
        r=RB+slot*32+g*8+4*e; d=ACC+4*e
        a(f"v_mfma_f32_16x16x32_bf16 v[{d}:{d+3}], v[{pb}:{pb+3}], v[{r}:{r+3}], v[{d}:{d+3}]")
    def mm(slot,g,pb): mm1(slot,g,0,pb); mm1(slot,g,1,pb)
    def dodirty():
        a(f"s_mov_b64 exec, -1\ns_lshl2_add_u32 s{sT}, s2, s{sW}\ns_lshl_b32 s{sT}, s{sT}, 12\ns_add_u32 s{sT}, s{sT}, 0x100000\nv_lshl_add_u32 v6, v2, 4, s{sT}")
        for k in range(dirty): a(f"global_store_dwordx4 v6, v[16:19], s[18:19] offset:{k*1024}")
    if dirty and dearly: dodirty()
    c("---- wave max over its 256 scores, scores -> exp2(c*(s - max)) in place")
    a(f"v_lshrrev_b32 v6, 2, v2\nv_lshlrev_b32 v6, 8, v6\nv_and_b32 v5, 3, v2\nv_lshl_add_u32 v6, v5, 4, v6\nv_lshl_add_u32 v6, v1, 6, v6")
    a(f"v_mov_b32 v{T}, v{M}\nds_read_b128 v[{S}:{S+3}], v6 offset:{L_P}\nv_lshlrev_b32 v5, 2, v1")
    a(f"v_permlane16_swap_b32 v{M}, v{T}\nv_max_f32 v{T+1}, v{M}, v{T}\nv_max_f32 v{T+2}, v{M}, v{T}\nv_lshrrev_b32 v{VO}, 1, v3\nv_lshlrev_b32 v{VO}, 9, v{VO}")
    a(f"v_permlane32_swap_b32 v{T+1}, v{T+2}\nv_max_f32 v{M}, v{T+1}, v{T+2}")
    if rnd:
        c("scores are a bf16 tensor in the reference: round them (and their max) the same way")
        a(f"v_cvt_pk_bf16_f32 v{M}, v{M}, v{M}\nv_lshlrev_b32 v{M}, 16, v{M}")
    a(f"v_mul_f32 v{M}, s{sC}, v{M}")
    a(f"s_waitcnt lgkmcnt(0)\nds_write_b32 v5, v{M} offset:{L_ML}")
    if rnd:
        a(f"v_cvt_pk_bf16_f32 v{S+1}, v{S}, v{S+1}\nv_cvt_pk_bf16_f32 v{S+3}, v{S+2}, v{S+3}\nv_lshlrev_b32 v{S}, 16, v{S+1}\nv_lshlrev_b32 v{S+2}, 16, v{S+3}\nv_and_b32 v{S+1}, 0xffff0000, v{S+1}\nv_and_b32 v{S+3}, 0xffff0000, v{S+3}")
    for g in range(4): a(f"v_fma_f32 v{S+g}, v{S+g}, s{sC}, -v{M}")
    for g in range(4): a(f"v_exp_f32 v{S+g}, v{S+g}")
    a(f"s_nop 0\nds_write_b128 v6, v[{S}:{S+3}] offset:{L_P}\nds_read_b128 v[{S}:{S+3}], v{VP} offset:{L_P}")
    a(f"ds_write_b32 v5, v{VONE} offset:{L_DN}")
    a(f"v_lshl_add_u32 v{VO}, v4, 5, v{VO}\nv_and_b32 v5, 1, v3\nv_lshl_add_u32 v{VO}, v5, 4, v{VO}\nv_lshl_add_u32 v{VO}, v1, 10, v{VO}")
    a("s_waitcnt lgkmcnt(1)")
    cvt(); ands(0,PB)
    a("s_nop 1")
    c("---- V phase: D[e][n] += sum_key p[key]*delta(e,e') * V[key][8n+e']  (A = masked p, B = raw V registers)")
    a("L_vloop:")
    for u in range(2):
        for g in range(4):
            mm(u,g,PB+4*(g&1))
            lw(f"{u}_{g}_0"); ld(u,g,0)
            if g<3: ands(g+1,PB+4*((g+1)&1))
            else:
                a("s_waitcnt lgkmcnt(0)")
                cvt(); level(); ands(0,PB)
            lw(f"{u}_{g}_1"); ld(u,g,1)
            if g==2:
                mark()
                a(f"v_add_u32 v{VP}, 256, v{VP}\nds_read_b128 v[{S}:{S+3}], v{VP} offset:{L_P}")
        nextchunk()
        a(f"s_add_u32 s{sK}, s{sK}, 1")
    a(f"s_cmp_lt_u32 s{sK}, 32\ns_cbranch_scc1 L_vloop")
    c("---- last two chunks")
    for g in range(4):
        a(f"s_waitcnt vmcnt({14-2*g})")
        mm(0,g,PB+4*(g&1))
        if g<3: ands(g+1,PB+4*((g+1)&1))
        if g==2: a(f"ds_read_b128 v[{S}:{S+3}], v{VP} offset:{L_P+256}")
        if g<2: a("s_nop 0")
    a("s_waitcnt lgkmcnt(0)")
    cvt()
    for g in range(4): ands(g,RB+4*g)
    for g in range(3):
        a(f"s_waitcnt vmcnt({6-2*g})"); mm(1,g,RB+4*g)
    a("s_waitcnt vmcnt(1)"); mm1(1,3,0,RB+12)
    a("s_waitcnt vmcnt(0)"); mm1(1,3,1,RB+12)
    a("s_mov_b32 exec_hi, 0\ns_nop 4")
    a(f"ds_write_b128 v{VO}, v[{ACC}:{ACC+3}] offset:{L_O}")
    a("s_not_b64 exec, exec")
    a(f"ds_write_b128 v{VO}, v[{ACC+4}:{ACC+7}] offset:{L_O}")
    a("s_waitcnt lgkmcnt(0)\ns_barrier")
    if dirty and not dearly: dodirty()
    a("s_endpgm")
    for x in range(2,U):
        c(f"start-up chunk {x} (no refill)")
        a(f"L_x{x}:")
        kbody(x,False)
        a(f"s_branch L_xr{(x-1)%2}")
    c("================= waves 4-7 =================")
    a("L_helper:")
    a(f"s_lshr_b32 s{sI}, s2, 3\nv_lshrrev_b32 v5, 3, v2\nv_and_b32 v7, 7, v2")
    a(f"s_cmp_eq_u32 s{sW}, 4\ns_cbranch_scc1 L_isq\ns_cmp_eq_u32 s{sW}, 7\ns_cbranch_scc1 L_w7")
    a("s_barrier\ns_branch L_hwait")
    c("wave 7: pull this kernel's code into L2, then hop over it (EXEC=0, branches only) to fill the instruction cache")
    a("L_w7:")
    a(f"s_getpc_b64 s[{sA}:{sA+1}]\nL_pc:\ns_sub_u32 s{sA}, s{sA}, L_pc-{MAIN}\ns_subb_u32 s{sA+1}, s{sA+1}, 0\nv_lshlrev_b32 v6, 6, v2")
    if not w7early: a("s_barrier")
    a(f"global_load_dword v10, v6, s[{sA}:{sA+1}]\nv_add_u32 v6, 0x1000, v6\nv_min_u32 v9, L_last-{MAIN}, v6\nglobal_load_dword v10, v9, s[{sA}:{sA+1}]")
    a(f"v_add_u32 v6, 0x1000, v6\nv_min_u32 v9, L_last-{MAIN}, v6\nglobal_load_dword v10, v9, s[{sA}:{sA+1}]")
    if "s" in opre:
        c("touch the d_ws lines this workgroup hands data over in and the K/V pages, before HBM is busy (values unused)")
        a(f"s_lshl3_add_u32 s{sT2}, s{sBH}, s{sS}\ns_lshl_b32 s{sT2}, s{sT2}, 10\ns_add_u32 s{sT2}, s{sT2}, {WS_OP}\nv_lshl_add_u32 v9, v2, 4, s{sT2}\ns_waitcnt lgkmcnt(0)\nglobal_load_dword v10, v9, s[18:19]")
    if "k" in opre or "v" in opre:
        a(f"s_lshl_b32 s{sT}, s{sBH}, 22\nv_and_b32 v9, 1, v2\nv_lshlrev_b32 v9, 21, v9\nv_add_u32 v9, s{sT}, v9")
        if "k" in opre: a("global_load_dword v10, v9, s[6:7] nt")
        if "v" in opre: a("global_load_dword v10, v9, s[8:9] nt")
    if "o" in opre:
        a(f"s_min_u32 s{sT}, s{sX}, 6\ns_lshl_b32 s{sT}, s{sT}, 7\nv_and_b32 v9, 1, v2\nv_mul_u32_u24 v9, 896, v9\nv_add_u32 v9, s{sT}, v9\ns_cmp_lt_u32 s{sS}, 7\ns_cbranch_scc1 L_noo\nglobal_load_dword v10, v9, s[14:15]\nL_noo:")
    if "q" in opre:
        a(f"s_lshr_b32 s{sB}, s{sBH}, 4\ns_lshl3_add_u32 s{sT2}, s{sB}, s{sS}\ns_lshl_b32 s{sT2}, s{sT2}, 8\ns_lshl_b32 s{sT}, s{sH}, 13\ns_add_u32 s{sT2}, s{sT2}, s{sT}\ns_add_u32 s{sT2}, s{sT2}, {WS_QP}")
        a(f"v_lshrrev_b32 v9, 5, v2\nv_lshlrev_b32 v9, 12, v9\nv_lshl_add_u32 v9, v4, 4, v9\nv_add_u32 v9, s{sT2}, v9\nglobal_load_dword v10, v9, s[18:19]")
    if "x" in opre:
        a(f"s_lshl_b32 s{sT}, s{sX}, 8\ns_add_u32 s{sT}, s{sT}, {WS_XI}\nv_lshl_add_u32 v9, v2, 2, s{sT}\nglobal_load_dword v10, v9, s[18:19]")
    if "y" in opre:
        a(f"s_and_b32 s{sT}, s{sI}, 3\ns_lshl2_add_u32 s{sT}, s{sX}, s{sT}\ns_lshl_b32 s{sT2}, s{sS}, 7\ns_add_u32 s{sT}, s{sT}, s{sT2}\ns_lshl_b32 s{sT}, s{sT}, 7\ns_add_u32 s{sT}, s{sT}, {WS_Y}")
        a(f"v_lshlrev_b32 v9, 12, v3\nv_lshl_add_u32 v9, v4, 3, v9\nv_add_u32 v9, s{sT}, v9\nglobal_load_dword v10, v9, s[18:19]")
        for r in range(1,R): a("v_add_u32 v9, 0x20000, v9\nglobal_load_dword v10, v9, s[18:19]")
    if w7early: a("s_barrier")
    a("s_waitcnt vmcnt(0)")
    if pad: a("s_mov_b64 exec, 0\ns_branch L_pad0")
    else: a("s_branch L_hwait")
    c("wave 4: partial q over rows 112*rq .., columns 256h + 64*cq .., both batches  (rq = 2b + (s>>2), cq = s&3)")
    a("L_isq:")
    a("s_setprio 3")
    a(f"s_lshr_b32 s{sB}, s{sBH}, 4\ns_lshr_b32 s{sT2}, s{sS}, 2\ns_lshl1_add_u32 s{sTK}, s{sB}, s{sT2}\ns_mul_i32 s{sT}, s{sTK}, 112")
    a(f"s_and_b32 s{sK}, s{sS}, 3")
    a(f"v_and_b32 v6, 1, v2\nv_mul_u32_u24 v6, 896, v6\nv_lshl_add_u32 v6, v3, 3, v6\ns_lshl_b32 s{sT}, s{sT}, 1\nv_add_u32 v6, s{sT}, v6")
    a(f"s_waitcnt lgkmcnt(0)\ns_load_dword s{sE}, s[18:19], 0")
    for u in range(7): a(f"global_load_dwordx2 v[{16+2*u}:{17+2*u}], v6, s[4:5] offset:{u*32}")
    a("v_lshrrev_b32 v7, 2, v2\nv_lshlrev_b32 v7, 7, v7\nv_and_b32 v8, 3, v2\nv_lshl_add_u32 v7, v8, 3, v7")
    a(f"s_lshl_b32 s{sT}, s{sH}, 13\ns_lshl_b32 s{sT2}, s{sTK}, 10\ns_add_u32 s{sT2}, s{sT2}, s{sT}\ns_lshl_b32 s{sK}, s{sK}, 8\ns_add_u32 s{sT2}, s{sT2}, s{sK}\ns_add_u32 s{sT2}, s{sT2}, {WS_QP+2048}")
    a(f"v_lshl_add_u32 v8, v2, 2, s{sT2}")
    a(f"s_lshl_b32 s{sT2}, s{sB}, 12\ns_add_u32 s{sT}, s{sT}, s{sT2}\ns_add_u32 s{sT}, s{sT}, {WS_QP}\nv_lshl_add_u32 v9, v2, 4, s{sT}")
    c("team marker: launch tag ^ (XCC id << 28)")
    a(f"s_lshl_b32 s{sT}, s{sX}, 8\ns_add_u32 s{sT}, s{sT}, {WS_XI}\nv_and_b32 v14, 31, v2\nv_lshl_add_u32 v14, v14, 2, s{sT}\ns_lshl2_add_u32 s{sT}, s{sI}, s{sT}\nv_mov_b32 v12, s{sT}")
    a(f"s_getreg_b32 s{sXV}, hwreg(HW_REG_XCC_ID, 0, 4)\ns_lshl_b32 s{sXV}, s{sXV}, 28")
    a(f"s_waitcnt lgkmcnt(0)\ns_add_u32 s{sE}, s{sE}, 1\ns_xor_b32 s{sXV}, s{sXV}, s{sE}\nv_mov_b32 v13, s{sXV}\nglobal_store_dword v12, v13, s[18:19]")
    c("q partials carry the tag in 4 bits of every word (all 1024 words must match at once)")
    a(f"s_and_b32 s{sTAG}, s{sE}, 15\nv_mov_b32 v10, s{sTAG}\ns_movk_i32 s{sC}, 15")
    a("s_barrier")
    if qs: a(f"s_sleep {qs}")
    a(f"global_load_dword v15, v14, s[18:19] sc1\ns_waitcnt vmcnt(2)" if not late else "s_waitcnt vmcnt(1)")
    B0=48; D0=32
    def trs(u):
        for k in range(4): a(f"ds_read_b64_tr_b16 v[{B0+u*8+2*k}:{B0+u*8+2*k+1}], v7 offset:{L_WQ+u*2048+k*32}")
    trs(0); trs(1); trs(2)
    for u in range(7):
        if u+3<7:
            a("s_waitcnt lgkmcnt(8)"); trs(u+3)
        else: a(f"s_waitcnt lgkmcnt({4*(6-u)})")
        for k in range(4):
            cc="0" if u==0 else f"v[{D0+4*k}:{D0+4*k+3}]"
            a(f"v_mfma_f32_16x16x16_bf16 v[{D0+4*k}:{D0+4*k+3}], v[{16+2*u}:{17+2*u}], v[{B0+u*8+2*k}:{B0+u*8+2*k+1}], {cc}")
    a("s_nop 5" if not late else "global_load_dword v15, v14, s[18:19] sc1\ns_nop 4")
    for k in range(1,4):
        for bb in range(2): a(f"v_mov_b32_dpp v{D0+bb}, v{D0+4*k+bb} quad_perm:[0,1,2,3] row_mask:{hex(1<<k)} bank_mask:0xf")
        if k<3: a("s_nop 0")
    for bb in range(2): a(f"v_bfi_b32 v{D0+bb}, s{sC}, v10, v{D0+bb}")
    a(f"s_waitcnt vmcnt(0)\nv_cmp_ne_u32 vcc, s{sXV}, v15\ns_cbranch_vccnz L_qrem")
    a(f"global_store_dword v8, v{D0}, s[18:19] offset:-2048\nglobal_store_dword v8, v{D0+1}, s[18:19] offset:2048\ns_branch L_qpub\nL_qrem:")
    a(f"global_store_dword v8, v{D0}, s[18:19] offset:-2048 sc1\nglobal_store_dword v8, v{D0+1}, s[18:19] offset:2048 sc1")
    a(f"L_qpub:\ns_mov_b32 s{sSP}, {SPIN}\ns_waitcnt vmcnt(0)")
    c("gather the four partials of q[b][h]")
    a(f"L_qpoll:\ns_sleep {qback}")
    for k in range(4): a(f"global_load_dwordx4 v[{16+4*k}:{19+4*k}], v9, s[18:19] offset:{k*1024} sc1")
    a(f"s_sub_u32 s{sSP}, s{sSP}, 1\ns_cbranch_scc1 L_qgo")
    a("s_waitcnt vmcnt(0)")
    for k in range(16): a(f"v_xor_b32 v{16+k}, s{sTAG}, v{16+k}")
    a("v_or3_b32 v12, v16, v17, v18")
    for k in range(3,15,2): a(f"v_or3_b32 v12, v12, v{16+k}, v{17+k}")
    a(f"v_or_b32 v12, v12, v31\nv_and_b32 v12, s{sC}, v12\nv_cmp_ne_u32 vcc, 0, v12\ns_cbranch_vccnz L_qpoll")
    a("L_qgo:")
    for r in range(4): a(f"v_add_f32 v{16+r}, v{16+r}, v{20+r}\nv_add_f32 v{24+r}, v{24+r}, v{28+r}")
    for r in range(4): a(f"v_add_f32 v{16+r}, v{16+r}, v{24+r}")
    a(f"v_cvt_pk_bf16_f32 v16, v16, v17\nv_cvt_pk_bf16_f32 v17, v18, v19\nv_lshlrev_b32 v5, 3, v2\nds_write_b64 v5, v[16:17] offset:{L_Q}")
    a(f"v_mov_b32 v5, 0\nv_mov_b32 v7, s{sE}\nds_write_b32 v5, v7 offset:{L_E}\nds_write_b32 v5, v5 offset:{L_QF}")
    a("s_setprio 0\ns_branch L_hgo")
    if pad: a("@PADEND@\ns_mov_b64 exec, -1")
    a(f"L_hwait:\nv_mov_b32 v5, 0\ns_mov_b32 s{sSP}, {SPIN*4}")
    a(f"L_hw:\ns_sleep 4\nds_read_b32 v8, v5 offset:{L_QF}\ns_sub_u32 s{sSP}, s{sSP}, 1\ns_cbranch_scc1 L_hgo\ns_waitcnt lgkmcnt(0)\nv_cmp_eq_u32 vcc, -1, v8\ns_cbranch_vccnz L_hw")
    WO=64
    c(f"---- addresses for the tail; s{sK} = wave-4, s{sB} = 4x + (i&3)")
    a("L_hgo:")
    a(f"v_mov_b32 v28, 0\nds_read_b32 v6, v28 offset:{L_E}")
    a(f"s_sub_u32 s{sK}, s{sW}, 4\ns_movk_i32 s{sC}, {TAGM}\ns_not_b32 s{sAT}, s{sC}")
    a(f"s_and_b32 s{sT}, s{sI}, 3\ns_lshl2_add_u32 s{sB}, s{sX}, s{sT}\nv_and_b32 v7, 7, v2\nv_lshlrev_b32 v27, 4, v2")
    a(f"s_lshl_b32 s{sT}, s{sX}, 8\ns_add_u32 s{sT}, s{sT}, {WS_XI}\nv_and_b32 v14, 31, v2\nv_lshl_add_u32 v14, v14, 2, s{sT}")
    a("global_load_dword v11, v14, s[18:19] sc1")
    c("team 'projection done' markers: v12 own, v14 all 28")
    a(f"s_add_u32 s{sT}, s{sT}, 128\nv_min_u32 v14, 27, v2\nv_lshl_add_u32 v14, v14, 2, s{sT}\ns_lshl2_add_u32 s{sT}, s{sI}, s{sT}\nv_mov_b32 v12, s{sT}")
    a(f"s_waitcnt lgkmcnt(0)\nv_readfirstlane_b32 s{sE}, v6\nv_mov_b32 v13, v6")
    a(f"s_getreg_b32 s{sXV}, hwreg(HW_REG_XCC_ID, 0, 4)\ns_lshl_b32 s{sXV}, s{sXV}, 28\ns_xor_b32 s{sXV}, s{sXV}, s{sE}")
    a(f"s_and_b32 s{sTAG}, s{sE}, {TAGM}\nv_mov_b32 v15, s{sTAG}")
    c("o gather: v20 (batch 0), v25 (batch 1): 8 producers x 32 rows")
    a(f"s_lshr_b32 s{sT}, s{sB}, 1\ns_lshl_b32 s{sT}, s{sT}, 13\ns_and_b32 s{sT2}, s{sB}, 1\ns_lshl2_add_u32 s{sT2}, s{sT2}, s{sK}\ns_lshl_b32 s{sT2}, s{sT2}, 7\ns_add_u32 s{sT}, s{sT}, s{sT2}\ns_add_u32 s{sT}, s{sT}, {WS_OP}")
    a(f"v_lshrrev_b32 v6, 3, v2\nv_lshlrev_b32 v6, 10, v6\nv_lshl_add_u32 v6, v7, 4, v6\nv_add_u32 v20, s{sT}, v6\nv_add_u32 v25, 0x20000, v20")
    c("own o: LDS v21, d_ws v22")
    a(f"s_lshl_b32 s{sT}, s{sK}, 8\nv_lshl_add_u32 v21, v2, 2, s{sT}\ns_lshl3_add_u32 s{sT2}, s{sBH}, s{sS}\ns_lshl_b32 s{sT2}, s{sT2}, 10\ns_add_u32 s{sT2}, s{sT2}, {WS_OP}\nv_add_u32 v22, s{sT2}, v21\nv_add_u32 v21, {L_O}, v21")
    c("partial outputs: store v23, reducer gather v24, d_out v26")
    a(f"s_lshl2_add_u32 s{sT}, s{sS}, s{sK}\ns_lshl_b32 s{sT}, s{sT}, 5\ns_add_u32 s{sT}, s{sT}, s{sB}\ns_lshl_b32 s{sT}, s{sT}, 7\ns_add_u32 s{sT}, s{sT}, {WS_Y}\nv_lshl_add_u32 v23, v2, 2, s{sT}")
    a(f"s_lshl_b32 s{sT}, s{sB}, 12\ns_lshl_b32 s{sT2}, s{sK}, 5\ns_add_u32 s{sT}, s{sT}, s{sT2}\ns_add_u32 s{sT}, s{sT}, {WS_Y}")
    a(f"v_lshrrev_b32 v6, 1, v2\nv_lshlrev_b32 v6, 7, v6\nv_and_b32 v8, 1, v2\nv_lshl_add_u32 v6, v8, 4, v6\nv_add_u32 v24, s{sT}, v6")
    a(f"s_lshr_b32 s{sT}, s{sK}, 1\ns_mul_i32 s{sT}, s{sT}, 896\ns_lshl_b32 s{sT2}, s{sB}, 5\ns_add_u32 s{sT}, s{sT}, s{sT2}\ns_and_b32 s{sT2}, s{sK}, 1\ns_lshl4_add_u32 s{sT}, s{sT2}, s{sT}\nv_lshl_add_u32 v26, v8, 3, s{sT}\nv_lshl_add_u32 v26, v3, 1, v26")
    c("LDS: v29 bf16 o write, v30 A-operand read, v9 transposing wo read")
    a(f"s_lshl_b32 s{sT}, s{sK}, 6\nv_lshl_add_u32 v29, v7, 3, s{sT}\nv_lshl_add_u32 v29, v3, 1, v29\nv_bfe_u32 v6, v2, 3, 1\nv_lshl_add_u32 v29, v6, 8, v29\nv_lshlrev_b32 v30, 4, v3\nv_lshl_add_u32 v30, v8, 8, v30")
    a(f"v_and_b32 v10, 1, v3\nv_lshl_add_u32 v6, v10, 1, v6\nv_xor_b32 v6, s{sK}, v6\nv_bfe_u32 v9, v2, 2, 2\nv_lshl_add_u32 v9, v3, 3, v9\nv_lshlrev_b32 v9, 7, v9\nv_lshl_add_u32 v9, v6, 5, v9\nv_and_b32 v6, 3, v2\nv_lshl_add_u32 v9, v6, 3, v9")
    c(f"s{sLOC} = 1 when all 32 team members are on this XCD")
    a(f"s_waitcnt vmcnt(0)\nv_cmp_ne_u32 vcc, s{sXV}, v11\ns_cmp_eq_u64 vcc, 0\ns_cselect_b32 s{sLOC}, 1, 0")
    a(f"s_cmp_eq_u32 s{sW}, 5\ns_cbranch_scc1 L_bal\ns_cmp_lg_u32 s{sW}, 4\ns_cbranch_scc1 L_nogat")
    def pwait(lb,val,sl):
        a(f"s_mov_b32 s{sSP}, {SPIN}\nL_{lb}:\ns_sleep {sl}")
        a(f"ds_read_b64 v[48:49], v28 offset:{L_TS}\ns_sub_u32 s{sSP}, s{sSP}, 1\ns_cbranch_scc1 L_{lb}go\ns_waitcnt lgkmcnt(0)\nv_cmp_gt_i32 vcc, {val}, v49\ns_cbranch_vccnz L_{lb}\nL_{lb}go:")
    c("---- wave 4: workgroup (max, sum) after the K phase, exchanged inside (b,h) -> factor exp2(wave max - M)/L per wave")
    a(f"v_and_b32 v16, 12, v2\ns_mov_b32 s{sSP}, {SPIN}")
    a(f"L_c1:\ns_sleep 8\nds_read_b32 v17, v16 offset:{L_DN}\ns_sub_u32 s{sSP}, s{sSP}, 1\ns_cbranch_scc1 L_c1go\ns_waitcnt lgkmcnt(0)\nv_cmp_eq_u32 vcc, -1, v17\ns_cbranch_vccnz L_c1\nL_c1go:")
    a(f"ds_read_b32 v17, v16 offset:{L_ML}")
    for i in range(4): a(f"ds_read_b128 v[{32+4*i}:{35+4*i}], v27 offset:{L_P+i*1024}")
    a(f"s_mul_i32 s{sT}, s2, {XST}\ns_add_u32 s{sT}, s{sT}, {WS_X}\nv_add_u32 v18, s{sT}, v27")
    a("s_waitcnt lgkmcnt(0)")
    a(f"v_max_f32_dpp v56, v17, v17 row_ror:4 {DPM}\nv_add_f32 v32, v32, v33\nv_add_f32 v34, v34, v35")
    a(f"v_max_f32_dpp v56, v56, v56 row_ror:8 {DPM}\nv_and_b32 v56, s{sAT}, v56\nv_sub_f32 v19, v17, v56\nv_exp_f32 v19, v19")
    for r in range(36,48): a(f"v_add_f32 v{32+2*(r&1)}, v{32+2*(r&1)}, v{r}")
    a("v_add_f32 v32, v32, v34\nv_mul_f32 v57, v32, v19")
    for d in DP4: a(f"s_nop 1\nv_add_f32_dpp v57, v57, v57 {d} {DPM}")
    a("v_mov_b32 v58, v57\ns_nop 1\nv_permlane16_swap_b32 v57, v58\nv_add_f32 v57, v57, v58\nv_mov_b32 v58, v57\ns_nop 1\nv_permlane32_swap_b32 v57, v58\nv_add_f32 v57, v57, v58")
    a(f"v_or_b32 v56, v56, v15\nv_bfi_b32 v57, s{sC}, v15, v57\nv_mov_b32 v58, s{sE}\nv_mov_b32 v59, s{sE}")
    a("s_mov_b64 exec, 0xff" if mlfull else "s_mov_b64 exec, 1")
    a(f"s_cmp_eq_u32 s{sLOC}, 0\ns_cbranch_scc1 L_mrem\nglobal_store_dwordx4 v18, v[56:59], s[18:19]\ns_branch L_mdone\nL_mrem:")
    a("global_store_dwordx4 v18, v[56:59], s[18:19] sc1\nL_mdone:\ns_mov_b64 exec, -1")
    a(f"s_and_b32 s{sT}, s2, 31\ns_mul_i32 s{sT}, s{sT}, {XST}\ns_add_u32 s{sT}, s{sT}, {WS_X}\nv_mul_u32_u24 v18, {32*XST}, v7\nv_add_u32 v18, s{sT}, v18")
    pwait("c2",17+GD,8)
    a(f"s_mov_b32 s{sSP}, {SPIN}\ns_branch L_xp1")
    a("L_xp:\ns_sleep 32\nL_xp1:")
    a("global_load_dwordx4 v[56:59], v18, s[18:19] sc1")
    a(f"s_sub_u32 s{sSP}, s{sSP}, 1\ns_cbranch_scc1 L_xgo\ns_waitcnt vmcnt(0)")
    a(f"v_xor_b32 v56, s{sTAG}, v56\nv_xor_b32 v57, s{sTAG}, v57\nv_xor_b32 v59, s{sE}, v59\nv_or_b32 v31, v56, v57")
    a(f"v_and_or_b32 v31, v31, s{sC}, v59\nv_cmp_ne_u32 vcc, 0, v31\ns_cbranch_vccnz L_xp\nL_xgo:")
    a(f"v_max_f32_dpp v32, v56, v56 {DP4[0]} {DPM}\ns_nop 1\nv_max_f32_dpp v32, v32, v32 {DP4[1]} {DPM}\ns_nop 1\nv_max_f32_dpp v32, v32, v32 {DP4[2]} {DPM}")
    a("v_sub_f32 v56, v56, v32\nv_sub_f32 v17, v17, v32\nv_exp_f32 v56, v56\nv_exp_f32 v17, v17\nv_mul_f32 v33, v56, v57")
    for d in DP4[:3]: a(f"s_nop 1\nv_add_f32_dpp v33, v33, v33 {d} {DPM}")
    a(f"v_rcp_f32 v33, v33\ns_nop 0\nv_mul_f32 v17, v17, v33\nds_write_b32 v16, v17 offset:{L_F}")
    a("s_branch L_nogat")
    sN=sTK; sPM=sH
    c(f"---- wave 5: mean progress mark of workgroups 0..63 at chunks {', '.join(str(n1+P*i) for i in range(NC))} -> reference line (offset, slope)")
    a("L_bal:")
    a(f"s_mul_i32 s{sT}, s2, {XST}\ns_add_u32 s{sT}, s{sT}, {WS_T}\nv_lshl_add_u32 v18, v4, 3, s{sT}\nv_and_b32 v19, {NS-1}, v2\nv_mul_u32_u24 v19, {XST}, v19\nv_add_u32 v19, {WS_T}, v19")
    a(f"s_mov_b32 s{sN}, {n1}\ns_mov_b32 s{sTV}, {int(tau0*16)}\nv_mov_b32 v51, s{sE}\ns_mov_b32 s{sPM}, 0")
    if tpre:
        a(f"s_cmp_ge_u32 s2, {NS}\ns_cbranch_scc1 L_pc0\nv_min_u32 v52, {NC-1}, v2\nv_lshl_add_u32 v52, v52, 14, v18\nglobal_load_dword v53, v52, s[18:19]")
    a("L_pc0:")
    pwait("p1",f"s{sN}",4)
    a(f"v_subrev_u32 v49, s{sN}, v49\nv_mul_u32_u24 v49, {int(tau0)}, v49\nv_sub_u32 v50, v48, v49")
    a(f"s_cmp_ge_u32 s2, {NS}\ns_cbranch_scc1 L_pc1\ns_mov_b64 exec, {'0xffff' if full else 1}\nglobal_store_dwordx2 v18, v[50:51], s[18:19] sc1\ns_mov_b64 exec, -1\nL_pc1:")
    a(f"s_add_u32 s{sT}, s{sN}, {D}")
    pwait("p2",f"s{sT}",4)
    a(f"s_mov_b32 s{sSP}, {SPIN}\ns_branch L_pp1\nL_pp:\ns_sleep 32\nL_pp1:")
    a("global_load_dwordx2 v[52:53], v19, s[18:19] sc1")
    a(f"s_sub_u32 s{sSP}, s{sSP}, 1\ns_cbranch_scc1 L_ppgo\ns_waitcnt vmcnt(0)\nv_cmp_ne_u32 vcc, s{sE}, v53\ns_and_b64 exec, exec, vcc\ns_cbranch_scc1 L_pp\nL_ppgo:\ns_mov_b64 exec, -1")
    a(f"v_sub_u32 v52, v52, v50\nv_add_u32 v18, {64*XST}, v18\nv_add_u32 v19, {64*XST}, v19")
    for d in DP4: a(f"v_add_u32_dpp v52, v52, v52 {d} {DPM}\ns_nop 1")
    a(f"v_readlane_b32 s{sT}, v52, 0\nv_readlane_b32 s{sT2}, v52, 16\nv_readlane_b32 s{sREF}, v52, 32\nv_readlane_b32 s{sTAU}, v52, 48\nv_readfirstlane_b32 s{sXV}, v50")
    a(f"s_add_u32 s{sT}, s{sT}, s{sT2}\ns_add_u32 s{sREF}, s{sREF}, s{sTAU}\ns_add_u32 s{sT}, s{sT}, s{sREF}\ns_ashr_i32 s{sT}, s{sT}, 6\ns_add_u32 s{sT}, s{sT}, s{sXV}")
    a(f"s_sub_u32 s{sT2}, s{sT}, s{sPM}\ns_mul_i32 s{sT2}, s{sT2}, {int(16*256/P)}\ns_lshr_b32 s{sT2}, s{sT2}, 8\ns_max_u32 s{sT2}, s{sT2}, {int(tau0*16)}\ns_cmp_eq_u32 s{sN}, {n1}\ns_cselect_b32 s{sTV}, s{sTV}, s{sT2}\ns_mov_b32 s{sPM}, s{sT}")
    a(f"s_mul_i32 s{sT2}, s{sN}, s{sTV}\ns_lshr_b32 s{sT2}, s{sT2}, 4\ns_sub_u32 s{sT}, s{sT}, s{sT2}\ns_add_u32 s{sT}, s{sT}, {a0}\nv_mov_b32 v52, s{sT}\nv_mov_b32 v53, s{sTV}\nds_write_b64 v28, v[52:53] offset:{L_REF}")
    a(f"s_add_u32 s{sN}, s{sN}, {P}\ns_cmp_lt_u32 s{sN}, {n1+P*NC}\ns_cbranch_scc1 L_pc0")
    c("every workgroup has read the tag word by now (the marks cover all heads): advance it for the next launch")
    a(f"s_cmp_lg_u32 s2, 255\ns_cbranch_scc1 L_nogat\nglobal_store_dword v28, v51, s[18:19] sc1")
    c("---- all four: pick up the per-wave factors, wait for the streaming waves")
    a("L_nogat:")
    a(f"s_mov_b32 s{sSP}, {SPIN}\ns_branch L_f1\nL_f0:\ns_sleep 8\nL_f1:\nds_read_b128 v[44:47], v28 offset:{L_F}\ns_sub_u32 s{sSP}, s{sSP}, 1\ns_cbranch_scc1 L_fgo\ns_waitcnt lgkmcnt(0)\nv_cmp_eq_u32 vcc, -1, v44\ns_cbranch_vccnz L_f0\nL_fgo:")
    if "l" in opre: a("global_load_dword v11, v22, s[18:19]")
    if "w" in opre: a(f"s_cmp_eq_u32 s{sLOC}, 0\ns_cbranch_scc1 L_npw\nv_xor_b32 v11, 1, v15\nglobal_store_dword v22, v11, s[18:19]\nL_npw:")
    if "O" in opre:
        a(f"s_cmp_lt_u32 s{sS}, 7\ns_cbranch_scc1 L_noo2\ns_cmp_eq_u32 s{sX}, 7\ns_cbranch_scc1 L_noo2\nglobal_load_ushort v10, v26, s[14:15]\nL_noo2:")
    for r in range(1,R): a(f"v_add_u32 v{80+r}, {hex(0x20000*r)}, v23\nv_add_u32 v{84+r}, {hex(0x20000*r)}, v24")
    if hoist:
        c("wo tile as MFMA B operands (the factors imply that the streaming waves are past their weight loads)")
        for kp in range(4):
            for j in range(2):
                r=WO+kp*4+j*2
                a(f"ds_read_b64_tr_b16 v[{r}:{r+1}], v9 offset:{L_WO+kp*4096+j*512}")
    a(f"s_mov_b32 s{sSP}, {SPIN*4}\ns_cmp_lg_u32 s{sLOC}, 0")
    if hoist: a("@PAD@\ns_waitcnt vmcnt(0) lgkmcnt(0)\ns_barrier")
    else: a("s_waitcnt vmcnt(0) lgkmcnt(0)\ns_barrier\nL_tail0:")
    a("ds_read2st64_b32 v[32:33], v21 offset0:0 offset1:4\nds_read2st64_b32 v[34:35], v21 offset0:8 offset1:12")
    a("s_waitcnt lgkmcnt(0)")
    a(f"v_pk_mul_f32 v[32:33], v[32:33], v[44:45]\nv_pk_fma_f32 v[32:33], v[34:35], v[46:47], v[32:33]\nv_add_f32 v32, v32, v33\nv_bfi_b32 v32, s{sC}, v15, v32")
    a(f"s_cbranch_scc0 L_orem\nglobal_store_dword v22, v32, s[18:19] {ofl}\nL_odone:")
    a(f"s_cmp_ge_u32 s{sI}, 28\ns_cbranch_scc1 L_final")
    c("---- projection workgroups: sum 8 partial o per batch, bf16, times the wo tile")
    if not hoist:
        a("global_load_dwordx4 v[36:39], v20, s[18:19] sc1\nglobal_load_dwordx4 v[40:43], v25, s[18:19] sc1")
        for kp in range(4):
            for j in range(2):
                r=WO+kp*4+j*2
                a(f"ds_read_b64_tr_b16 v[{r}:{r+1}], v9 offset:{L_WO+kp*4096+j*512}")
        a("s_branch L_h1a")
    a("L_h1poll:")
    a("global_load_dwordx4 v[36:39], v20, s[18:19] sc1\nglobal_load_dwordx4 v[40:43], v25, s[18:19] sc1")
    a(f"s_sub_u32 s{sSP}, s{sSP}, 1\ns_cbranch_scc1 L_h1go")
    a("@PAD@\ns_waitcnt vmcnt(0)" if hoist else "L_h1a:\ns_waitcnt vmcnt(0)")
    for r in range(36,44): a(f"v_xor_b32 v{r}, s{sTAG}, v{r}")
    a(f"v_or3_b32 v31, v36, v37, v38\nv_or3_b32 v32, v39, v40, v41\nv_or3_b32 v31, v31, v42, v43\nv_or_b32 v31, v31, v32\nv_and_b32 v31, s{sC}, v31")
    a("v_cmp_ne_u32 vcc, 0, v31\ns_and_b64 exec, exec, vcc\ns_cbranch_scc1 L_h1poll\nL_h1go:\ns_mov_b64 exec, -1")
    a("v_permlane32_swap_b32 v36, v38\nv_permlane32_swap_b32 v37, v39\nv_permlane32_swap_b32 v40, v42\nv_permlane32_swap_b32 v41, v43")
    a("v_add_f32 v36, v36, v38\nv_add_f32 v37, v37, v39\nv_add_f32 v40, v40, v42\nv_add_f32 v41, v41, v43")
    a("v_permlane16_swap_b32 v36, v37\nv_add_f32 v36, v36, v37\nv_permlane16_swap_b32 v40, v41\nv_add_f32 v40, v40, v41")
    a("v_add_f32_dpp v37, v36, v36 row_ror:8 row_mask:0xf bank_mask:0x3\ns_nop 1\nv_add_f32_dpp v37, v40, v40 row_ror:8 row_mask:0xf bank_mask:0xc\nv_cvt_pk_bf16_f32 v37, v37, v37")
    a(f"ds_write_b16 v29, v37 offset:{L_OB}")
    if gm==2: a("global_store_dword v12, v13, s[18:19]")
    a("s_waitcnt lgkmcnt(0)\ns_barrier")
    for kp in range(4): a(f"ds_read_b128 v[{40+4*kp}:{43+4*kp}], v30 offset:{L_OB+kp*64}")
    if hoist: a("@PAD@")
    if gm==1: a("global_store_dword v12, v13, s[18:19]")
    for kp in range(4):
        a(f"s_waitcnt lgkmcnt({3-kp})")
        cc="0" if kp==0 else "v[56:59]"
        a(f"v_mfma_f32_16x16x32_bf16 v[56:59], v[{40+4*kp}:{43+4*kp}], v[{WO+kp*4}:{WO+kp*4+3}], {cc}")
    a(f"s_mov_b32 exec_hi, 0\ns_nop 6")
    a(f"v_mov_b32_dpp v56, v57 quad_perm:[0,1,2,3] row_mask:0x2 bank_mask:0xf\nv_bfi_b32 v56, s{sC}, v15, v56")
    a("global_store_dword v23, v56, s[18:19] sc1")
    if not gm: a("global_store_dword v12, v13, s[18:19]")
    for r in range(1,R): a(f"global_store_dword v{80+r}, v56, s[18:19] sc1")
    a("s_endpgm")
    c("---- reducer workgroups: 32 partials x 8 outputs per wave; first read once the own team is through")
    a("L_final:")
    a(f"s_cmp_eq_u32 s{sX}, 7\ns_cbranch_scc1 L_end\ns_cmp_eq_u32 s{sLOC}, 0\ns_cbranch_scc1 L_h2poll")
    a(f"L_g2:\nglobal_load_dword v32, v14, s[18:19] sc1\ns_sub_u32 s{sSP}, s{sSP}, 1\ns_cbranch_scc1 L_h2go\ns_waitcnt vmcnt(0)\nv_cmp_ne_u32 vcc, s{sE}, v32\ns_cbranch_vccnz L_g2")
    if R>1 and cond:
        for r in range(1,R):
            a(f"global_load_dwordx4 v[32:35], v{84+r}, s[18:19] sc1\ns_waitcnt vmcnt(0)")
            for k in range(4): a(f"v_xor_b32 v{32+k}, s{sTAG}, v{32+k}")
            a(f"v_or3_b32 v31, v32, v33, v34\nv_or_b32 v31, v31, v35\nv_and_b32 v31, s{sC}, v31")
            a("v_cmp_ne_u32 vcc, 0, v31\ns_and_b64 exec, exec, vcc\ns_cbranch_scc0 L_h2go")
    elif R>1:
        for r in range(R):
            if r: a(f"s_sleep {sp}")
            a(f"global_load_dwordx4 v[{88+4*r}:{91+4*r}], v{84+r if r else 24}, s[18:19] sc1")
        for r in range(R):
            a(f"s_waitcnt vmcnt({R-1-r})")
            for k in range(4): a(f"v_xor_b32 v{32+k}, s{sTAG}, v{88+4*r+k}")
            a(f"v_or3_b32 v31, v32, v33, v34\nv_or_b32 v31, v31, v35\nv_and_b32 v31, s{sC}, v31")
            a("v_cmp_ne_u32 vcc, 0, v31\ns_and_b64 exec, exec, vcc\ns_cbranch_scc0 L_h2go")
    a("L_h2poll:\nglobal_load_dwordx4 v[32:35], v24, s[18:19] sc1")
    if hoist: a("@PAD@")
    a(f"s_sub_u32 s{sSP}, s{sSP}, 1\ns_cbranch_scc1 L_h2go\ns_waitcnt vmcnt(0)")
    for r in range(4): a(f"v_xor_b32 v{32+r}, s{sTAG}, v{32+r}")
    a(f"v_or3_b32 v31, v32, v33, v34\nv_or_b32 v31, v31, v35\nv_and_b32 v31, s{sC}, v31")
    a("v_cmp_ne_u32 vcc, 0, v31\ns_and_b64 exec, exec, vcc\ns_cbranch_scc1 L_h2poll\nL_h2go:\ns_mov_b64 exec, -1")
    a("v_permlane32_swap_b32 v32, v34\nv_permlane32_swap_b32 v33, v35")
    a("v_add_f32 v32, v32, v34\nv_add_f32 v33, v33, v35")
    a("s_nop 1\nv_permlane16_swap_b32 v32, v33\nv_add_f32 v32, v32, v33")
    for d in ("row_ror:8","row_ror:4","row_ror:2"): a(f"s_nop 1\nv_add_f32_dpp v32, v32, v32 {d} {DPM}")
    a("s_mov_b32 exec_lo, 0x00030003\ns_mov_b32 exec_hi, 0x00030003")
    a("v_cvt_pk_bf16_f32 v32, v32, v32\nglobal_store_short v26, v32, s[14:15]")
    if probe:
        a(f"s_memrealtime s[52:53]\ns_cmp_lg_u32 s2, 224\ns_cbranch_scc1 L_end\ns_cmp_lg_u32 s{sW}, 4\ns_cbranch_scc1 L_end")
        a(f"s_waitcnt lgkmcnt(0)\ns_sub_u32 s51, s52, s{sNOW}\ns_mul_i32 s51, s51, 20\ns_add_u32 s51, s51, 10000")
        a(f"L_pspin:\ns_memrealtime s[52:53]\ns_waitcnt lgkmcnt(0)\ns_sub_u32 s52, s52, s{sNOW}\ns_cmp_lt_u32 s52, s51\ns_cbranch_scc1 L_pspin")
    a("L_end:\ns_endpgm")
    a("L_orem:\nglobal_store_dword v22, v32, s[18:19] sc1\nL_last:\ns_branch L_odone")
    a(f""".section .rodata,"a"
.p2align 6
.amdhsa_kernel {MAIN}
  .amdhsa_next_free_vgpr {NV}
  .amdhsa_next_free_sgpr 56
  .amdhsa_accum_offset {(NV+3)//4*4}
  .amdhsa_group_segment_fixed_size 0
  .amdhsa_kernarg_size 64
  .amdhsa_user_sgpr_count 2
  .amdhsa_user_sgpr_kernarg_segment_ptr 1
  .amdhsa_system_sgpr_workgroup_id_x 1
.end_amdhsa_kernel""")
    if pad:
        out=[]; on=False; acc=0; n=0; prev=""
        def sz(l):
            if l.endswith(":") or not l or l.startswith(";"): return 0
            op=l.split()[0]
            if op.startswith(("global_","ds_","v_mfma","v_max3","v_fma","v_cvt_pk","v_lshl_add","s_memreal","v_pk","v_bfi","v_or3")) or "dpp" in op or "0x" in l: return 8
            return 4
        for l in o:
            if l=="@PAD@":
                out += [f"L_pad{n}:", f"s_cbranch_execz L_pad{n+1}"]; n+=1; continue
            if l in ("L_kloop:","L_tail0:"): on=True; acc=pad
            if l in ("L_helper:","L_end:"): on=False
            if on and acc>=pad and sz(l) and "exec, exec, vcc" not in prev and l!="s_mov_b64 exec, -1":
                out += [f"L_pad{n}:", f"s_cbranch_execz L_pad{n+1}"]; n+=1; acc=4
            out.append(l); acc+=sz(l)
            if sz(l): prev=l
        o=[l.replace("@PADEND@",f"L_pad{n}:") for l in out]
    txt=[]
    incode=False
    for l in o:
        if l==MAIN+":": incode=True
        if l.startswith(".section"): incode=False
        txt.append(("    "+l) if incode and not l.endswith(":") else l)
    open(name,"w").write("\n".join(txt)+"\n")
    return build(name)
if __name__=="__main__":
    hdr=open("standalone__mha_block_cached__decode.s.ref").read().split("; Override")[0]
    print(gen("final8.s",hdr=hdr))
```

```python
import sys
from asm import build
MAIN="standalone__mha_block_cached__decode_kernel"
C_SCALE=0x3db8aa3b
TAGM=0x3ff
WS_XI=0x1000; WS_X=0x10000; WS_T=0x20000; WS_QP=0x40000; WS_OP=0x80000; WS_Y=0xC0000; XST=256
L_F=0; L_DN=16; L_TS=32; L_QF=64; L_REF=264; L_E=276; L_ML=288; L_Q=512; L_OB=1024; L_O=2048; L_P=6144
L_WQ=L_P+4096; L_WO=L_WQ+14336; LDS_SZ=L_WO+16384
SPIN=1<<19
DPM="row_mask:0xf bank_mask:0xf"
DP4=["quad_perm:[1,0,3,2]","quad_perm:[2,3,0,1]","row_half_mirror","row_mirror"]

DOC = r"""
; ---------------------------------------------------------------------------------------------
; One persistent launch, 256 workgroups (one per CU) of 8 waves.
;   wg -> team x = wg&7, head h = 2x + bit3, batch b = bit4, split s = wg>>5
;   The workgroup owns 16 chunks of 64 keys of (b,h): chunk k covers keys (s + 8k)*64 ...
; Waves 0-3 stream: the weight tiles (-> LDS), all K chunks (scores -> LDS), then all V chunks (MFMA with
;   p = exp2(c*(score - wave max)); the true softmax max / sum are applied when the waves are merged).
; Wave 4: q = x @ wq (a 112x64 slice per workgroup, exchanged through d_ws), later the
;   (max, sum) exchange of the 8 workgroups of (b,h).
; Wave 5: load balancing.  HBM is saturated with 5 loads in flight per wave; a wave that is
;   behind the chip-wide mean progress keeps 6 or 7 in flight so that all CUs finish together.
;   The clock is only read to compare progress; nothing waits on it and no result depends on it.
; Waves 4-7 tail: merge o, exchange it inside the team, multiply by a 128x64 tile of wo,
;   hand the partial outputs to 28 reducer workgroups which write d_out.
; Hand-offs through d_ws carry a per-launch tag (d_ws word 0 + 1) so that leftovers of an earlier
;   launch are never taken for data; stores are write-through (sc1) unless every team member
;   reported the same XCC id, in which case the shared L2 is enough.
; All polling loops are bounded; s_sleep only appears as their back-off.
; ---------------------------------------------------------------------------------------------
""".strip("\n")

def gen(name, U=4, lv=(5,6,7), th=(0,30), a0=10, tau0=107.6, n1=5, P=8, NC=3, D=2, GD=5, qe=12, qback=16, pad=250, unr=False, w7early=True, tpre=False, full=True, NS=64, opre="skvqxy", mlfull=True, ww=7, qs=0, reord=True, msk=True, late=True, lead=None, lk0=9, lk1=15, leadv=False, dirty=0, dearly=False, ofl="", hoist=True, probe=False, R=1, sp=4, gm=False, cond=False, rnd=True, mprio=0, slp=1, kw=5, kn=0, hdr=""):
    o=[]
    def a(s): o.extend(s.split("\n"))
    def c(s): o.append("; "+s)
    fk=lv[0]
    a(hdr+f"; @launch grid=(256,1,1) block=(512,1,1) lds={LDS_SZ}")
    a('.amdgcn_target "amdgcn-amd-amdhsa--gfx950"')
    a(DOC)
    a(f".text\n.globl {MAIN}\n.p2align 8\n.type {MAIN},@function\n{MAIN}:")
    sW=20; sBH=21; sS=22; sX=23; sTK=24; sK=25; sC=26; sT=27; sT2=28; sAT=29; sLOC=30; sXV=31; sTAG=32; sE=33; sI=34; sTV=35; sSP=36; sH=37; sB=38
    sA=40; sNOW=42; sEX=44; sIDX=46; sREF=48; sTAU=49; sLV=50
    a("s_cmp_ge_u32 s2, 256\ns_cbranch_scc1 L_end")
    c("s[4:5]=x s[6:7]=K s[8:9]=V s[10:11]=wq s[12:13]=wo s[14:15]=out s[16:17]=dbg s[18:19]=ws")
    a("s_load_dwordx16 s[4:19], s[0:1], 0")
    a(f"s_memrealtime s[{sNOW}:{sNOW+1}]")
    c("v1 = wave, v2 = lane, v3 = lane>>4, v4 = lane&15")
    a("v_lshrrev_b32 v1, 6, v0\nv_and_b32 v2, 63, v0")
    a(f"v_readfirstlane_b32 s{sW}, v1")
    a("v_lshrrev_b32 v3, 4, v2\nv_and_b32 v4, 15, v2")
    a(f"s_and_b32 s{sX}, s2, 7\ns_bfe_u32 s{sT}, s2, 0x10003\ns_lshl1_add_u32 s{sH}, s{sX}, s{sT}\ns_and_b32 s{sT}, s2, 16\ns_or_b32 s{sBH}, s{sH}, s{sT}\ns_lshr_b32 s{sS}, s2, 5")
    a(f"s_cmp_ge_u32 s{sW}, 4\ns_cbranch_scc1 L_helper")
    c("================= streaming waves 0-3 =================")
    Q=8; MK=16; PB=20; ACC=28; S=36; M=40; T=41; VP=45; VZ=46; VONE=0; VL=48; VTS=7; VR=52; VO=Q+3
    RB=54; NV=RB+U*32
    def kaddr():
        c("a 32KB chunk is read as 4 groups x 4 waves x 2KB (4 keys); lane = (key lane>>4, 16B piece lane&15), two halves per key")
        a(f"v_lshlrev_b32 v5, 9, v3\nv_lshl_add_u32 v5, v4, 4, v5")
        a(f"s_add_u32 s{sT2}, s{sBH}, s{sS}\ns_add_u32 s{sT2}, s{sT2}, s{sW}\ns_lshl_b32 s{sT2}, s{sT2}, 11")
        for g in range(4):
            a(f"s_and_b32 s{sT2}, s{sT2}, 0x7fff\nv_add_u32 v{VL+g}, s{sT2}, v5")
            if g<3: a(f"s_add_u32 s{sT2}, s{sT2}, 0x2000")
        a(f"s_lshl_b32 s{sT}, s{sBH}, 7\ns_add_u32 s{sT}, s{sT}, s{sS}\ns_lshl_b32 s{sT}, s{sT}, 15")
    if not reord: kaddr()
    if mprio: a(f"s_setprio {mprio}")
    c("weights go first: wq slice rows 112*rq + 8t.. (t = wave + 4j), wo tile rows (4x + (i&3))*128 + 32*wave + 8j..")
    a(f"s_lshr_b32 s{sB}, s{sBH}, 4\ns_lshr_b32 s{sT2}, s{sS}, 2\ns_lshl1_add_u32 s{sT2}, s{sB}, s{sT2}\ns_mul_i32 s{sT2}, s{sT2}, 112\ns_lshl3_add_u32 s{sT2}, s{sW}, s{sT2}")
    a(f"v_lshrrev_b32 v8, 3, v2\nv_and_b32 v9, 7, v2\nv_add_u32 v10, s{sT2}, v8\nv_lshlrev_b32 v10, 13, v10\nv_lshl_add_u32 v10, v9, 4, v10")
    a(f"s_and_b32 s{sT2}, s{sS}, 3\ns_lshl2_add_u32 s{sT2}, s{sH}, s{sT2}\ns_lshl_b32 s{sT2}, s{sT2}, 7\nv_add_u32 v10, s{sT2}, v10")
    def waddr():
        a(f"s_bfe_u32 s{sT2}, s2, 0x20003\ns_lshl2_add_u32 s{sT2}, s{sX}, s{sT2}\ns_lshl2_add_u32 s{sT2}, s{sT2}, s{sW}\ns_lshl_b32 s{sT2}, s{sT2}, 5")
        a(f"v_add_u32 v8, s{sT2}, v8\nv_mul_u32_u24 v8, 896, v8\ns_min_u32 s{sT2}, s{sS}, 6\ns_lshl_b32 s{sT2}, s{sT2}, 7\nv_add_u32 v8, s{sT2}, v8")
        a(f"v_and_b32 v11, 1, v3\nv_lshlrev_b32 v11, 1, v11\nv_xor_b32 v11, v11, v9\nv_lshl_add_u32 v11, v11, 4, v8")
        if msk: a(f"s_cmp_eq_u32 s{sS}, 7\ns_cselect_b64 s[{sA}:{sA+1}], 0xff, -1")
    if not reord: waddr()
    a(f"s_lshl_b32 s{sTK}, s{sW}, 10\ns_add_u32 m0, s{sTK}, {L_WQ}\ns_lshl_b32 s{sI}, s{sW}, 12")
    def ld(slot,g,e):
        r=RB+slot*32+g*8+4*e
        a(f"global_load_dwordx4 v[{r}:{r+3}], v{VL+g}, s[6:7]{' offset:256' if e else ''} nt")
    def nextchunk(): a("s_add_u32 s6, s6, 0x40000\ns_addc_u32 s7, s7, 0")
    a("s_waitcnt lgkmcnt(0)")
    def init():
        c("LDS flags = -1, progress reference = 'far ahead', MFMA selector masks, accumulators")
        a(f"v_mov_b32 v{T}, -1\nv_lshlrev_b32 v6, 2, v2\nds_write_b32 v6, v{T} offset:{L_F}\nv_mov_b32 v{VR}, s{sNOW}\nv_mov_b32 v{VR+1}, 0x100000\nv_mov_b32 v{VZ}, 0\nds_write_b64 v{VZ}, v[{VR}:{VR+1}] offset:{L_REF}")
        a(f"s_add_u32 s8, s8, s{sT}\ns_addc_u32 s9, s9, 0")
        a(f"v_and_b32 v{T}, 1, v2\nv_lshlrev_b32 v{T}, 4, v{T}\nv_mov_b32 v{T+1}, 0xffff\nv_lshlrev_b32 v{T}, v{T}, v{T+1}\nv_bfe_u32 v{T+1}, v2, 1, 2")
        for k in range(4): a(f"v_cmp_eq_u32 vcc, {k}, v{T+1}\nv_mov_b32 v{ACC+2*k}, 0\nv_mov_b32 v{ACC+2*k+1}, 0\nv_cndmask_b32 v{MK+k}, 0, v{T}, vcc")
        a(f"s_mov_b32 s{sC}, {hex(C_SCALE)}\nv_mov_b32 v{M}, 0xff7f0000")
        a(f"s_mov_b32 s{sK}, {U}\nv_lshlrev_b32 v5, 4, v4")
        a(f"s_mov_b32 s{sLV}, 0\nv_mov_b32 v{VONE}, 1")
        a(f"v_lshlrev_b32 v{VTS}, 3, v1\ns_mov_b32 s{sEX}, 0x10001\ns_mov_b32 s{sEX+1}, 0x10001")
        a(f"s_mov_b32 s{sIDX}, 0\ns_movk_i32 s{sIDX+1}, 256")
        a(f"v_lshlrev_b32 v{VP}, 6, v1\nv_lshl_add_u32 v{VP}, v3, 4, v{VP}")
        a(f"s_add_u32 s6, s6, s{sT}\ns_addc_u32 s7, s7, 0\ns_mov_b32 s{sSP}, {SPIN*8}")
    for j in range(4):
        if j==3: a(f"s_cmp_ge_u32 s{sW}, 2\ns_cbranch_scc1 L_nq3")
        if j: a(f"s_add_u32 m0, s{sTK}, {L_WQ+j*4096}\nv_add_u32 v10, 0x40000, v10")
        a("global_load_lds_dwordx4 v10, s[10:11] nt")
    a("L_nq3:")
    if reord: waddr()
    for j in range(4):
        if 4+j==min(ww,7):
            if reord: kaddr()
            init()
        a(f"s_add_u32 m0, s{sI}, {L_WO+j*1024}")
        if j: a(f"v_xor_b32 v11, 64, v11\nv_add_u32 v11, {8*896}, v11")
        if 4+j>=ww: a(f"s_waitcnt vmcnt({ww-1})")
        elif not j: a("s_nop 0")
        if msk: a(f"s_mov_b64 exec, s[{sA}:{sA+1}]")
        a("global_load_lds_dwordx4 v11, s[12:13] nt")
        if msk: a("s_mov_b64 exec, -1")
    c(f"prefetch {U} K chunks while q is being produced")
    n=0
    for u in range(U):
        for g in range(4):
            for e in range(2):
                a(f"s_waitcnt vmcnt({(kw if n<kn else fk)-1})")
                ld(u,g,e); n+=1
                if n==1+min(kw-5,kn):
                    c("the wq slice has landed and the LDS flags are set: release waves 4-7")
                    a("s_waitcnt lgkmcnt(0)\ns_barrier")
        nextchunk()
    c("pick up q (bf16) once wave 4 has raised the flag")
    a(f"L_qw:\nds_read_b32 v{T}, v{VZ} offset:{L_QF}")
    a(f"ds_read_b128 v[{Q}:{Q+3}], v5 offset:{L_Q}\nds_read_b128 v[{Q+4}:{Q+7}], v5 offset:{L_Q+256}")
    a(f"s_sub_u32 s{sSP}, s{sSP}, 1\ns_cbranch_scc1 L_kloop\ns_waitcnt lgkmcnt(0)\nv_cmp_eq_u32 vcc, -1, v{T}\ns_cbranch_vccnz L_qw")
    def lw(lb):
        for i in range(len(lv)-1,-1,-1):
            a(f"s_waitcnt vmcnt({lv[i]-1})")
            if i: a(f"s_cmp_ge_i32 s{sLV}, {i}\ns_cbranch_scc1 L_o{lb}")
        if lead is not None and (lb.startswith("k") or leadv):
            a(f"s_cmp_ge_i32 s{sLV}, 0\ns_cbranch_scc1 L_o{lb}\ns_waitcnt vmcnt({lv[0]-2})")
        a(f"L_o{lb}:")
    def mark():
        a(f"s_memrealtime s[{sNOW}:{sNOW+1}]\nds_read_b64 v[{VR}:{VR+1}], v{VZ} offset:{L_REF}")
    def level():
        c("report progress; number of loads kept in flight for the next chunk from the lag behind the mean")
        a(f"v_readfirstlane_b32 s{sREF}, v{VR}\nv_readfirstlane_b32 s{sTAU}, v{VR+1}\nv_mov_b32 v{VR}, s{sNOW}\nv_mov_b32 v{VR+1}, s{sK}\nds_write_b64 v{VTS}, v[{VR}:{VR+1}] offset:{L_TS}")
        a(f"s_sub_u32 s{sT}, s{sNOW}, s{sREF}\ns_lshl_b32 s{sT}, s{sT}, 4\ns_mul_i32 s{sT2}, s{sK}, s{sTAU}\ns_sub_u32 s{sT}, s{sT}, s{sT2}")
        for i,t in enumerate(th): a(f"s_cmp_gt_i32 s{sT}, {t*16}\ns_cselect_b32 s{sLV}, {i+1}, {'s%d'%sLV if i else 0}")
        if lead is not None:
            a(f"s_cmp_lt_i32 s{sT}, {lead*16}\ns_cselect_b32 s{sT}, -1, s{sLV}\ns_bitcmp1_b32 {hex(lmask)}, s{sK}\ns_cselect_b32 s{sLV}, s{sT}, s{sLV}")
    lmask=sum(1<<k for k in range(lk0,lk1))|(sum(1<<k for k in range(24,31)) if leadv else 0)
    def kbody(slot, loop):
        for g in range(4):
            r=RB+slot*32+g*8
            a(f"v_mov_b32 v{S+g}, 0")
            for e in range(2):
                for k in range(4*e,4*e+4): a(f"v_dot2c_f32_bf16 v{S+g}, v{r+k}, v{Q+k}")
                if loop:
                    if e==1 and g==3:
                        a("s_waitcnt lgkmcnt(0)"); level()
                    lw(f"k{slot}_{g}_{e}"); ld(slot,g,e)
            if loop and g==2: mark()
        for d in DP4:
            for g in range(4): a(f"v_add_f32_dpp v{S+g}, v{S+g}, v{S+g} {d} {DPM}")
        if loop: a(f"v_add_u32 v{T}, s{sIDX+slot}, v{VP}")
        a(f"v_max3_f32 v{M}, v{S}, v{S+1}, v{M}\nv_max3_f32 v{M}, v{S+2}, v{S+3}, v{M}")
        a(f"s_mov_b64 exec, s[{sEX}:{sEX+1}]")
        if loop: a(f"ds_write_b128 v{T}, v[{S}:{S+3}] offset:{L_P}")
        else: a(f"ds_write_b128 v{VP}, v[{S}:{S+3}] offset:{L_P+slot*256}")
        a("s_mov_b64 exec, -1")
    c(f"---- K phase: consume a chunk, refill its registers with chunk s{sK} (16,17 = first V chunks)")
    a("L_kloop:")
    for u in range(2):
        if u==0: a(f"s_cmp_eq_u32 s{sK}, 16\ns_cselect_b64 s[6:7], s[8:9], s[6:7]")
        kbody(u,True)
        nextchunk()
        a(f"s_lshl_b32 s{sIDX+u}, s{sK}, 8\ns_add_u32 s{sK}, s{sK}, 1")
        for x in range(2,U):
            if (x-1)%2==u: a(f"s_cmp_eq_u32 s{sK}, {U+x}\ns_cbranch_scc1 L_x{x}")
        a(f"L_xr{u}:")
    a(f"s_cmp_lt_u32 s{sK}, 18\ns_cbranch_scc1 L_kloop")
    def cvt():
        for g in range(4): a(f"v_cvt_pk_bf16_f32 v{S+g}, v{S+g}, v{S+g}")
    def ands(g,pb):
        for k in range(4): a(f"v_and_b32 v{pb+k}, v{S+g}, v{MK+k}")
    def mm1(slot,g,e,pb):
        r=RB+slot*32+g*8+4*e; d=ACC+4*e
        a(f"v_mfma_f32_16x16x32_bf16 v[{d}:{d+3}], v[{pb}:{pb+3}], v[{r}:{r+3}], v[{d}:{d+3}]")
    def mm(slot,g,pb): mm1(slot,g,0,pb); mm1(slot,g,1,pb)
    def dodirty():
        a(f"s_mov_b64 exec, -1\ns_lshl2_add_u32 s{sT}, s2, s{sW}\ns_lshl_b32 s{sT}, s{sT}, 12\ns_add_u32 s{sT}, s{sT}, 0x100000\nv_lshl_add_u32 v6, v2, 4, s{sT}")
        for k in range(dirty): a(f"global_store_dwordx4 v6, v[16:19], s[18:19] offset:{k*1024}")
    if dirty and dearly: dodirty()
    c("---- wave max over its 256 scores, scores -> exp2(c*(s - max)) in place")
    a(f"v_lshrrev_b32 v6, 2, v2\nv_lshlrev_b32 v6, 8, v6\nv_and_b32 v5, 3, v2\nv_lshl_add_u32 v6, v5, 4, v6\nv_lshl_add_u32 v6, v1, 6, v6")
    a(f"v_mov_b32 v{T}, v{M}\nds_read_b128 v[{S}:{S+3}], v6 offset:{L_P}\nv_lshlrev_b32 v5, 2, v1")
    a(f"v_permlane16_swap_b32 v{M}, v{T}\nv_max_f32 v{T+1}, v{M}, v{T}\nv_max_f32 v{T+2}, v{M}, v{T}\nv_lshrrev_b32 v{VO}, 1, v3\nv_lshlrev_b32 v{VO}, 9, v{VO}")
    a(f"v_permlane32_swap_b32 v{T+1}, v{T+2}\nv_max_f32 v{M}, v{T+1}, v{T+2}")
    if rnd:
        c("scores are a bf16 tensor in the reference: round them (and their max) the same way")
        a(f"v_cvt_pk_bf16_f32 v{M}, v{M}, v{M}\nv_lshlrev_b32 v{M}, 16, v{M}")
    a(f"v_mul_f32 v{M}, s{sC}, v{M}")
    a(f"s_waitcnt lgkmcnt(0)\nds_write_b32 v5, v{M} offset:{L_ML}")
    if rnd:
        a(f"v_cvt_pk_bf16_f32 v{S+1}, v{S}, v{S+1}\nv_cvt_pk_bf16_f32 v{S+3}, v{S+2}, v{S+3}\nv_lshlrev_b32 v{S}, 16, v{S+1}\nv_lshlrev_b32 v{S+2}, 16, v{S+3}\nv_and_b32 v{S+1}, 0xffff0000, v{S+1}\nv_and_b32 v{S+3}, 0xffff0000, v{S+3}")
    for g in range(4): a(f"v_fma_f32 v{S+g}, v{S+g}, s{sC}, -v{M}")
    for g in range(4): a(f"v_exp_f32 v{S+g}, v{S+g}")
    a(f"s_nop 0\nds_write_b128 v6, v[{S}:{S+3}] offset:{L_P}\nds_read_b128 v[{S}:{S+3}], v{VP} offset:{L_P}")
    a(f"ds_write_b32 v5, v{VONE} offset:{L_DN}")
    a(f"v_lshl_add_u32 v{VO}, v4, 5, v{VO}\nv_and_b32 v5, 1, v3\nv_lshl_add_u32 v{VO}, v5, 4, v{VO}\nv_lshl_add_u32 v{VO}, v1, 10, v{VO}")
    a("s_waitcnt lgkmcnt(1)")
    cvt(); ands(0,PB)
    a("s_nop 1")
    c("---- V phase: D[e][n] += sum_key p[key]*delta(e,e') * V[key][8n+e']  (A = masked p, B = raw V registers)")
    a("L_vloop:")
    for u in range(2):
        for g in range(4):
            mm(u,g,PB+4*(g&1))
            lw(f"{u}_{g}_0"); ld(u,g,0)
            if g<3: ands(g+1,PB+4*((g+1)&1))
            else:
                a("s_waitcnt lgkmcnt(0)")
                cvt(); level(); ands(0,PB)
            lw(f"{u}_{g}_1"); ld(u,g,1)
            if g==2:
                mark()
                a(f"v_add_u32 v{VP}, 256, v{VP}\nds_read_b128 v[{S}:{S+3}], v{VP} offset:{L_P}")
        nextchunk()
        a(f"s_add_u32 s{sK}, s{sK}, 1")
    a(f"s_cmp_lt_u32 s{sK}, 32\ns_cbranch_scc1 L_vloop")
    c("---- last two chunks")
    for g in range(4):
        a(f"s_waitcnt vmcnt({14-2*g})")
        mm(0,g,PB+4*(g&1))
        if g<3: ands(g+1,PB+4*((g+1)&1))
        if g==2: a(f"ds_read_b128 v[{S}:{S+3}], v{VP} offset:{L_P+256}")
        if g<2: a("s_nop 0")
    a("s_waitcnt lgkmcnt(0)")
    cvt()
    for g in range(4): ands(g,RB+4*g)
    for g in range(3):
        a(f"s_waitcnt vmcnt({6-2*g})"); mm(1,g,RB+4*g)
    a("s_waitcnt vmcnt(1)"); mm1(1,3,0,RB+12)
    a("s_waitcnt vmcnt(0)"); mm1(1,3,1,RB+12)
    a("s_mov_b32 exec_hi, 0\ns_nop 4")
    a(f"ds_write_b128 v{VO}, v[{ACC}:{ACC+3}] offset:{L_O}")
    a("s_not_b64 exec, exec")
    a(f"ds_write_b128 v{VO}, v[{ACC+4}:{ACC+7}] offset:{L_O}")
    a("s_waitcnt lgkmcnt(0)\ns_barrier")
    if dirty and not dearly: dodirty()
    a("s_endpgm")
    for x in range(2,U):
        c(f"start-up chunk {x} (no refill)")
        a(f"L_x{x}:")
        kbody(x,False)
        a(f"s_branch L_xr{(x-1)%2}")
    c("================= waves 4-7 =================")
    a("L_helper:")
    a(f"s_lshr_b32 s{sI}, s2, 3\nv_lshrrev_b32 v5, 3, v2\nv_and_b32 v7, 7, v2")
    a(f"s_cmp_eq_u32 s{sW}, 4\ns_cbranch_scc1 L_isq\ns_cmp_eq_u32 s{sW}, 7\ns_cbranch_scc1 L_w7")
    a("s_barrier\ns_branch L_hwait")
    c("wave 7: pull this kernel's code into L2, then hop over it (EXEC=0, branches only) to fill the instruction cache")
    a("L_w7:")
    a(f"s_getpc_b64 s[{sA}:{sA+1}]\nL_pc:\ns_sub_u32 s{sA}, s{sA}, L_pc-{MAIN}\ns_subb_u32 s{sA+1}, s{sA+1}, 0\nv_lshlrev_b32 v6, 6, v2")
    if not w7early: a("s_barrier")
    a(f"global_load_dword v10, v6, s[{sA}:{sA+1}]\nv_add_u32 v6, 0x1000, v6\nv_min_u32 v9, L_last-{MAIN}, v6\nglobal_load_dword v10, v9, s[{sA}:{sA+1}]")
    a(f"v_add_u32 v6, 0x1000, v6\nv_min_u32 v9, L_last-{MAIN}, v6\nglobal_load_dword v10, v9, s[{sA}:{sA+1}]")
    if "s" in opre:
        c("touch the d_ws lines this workgroup hands data over in and the K/V pages, before HBM is busy (values unused)")
        a(f"s_lshl3_add_u32 s{sT2}, s{sBH}, s{sS}\ns_lshl_b32 s{sT2}, s{sT2}, 10\ns_add_u32 s{sT2}, s{sT2}, {WS_OP}\nv_lshl_add_u32 v9, v2, 4, s{sT2}\ns_waitcnt lgkmcnt(0)\nglobal_load_dword v10, v9, s[18:19]")
    if "k" in opre or "v" in opre:
        a(f"s_lshl_b32 s{sT}, s{sBH}, 22\nv_and_b32 v9, 1, v2\nv_lshlrev_b32 v9, 21, v9\nv_add_u32 v9, s{sT}, v9")
        if "k" in opre: a("global_load_dword v10, v9, s[6:7] nt")
        if "v" in opre: a("global_load_dword v10, v9, s[8:9] nt")
    if "o" in opre:
        a(f"s_min_u32 s{sT}, s{sX}, 6\ns_lshl_b32 s{sT}, s{sT}, 7\nv_and_b32 v9, 1, v2\nv_mul_u32_u24 v9, 896, v9\nv_add_u32 v9, s{sT}, v9\ns_cmp_lt_u32 s{sS}, 7\ns_cbranch_scc1 L_noo\nglobal_load_dword v10, v9, s[14:15]\nL_noo:")
    if "q" in opre:
        a(f"s_lshr_b32 s{sB}, s{sBH}, 4\ns_lshl3_add_u32 s{sT2}, s{sB}, s{sS}\ns_lshl_b32 s{sT2}, s{sT2}, 8\ns_lshl_b32 s{sT}, s{sH}, 13\ns_add_u32 s{sT2}, s{sT2}, s{sT}\ns_add_u32 s{sT2}, s{sT2}, {WS_QP}")
        a(f"v_lshrrev_b32 v9, 5, v2\nv_lshlrev_b32 v9, 12, v9\nv_lshl_add_u32 v9, v4, 4, v9\nv_add_u32 v9, s{sT2}, v9\nglobal_load_dword v10, v9, s[18:19]")
    if "x" in opre:
        a(f"s_lshl_b32 s{sT}, s{sX}, 8\ns_add_u32 s{sT}, s{sT}, {WS_XI}\nv_lshl_add_u32 v9, v2, 2, s{sT}\nglobal_load_dword v10, v9, s[18:19]")
    if "y" in opre:
        a(f"s_and_b32 s{sT}, s{sI}, 3\ns_lshl2_add_u32 s{sT}, s{sX}, s{sT}\ns_lshl_b32 s{sT2}, s{sS}, 7\ns_add_u32 s{sT}, s{sT}, s{sT2}\ns_lshl_b32 s{sT}, s{sT}, 7\ns_add_u32 s{sT}, s{sT}, {WS_Y}")
        a(f"v_lshlrev_b32 v9, 12, v3\nv_lshl_add_u32 v9, v4, 3, v9\nv_add_u32 v9, s{sT}, v9\nglobal_load_dword v10, v9, s[18:19]")
        for r in range(1,R): a("v_add_u32 v9, 0x20000, v9\nglobal_load_dword v10, v9, s[18:19]")
    if w7early: a("s_barrier")
    a("s_waitcnt vmcnt(0)")
    if pad: a("s_mov_b64 exec, 0\ns_branch L_pad0")
    else: a("s_branch L_hwait")
    c("wave 4: partial q over rows 112*rq .., columns 256h + 64*cq .., both batches  (rq = 2b + (s>>2), cq = s&3)")
    a("L_isq:")
    a("s_setprio 3")
    a(f"s_lshr_b32 s{sB}, s{sBH}, 4\ns_lshr_b32 s{sT2}, s{sS}, 2\ns_lshl1_add_u32 s{sTK}, s{sB}, s{sT2}\ns_mul_i32 s{sT}, s{sTK}, 112")
    a(f"s_and_b32 s{sK}, s{sS}, 3")
    a(f"v_and_b32 v6, 1, v2\nv_mul_u32_u24 v6, 896, v6\nv_lshl_add_u32 v6, v3, 3, v6\ns_lshl_b32 s{sT}, s{sT}, 1\nv_add_u32 v6, s{sT}, v6")
    a(f"s_waitcnt lgkmcnt(0)\ns_load_dword s{sE}, s[18:19], 0")
    for u in range(7): a(f"global_load_dwordx2 v[{16+2*u}:{17+2*u}], v6, s[4:5] offset:{u*32}")
    a("v_lshrrev_b32 v7, 2, v2\nv_lshlrev_b32 v7, 7, v7\nv_and_b32 v8, 3, v2\nv_lshl_add_u32 v7, v8, 3, v7")
    a(f"s_lshl_b32 s{sT}, s{sH}, 13\ns_lshl_b32 s{sT2}, s{sTK}, 10\ns_add_u32 s{sT2}, s{sT2}, s{sT}\ns_lshl_b32 s{sK}, s{sK}, 8\ns_add_u32 s{sT2}, s{sT2}, s{sK}\ns_add_u32 s{sT2}, s{sT2}, {WS_QP+2048}")
    a(f"v_lshl_add_u32 v8, v2, 2, s{sT2}")
    a(f"s_lshl_b32 s{sT2}, s{sB}, 12\ns_add_u32 s{sT}, s{sT}, s{sT2}\ns_add_u32 s{sT}, s{sT}, {WS_QP}\nv_lshl_add_u32 v9, v2, 4, s{sT}")
    c("team marker: launch tag ^ (XCC id << 28)")
    a(f"s_lshl_b32 s{sT}, s{sX}, 8\ns_add_u32 s{sT}, s{sT}, {WS_XI}\nv_and_b32 v14, 31, v2\nv_lshl_add_u32 v14, v14, 2, s{sT}\ns_lshl2_add_u32 s{sT}, s{sI}, s{sT}\nv_mov_b32 v12, s{sT}")
    a(f"s_getreg_b32 s{sXV}, hwreg(HW_REG_XCC_ID, 0, 4)\ns_lshl_b32 s{sXV}, s{sXV}, 28")
    a(f"s_waitcnt lgkmcnt(0)\ns_add_u32 s{sE}, s{sE}, 1\ns_xor_b32 s{sXV}, s{sXV}, s{sE}\nv_mov_b32 v13, s{sXV}\nglobal_store_dword v12, v13, s[18:19]")
    c("q partials carry the tag in 4 bits of every word (all 1024 words must match at once)")
    a(f"s_and_b32 s{sTAG}, s{sE}, 15\nv_mov_b32 v10, s{sTAG}\ns_movk_i32 s{sC}, 15")
    a("s_barrier")
    if qs: a(f"s_sleep {qs}")
    a(f"global_load_dword v15, v14, s[18:19] sc1\ns_waitcnt vmcnt(2)" if not late else "s_waitcnt vmcnt(1)")
    B0=48; D0=32
    def trs(u):
        for k in range(4): a(f"ds_read_b64_tr_b16 v[{B0+u*8+2*k}:{B0+u*8+2*k+1}], v7 offset:{L_WQ+u*2048+k*32}")
    trs(0); trs(1); trs(2)
    for u in range(7):
        if u+3<7:
            a("s_waitcnt lgkmcnt(8)"); trs(u+3)
        else: a(f"s_waitcnt lgkmcnt({4*(6-u)})")
        for k in range(4):
            cc="0" if u==0 else f"v[{D0+4*k}:{D0+4*k+3}]"
            a(f"v_mfma_f32_16x16x16_bf16 v[{D0+4*k}:{D0+4*k+3}], v[{16+2*u}:{17+2*u}], v[{B0+u*8+2*k}:{B0+u*8+2*k+1}], {cc}")
    a("s_nop 5" if not late else "global_load_dword v15, v14, s[18:19] sc1\ns_nop 4")
    for k in range(1,4):
        for bb in range(2): a(f"v_mov_b32_dpp v{D0+bb}, v{D0+4*k+bb} quad_perm:[0,1,2,3] row_mask:{hex(1<<k)} bank_mask:0xf")
        if k<3: a("s_nop 0")
    for bb in range(2): a(f"v_bfi_b32 v{D0+bb}, s{sC}, v10, v{D0+bb}")
    a(f"s_waitcnt vmcnt(0)\nv_cmp_ne_u32 vcc, s{sXV}, v15\ns_cbranch_vccnz L_qrem")
    a(f"global_store_dword v8, v{D0}, s[18:19] offset:-2048\nglobal_store_dword v8, v{D0+1}, s[18:19] offset:2048\ns_branch L_qpub\nL_qrem:")
    a(f"global_store_dword v8, v{D0}, s[18:19] offset:-2048 sc1\nglobal_store_dword v8, v{D0+1}, s[18:19] offset:2048 sc1")
    a(f"L_qpub:\ns_mov_b32 s{sSP}, {SPIN}\ns_waitcnt vmcnt(0)")
    c("gather the four partials of q[b][h]")
    a(f"L_qpoll:\ns_sleep {qback}")
    for k in range(4): a(f"global_load_dwordx4 v[{16+4*k}:{19+4*k}], v9, s[18:19] offset:{k*1024} sc1")
    a(f"s_sub_u32 s{sSP}, s{sSP}, 1\ns_cbranch_scc1 L_qgo")
    a("s_waitcnt vmcnt(0)")
    for k in range(16): a(f"v_xor_b32 v{16+k}, s{sTAG}, v{16+k}")
    a("v_or3_b32 v12, v16, v17, v18")
    for k in range(3,15,2): a(f"v_or3_b32 v12, v12, v{16+k}, v{17+k}")
    a(f"v_or_b32 v12, v12, v31\nv_and_b32 v12, s{sC}, v12\nv_cmp_ne_u32 vcc, 0, v12\ns_cbranch_vccnz L_qpoll")
    a("L_qgo:")
    for r in range(4): a(f"v_add_f32 v{16+r}, v{16+r}, v{20+r}\nv_add_f32 v{24+r}, v{24+r}, v{28+r}")
    for r in range(4): a(f"v_add_f32 v{16+r}, v{16+r}, v{24+r}")
    a(f"v_cvt_pk_bf16_f32 v16, v16, v17\nv_cvt_pk_bf16_f32 v17, v18, v19\nv_lshlrev_b32 v5, 3, v2\nds_write_b64 v5, v[16:17] offset:{L_Q}")
    a(f"v_mov_b32 v5, 0\nv_mov_b32 v7, s{sE}\nds_write_b32 v5, v7 offset:{L_E}\nds_write_b32 v5, v5 offset:{L_QF}")
    a("s_setprio 0\ns_branch L_hgo")
    if pad: a("@PADEND@\ns_mov_b64 exec, -1")
    a(f"L_hwait:\nv_mov_b32 v5, 0\ns_mov_b32 s{sSP}, {SPIN*4}")
    a(f"L_hw:\ns_sleep 4\nds_read_b32 v8, v5 offset:{L_QF}\ns_sub_u32 s{sSP}, s{sSP}, 1\ns_cbranch_scc1 L_hgo\ns_waitcnt lgkmcnt(0)\nv_cmp_eq_u32 vcc, -1, v8\ns_cbranch_vccnz L_hw")
    WO=64
    c(f"---- addresses for the tail; s{sK} = wave-4, s{sB} = 4x + (i&3)")
    a("L_hgo:")
    a(f"v_mov_b32 v28, 0\nds_read_b32 v6, v28 offset:{L_E}")
    a(f"s_sub_u32 s{sK}, s{sW}, 4\ns_movk_i32 s{sC}, {TAGM}\ns_not_b32 s{sAT}, s{sC}")
    a(f"s_and_b32 s{sT}, s{sI}, 3\ns_lshl2_add_u32 s{sB}, s{sX}, s{sT}\nv_and_b32 v7, 7, v2\nv_lshlrev_b32 v27, 4, v2")
    a(f"s_lshl_b32 s{sT}, s{sX}, 8\ns_add_u32 s{sT}, s{sT}, {WS_XI}\nv_and_b32 v14, 31, v2\nv_lshl_add_u32 v14, v14, 2, s{sT}")
    a("global_load_dword v11, v14, s[18:19] sc1")
    c("team 'projection done' markers: v12 own, v14 all 28")
    a(f"s_add_u32 s{sT}, s{sT}, 128\nv_min_u32 v14, 27, v2\nv_lshl_add_u32 v14, v14, 2, s{sT}\ns_lshl2_add_u32 s{sT}, s{sI}, s{sT}\nv_mov_b32 v12, s{sT}")
    a(f"s_waitcnt lgkmcnt(0)\nv_readfirstlane_b32 s{sE}, v6\nv_mov_b32 v13, v6")
    a(f"s_getreg_b32 s{sXV}, hwreg(HW_REG_XCC_ID, 0, 4)\ns_lshl_b32 s{sXV}, s{sXV}, 28\ns_xor_b32 s{sXV}, s{sXV}, s{sE}")
    a(f"s_and_b32 s{sTAG}, s{sE}, {TAGM}\nv_mov_b32 v15, s{sTAG}")
    c("o gather: v20 (batch 0), v25 (batch 1): 8 producers x 32 rows")
    a(f"s_lshr_b32 s{sT}, s{sB}, 1\ns_lshl_b32 s{sT}, s{sT}, 13\ns_and_b32 s{sT2}, s{sB}, 1\ns_lshl2_add_u32 s{sT2}, s{sT2}, s{sK}\ns_lshl_b32 s{sT2}, s{sT2}, 7\ns_add_u32 s{sT}, s{sT}, s{sT2}\ns_add_u32 s{sT}, s{sT}, {WS_OP}")
    a(f"v_lshrrev_b32 v6, 3, v2\nv_lshlrev_b32 v6, 10, v6\nv_lshl_add_u32 v6, v7, 4, v6\nv_add_u32 v20, s{sT}, v6\nv_add_u32 v25, 0x20000, v20")
    c("own o: LDS v21, d_ws v22")
    a(f"s_lshl_b32 s{sT}, s{sK}, 8\nv_lshl_add_u32 v21, v2, 2, s{sT}\ns_lshl3_add_u32 s{sT2}, s{sBH}, s{sS}\ns_lshl_b32 s{sT2}, s{sT2}, 10\ns_add_u32 s{sT2}, s{sT2}, {WS_OP}\nv_add_u32 v22, s{sT2}, v21\nv_add_u32 v21, {L_O}, v21")
    c("partial outputs: store v23, reducer gather v24, d_out v26")
    a(f"s_lshl2_add_u32 s{sT}, s{sS}, s{sK}\ns_lshl_b32 s{sT}, s{sT}, 5\ns_add_u32 s{sT}, s{sT}, s{sB}\ns_lshl_b32 s{sT}, s{sT}, 7\ns_add_u32 s{sT}, s{sT}, {WS_Y}\nv_lshl_add_u32 v23, v2, 2, s{sT}")
    a(f"s_lshl_b32 s{sT}, s{sB}, 12\ns_lshl_b32 s{sT2}, s{sK}, 5\ns_add_u32 s{sT}, s{sT}, s{sT2}\ns_add_u32 s{sT}, s{sT}, {WS_Y}")
    a(f"v_lshrrev_b32 v6, 1, v2\nv_lshlrev_b32 v6, 7, v6\nv_and_b32 v8, 1, v2\nv_lshl_add_u32 v6, v8, 4, v6\nv_add_u32 v24, s{sT}, v6")
    a(f"s_lshr_b32 s{sT}, s{sK}, 1\ns_mul_i32 s{sT}, s{sT}, 896\ns_lshl_b32 s{sT2}, s{sB}, 5\ns_add_u32 s{sT}, s{sT}, s{sT2}\ns_and_b32 s{sT2}, s{sK}, 1\ns_lshl4_add_u32 s{sT}, s{sT2}, s{sT}\nv_lshl_add_u32 v26, v8, 3, s{sT}\nv_lshl_add_u32 v26, v3, 1, v26")
    c("LDS: v29 bf16 o write, v30 A-operand read, v9 transposing wo read")
    a(f"s_lshl_b32 s{sT}, s{sK}, 6\nv_lshl_add_u32 v29, v7, 3, s{sT}\nv_lshl_add_u32 v29, v3, 1, v29\nv_bfe_u32 v6, v2, 3, 1\nv_lshl_add_u32 v29, v6, 8, v29\nv_lshlrev_b32 v30, 4, v3\nv_lshl_add_u32 v30, v8, 8, v30")
    a(f"v_and_b32 v10, 1, v3\nv_lshl_add_u32 v6, v10, 1, v6\nv_xor_b32 v6, s{sK}, v6\nv_bfe_u32 v9, v2, 2, 2\nv_lshl_add_u32 v9, v3, 3, v9\nv_lshlrev_b32 v9, 7, v9\nv_lshl_add_u32 v9, v6, 5, v9\nv_and_b32 v6, 3, v2\nv_lshl_add_u32 v9, v6, 3, v9")
    c(f"s{sLOC} = 1 when all 32 team members are on this XCD")
    a(f"s_waitcnt vmcnt(0)\nv_cmp_ne_u32 vcc, s{sXV}, v11\ns_cmp_eq_u64 vcc, 0\ns_cselect_b32 s{sLOC}, 1, 0")
    a(f"s_cmp_eq_u32 s{sW}, 5\ns_cbranch_scc1 L_bal\ns_cmp_lg_u32 s{sW}, 4\ns_cbranch_scc1 L_nogat")
    def pwait(lb,val,sl):
        a(f"s_mov_b32 s{sSP}, {SPIN}\nL_{lb}:\ns_sleep {sl}")
        a(f"ds_read_b64 v[48:49], v28 offset:{L_TS}\ns_sub_u32 s{sSP}, s{sSP}, 1\ns_cbranch_scc1 L_{lb}go\ns_waitcnt lgkmcnt(0)\nv_cmp_gt_i32 vcc, {val}, v49\ns_cbranch_vccnz L_{lb}\nL_{lb}go:")
    c("---- wave 4: workgroup (max, sum) after the K phase, exchanged inside (b,h) -> factor exp2(wave max - M)/L per wave")
    a(f"v_and_b32 v16, 12, v2\ns_mov_b32 s{sSP}, {SPIN}")
    a(f"L_c1:\ns_sleep {8*slp}\nds_read_b32 v17, v16 offset:{L_DN}\ns_sub_u32 s{sSP}, s{sSP}, 1\ns_cbranch_scc1 L_c1go\ns_waitcnt lgkmcnt(0)\nv_cmp_eq_u32 vcc, -1, v17\ns_cbranch_vccnz L_c1\nL_c1go:")
    a(f"ds_read_b32 v17, v16 offset:{L_ML}")
    for i in range(4): a(f"ds_read_b128 v[{32+4*i}:{35+4*i}], v27 offset:{L_P+i*1024}")
    a(f"s_mul_i32 s{sT}, s2, {XST}\ns_add_u32 s{sT}, s{sT}, {WS_X}\nv_add_u32 v18, s{sT}, v27")
    a("s_waitcnt lgkmcnt(0)")
    a(f"v_max_f32_dpp v56, v17, v17 row_ror:4 {DPM}\nv_add_f32 v32, v32, v33\nv_add_f32 v34, v34, v35")
    a(f"v_max_f32_dpp v56, v56, v56 row_ror:8 {DPM}\nv_and_b32 v56, s{sAT}, v56\nv_sub_f32 v19, v17, v56\nv_exp_f32 v19, v19")
    for r in range(36,48): a(f"v_add_f32 v{32+2*(r&1)}, v{32+2*(r&1)}, v{r}")
    a("v_add_f32 v32, v32, v34\nv_mul_f32 v57, v32, v19")
    for d in DP4: a(f"s_nop 1\nv_add_f32_dpp v57, v57, v57 {d} {DPM}")
    a("v_mov_b32 v58, v57\ns_nop 1\nv_permlane16_swap_b32 v57, v58\nv_add_f32 v57, v57, v58\nv_mov_b32 v58, v57\ns_nop 1\nv_permlane32_swap_b32 v57, v58\nv_add_f32 v57, v57, v58")
    a(f"v_or_b32 v56, v56, v15\nv_bfi_b32 v57, s{sC}, v15, v57\nv_mov_b32 v58, s{sE}\nv_mov_b32 v59, s{sE}")
    a("s_mov_b64 exec, 0xff" if mlfull else "s_mov_b64 exec, 1")
    a(f"s_cmp_eq_u32 s{sLOC}, 0\ns_cbranch_scc1 L_mrem\nglobal_store_dwordx4 v18, v[56:59], s[18:19]\ns_branch L_mdone\nL_mrem:")
    a("global_store_dwordx4 v18, v[56:59], s[18:19] sc1\nL_mdone:\ns_mov_b64 exec, -1")
    a(f"s_and_b32 s{sT}, s2, 31\ns_mul_i32 s{sT}, s{sT}, {XST}\ns_add_u32 s{sT}, s{sT}, {WS_X}\nv_mul_u32_u24 v18, {32*XST}, v7\nv_add_u32 v18, s{sT}, v18")
    pwait("c2",17+GD,8)
    a(f"s_mov_b32 s{sSP}, {SPIN}\ns_branch L_xp1")
    a("L_xp:\ns_sleep 32\nL_xp1:")
    a("global_load_dwordx4 v[56:59], v18, s[18:19] sc1")
    a(f"s_sub_u32 s{sSP}, s{sSP}, 1\ns_cbranch_scc1 L_xgo\ns_waitcnt vmcnt(0)")
    a(f"v_xor_b32 v56, s{sTAG}, v56\nv_xor_b32 v57, s{sTAG}, v57\nv_xor_b32 v59, s{sE}, v59\nv_or_b32 v31, v56, v57")
    a(f"v_and_or_b32 v31, v31, s{sC}, v59\nv_cmp_ne_u32 vcc, 0, v31\ns_cbranch_vccnz L_xp\nL_xgo:")
    a(f"v_max_f32_dpp v32, v56, v56 {DP4[0]} {DPM}\ns_nop 1\nv_max_f32_dpp v32, v32, v32 {DP4[1]} {DPM}\ns_nop 1\nv_max_f32_dpp v32, v32, v32 {DP4[2]} {DPM}")
    a("v_sub_f32 v56, v56, v32\nv_sub_f32 v17, v17, v32\nv_exp_f32 v56, v56\nv_exp_f32 v17, v17\nv_mul_f32 v33, v56, v57")
    for d in DP4[:3]: a(f"s_nop 1\nv_add_f32_dpp v33, v33, v33 {d} {DPM}")
    a(f"v_rcp_f32 v33, v33\ns_nop 0\nv_mul_f32 v17, v17, v33\nds_write_b32 v16, v17 offset:{L_F}")
    a("s_branch L_nogat")
    sN=sTK; sPM=sH
    c(f"---- wave 5: mean progress mark of workgroups 0..63 at chunks {', '.join(str(n1+P*i) for i in range(NC))} -> reference line (offset, slope)")
    a("L_bal:")
    a(f"s_mul_i32 s{sT}, s2, {XST}\ns_add_u32 s{sT}, s{sT}, {WS_T}\nv_lshl_add_u32 v18, v4, 3, s{sT}\nv_and_b32 v19, {NS-1}, v2\nv_mul_u32_u24 v19, {XST}, v19\nv_add_u32 v19, {WS_T}, v19")
    a(f"s_mov_b32 s{sN}, {n1}\ns_mov_b32 s{sTV}, {int(tau0*16)}\nv_mov_b32 v51, s{sE}\ns_mov_b32 s{sPM}, 0")
    if tpre:
        a(f"s_cmp_ge_u32 s2, {NS}\ns_cbranch_scc1 L_pc0\nv_min_u32 v52, {NC-1}, v2\nv_lshl_add_u32 v52, v52, 14, v18\nglobal_load_dword v53, v52, s[18:19]")
    a("L_pc0:")
    pwait("p1",f"s{sN}",4)
    a(f"v_subrev_u32 v49, s{sN}, v49\nv_mul_u32_u24 v49, {int(tau0)}, v49\nv_sub_u32 v50, v48, v49")
    a(f"s_cmp_ge_u32 s2, {NS}\ns_cbranch_scc1 L_pc1\ns_mov_b64 exec, {'0xffff' if full else 1}\nglobal_store_dwordx2 v18, v[50:51], s[18:19] sc1\ns_mov_b64 exec, -1\nL_pc1:")
    a(f"s_add_u32 s{sT}, s{sN}, {D}")
    pwait("p2",f"s{sT}",4)
    a(f"s_mov_b32 s{sSP}, {SPIN}\ns_branch L_pp1\nL_pp:\ns_sleep 32\nL_pp1:")
    a("global_load_dwordx2 v[52:53], v19, s[18:19] sc1")
    a(f"s_sub_u32 s{sSP}, s{sSP}, 1\ns_cbranch_scc1 L_ppgo\ns_waitcnt vmcnt(0)\nv_cmp_ne_u32 vcc, s{sE}, v53\ns_and_b64 exec, exec, vcc\ns_cbranch_scc1 L_pp\nL_ppgo:\ns_mov_b64 exec, -1")
    a(f"v_sub_u32 v52, v52, v50\nv_add_u32 v18, {64*XST}, v18\nv_add_u32 v19, {64*XST}, v19")
    for d in DP4: a(f"v_add_u32_dpp v52, v52, v52 {d} {DPM}\ns_nop 1")
    a(f"v_readlane_b32 s{sT}, v52, 0\nv_readlane_b32 s{sT2}, v52, 16\nv_readlane_b32 s{sREF}, v52, 32\nv_readlane_b32 s{sTAU}, v52, 48\nv_readfirstlane_b32 s{sXV}, v50")
    a(f"s_add_u32 s{sT}, s{sT}, s{sT2}\ns_add_u32 s{sREF}, s{sREF}, s{sTAU}\ns_add_u32 s{sT}, s{sT}, s{sREF}\ns_ashr_i32 s{sT}, s{sT}, 6\ns_add_u32 s{sT}, s{sT}, s{sXV}")
    a(f"s_sub_u32 s{sT2}, s{sT}, s{sPM}\ns_mul_i32 s{sT2}, s{sT2}, {int(16*256/P)}\ns_lshr_b32 s{sT2}, s{sT2}, 8\ns_max_u32 s{sT2}, s{sT2}, {int(tau0*16)}\ns_cmp_eq_u32 s{sN}, {n1}\ns_cselect_b32 s{sTV}, s{sTV}, s{sT2}\ns_mov_b32 s{sPM}, s{sT}")
    a(f"s_mul_i32 s{sT2}, s{sN}, s{sTV}\ns_lshr_b32 s{sT2}, s{sT2}, 4\ns_sub_u32 s{sT}, s{sT}, s{sT2}\ns_add_u32 s{sT}, s{sT}, {a0}\nv_mov_b32 v52, s{sT}\nv_mov_b32 v53, s{sTV}\nds_write_b64 v28, v[52:53] offset:{L_REF}")
    a(f"s_add_u32 s{sN}, s{sN}, {P}\ns_cmp_lt_u32 s{sN}, {n1+P*NC}\ns_cbranch_scc1 L_pc0")
    c("every workgroup has read the tag word by now (the marks cover all heads): advance it for the next launch")
    a(f"s_cmp_lg_u32 s2, 255\ns_cbranch_scc1 L_nogat\nglobal_store_dword v28, v51, s[18:19] sc1")
    c("---- all four: pick up the per-wave factors, wait for the streaming waves")
    a("L_nogat:")
    a(f"s_mov_b32 s{sSP}, {SPIN}\ns_branch L_f1\nL_f0:\ns_sleep {8*slp}\nL_f1:\nds_read_b128 v[44:47], v28 offset:{L_F}\ns_sub_u32 s{sSP}, s{sSP}, 1\ns_cbranch_scc1 L_fgo\ns_waitcnt lgkmcnt(0)\nv_cmp_eq_u32 vcc, -1, v44\ns_cbranch_vccnz L_f0\nL_fgo:")
    if "l" in opre: a("global_load_dword v11, v22, s[18:19]")
    if "w" in opre: a(f"s_cmp_eq_u32 s{sLOC}, 0\ns_cbranch_scc1 L_npw\nv_xor_b32 v11, 1, v15\nglobal_store_dword v22, v11, s[18:19]\nL_npw:")
    if "O" in opre:
        a(f"s_cmp_lt_u32 s{sS}, 7\ns_cbranch_scc1 L_noo2\ns_cmp_eq_u32 s{sX}, 7\ns_cbranch_scc1 L_noo2\nglobal_load_ushort v10, v26, s[14:15]\nL_noo2:")
    for r in range(1,R): a(f"v_add_u32 v{80+r}, {hex(0x20000*r)}, v23\nv_add_u32 v{84+r}, {hex(0x20000*r)}, v24")
    if hoist:
        c("wo tile as MFMA B operands (the factors imply that the streaming waves are past their weight loads)")
        for kp in range(4):
            for j in range(2):
                r=WO+kp*4+j*2
                a(f"ds_read_b64_tr_b16 v[{r}:{r+1}], v9 offset:{L_WO+kp*4096+j*512}")
    a(f"s_mov_b32 s{sSP}, {SPIN*4}\ns_cmp_lg_u32 s{sLOC}, 0")
    if hoist: a("@PAD@\ns_waitcnt vmcnt(0) lgkmcnt(0)\ns_barrier")
    else: a("s_waitcnt vmcnt(0) lgkmcnt(0)\ns_barrier\nL_tail0:")
    a("ds_read2st64_b32 v[32:33], v21 offset0:0 offset1:4\nds_read2st64_b32 v[34:35], v21 offset0:8 offset1:12")
    a("s_waitcnt lgkmcnt(0)")
    a(f"v_pk_mul_f32 v[32:33], v[32:33], v[44:45]\nv_pk_fma_f32 v[32:33], v[34:35], v[46:47], v[32:33]\nv_add_f32 v32, v32, v33\nv_bfi_b32 v32, s{sC}, v15, v32")
    a(f"s_cbranch_scc0 L_orem\nglobal_store_dword v22, v32, s[18:19] {ofl}\nL_odone:")
    a(f"s_cmp_ge_u32 s{sI}, 28\ns_cbranch_scc1 L_final")
    c("---- projection workgroups: sum 8 partial o per batch, bf16, times the wo tile")
    if not hoist:
        a("global_load_dwordx4 v[36:39], v20, s[18:19] sc1\nglobal_load_dwordx4 v[40:43], v25, s[18:19] sc1")
        for kp in range(4):
            for j in range(2):
                r=WO+kp*4+j*2
                a(f"ds_read_b64_tr_b16 v[{r}:{r+1}], v9 offset:{L_WO+kp*4096+j*512}")
        a("s_branch L_h1a")
    a("L_h1poll:")
    a("global_load_dwordx4 v[36:39], v20, s[18:19] sc1\nglobal_load_dwordx4 v[40:43], v25, s[18:19] sc1")
    a(f"s_sub_u32 s{sSP}, s{sSP}, 1\ns_cbranch_scc1 L_h1go")
    a("@PAD@\ns_waitcnt vmcnt(0)" if hoist else "L_h1a:\ns_waitcnt vmcnt(0)")
    for r in range(36,44): a(f"v_xor_b32 v{r}, s{sTAG}, v{r}")
    a(f"v_or3_b32 v31, v36, v37, v38\nv_or3_b32 v32, v39, v40, v41\nv_or3_b32 v31, v31, v42, v43\nv_or_b32 v31, v31, v32\nv_and_b32 v31, s{sC}, v31")
    a("v_cmp_ne_u32 vcc, 0, v31\ns_and_b64 exec, exec, vcc\ns_cbranch_scc1 L_h1poll\nL_h1go:\ns_mov_b64 exec, -1")
    a("v_permlane32_swap_b32 v36, v38\nv_permlane32_swap_b32 v37, v39\nv_permlane32_swap_b32 v40, v42\nv_permlane32_swap_b32 v41, v43")
    a("v_add_f32 v36, v36, v38\nv_add_f32 v37, v37, v39\nv_add_f32 v40, v40, v42\nv_add_f32 v41, v41, v43")
    a("v_permlane16_swap_b32 v36, v37\nv_add_f32 v36, v36, v37\nv_permlane16_swap_b32 v40, v41\nv_add_f32 v40, v40, v41")
    a("v_add_f32_dpp v37, v36, v36 row_ror:8 row_mask:0xf bank_mask:0x3\ns_nop 1\nv_add_f32_dpp v37, v40, v40 row_ror:8 row_mask:0xf bank_mask:0xc\nv_cvt_pk_bf16_f32 v37, v37, v37")
    a(f"ds_write_b16 v29, v37 offset:{L_OB}")
    if gm==2: a("global_store_dword v12, v13, s[18:19]")
    a("s_waitcnt lgkmcnt(0)\ns_barrier")
    for kp in range(4): a(f"ds_read_b128 v[{40+4*kp}:{43+4*kp}], v30 offset:{L_OB+kp*64}")
    if hoist: a("@PAD@")
    if gm==1: a("global_store_dword v12, v13, s[18:19]")
    for kp in range(4):
        a(f"s_waitcnt lgkmcnt({3-kp})")
        cc="0" if kp==0 else "v[56:59]"
        a(f"v_mfma_f32_16x16x32_bf16 v[56:59], v[{40+4*kp}:{43+4*kp}], v[{WO+kp*4}:{WO+kp*4+3}], {cc}")
    a(f"s_mov_b32 exec_hi, 0\ns_nop 6")
    a(f"v_mov_b32_dpp v56, v57 quad_perm:[0,1,2,3] row_mask:0x2 bank_mask:0xf\nv_bfi_b32 v56, s{sC}, v15, v56")
    a("global_store_dword v23, v56, s[18:19] sc1")
    if not gm: a("global_store_dword v12, v13, s[18:19]")
    for r in range(1,R): a(f"global_store_dword v{80+r}, v56, s[18:19] sc1")
    a("s_endpgm")
    c("---- reducer workgroups: 32 partials x 8 outputs per wave; first read once the own team is through")
    a("L_final:")
    a(f"s_cmp_eq_u32 s{sX}, 7\ns_cbranch_scc1 L_end\ns_cmp_eq_u32 s{sLOC}, 0\ns_cbranch_scc1 L_h2poll")
    a(f"L_g2:\nglobal_load_dword v32, v14, s[18:19] sc1\ns_sub_u32 s{sSP}, s{sSP}, 1\ns_cbranch_scc1 L_h2go\ns_waitcnt vmcnt(0)\nv_cmp_ne_u32 vcc, s{sE}, v32\ns_cbranch_vccnz L_g2")
    if R>1 and cond:
        for r in range(1,R):
            a(f"global_load_dwordx4 v[32:35], v{84+r}, s[18:19] sc1\ns_waitcnt vmcnt(0)")
            for k in range(4): a(f"v_xor_b32 v{32+k}, s{sTAG}, v{32+k}")
            a(f"v_or3_b32 v31, v32, v33, v34\nv_or_b32 v31, v31, v35\nv_and_b32 v31, s{sC}, v31")
            a("v_cmp_ne_u32 vcc, 0, v31\ns_and_b64 exec, exec, vcc\ns_cbranch_scc0 L_h2go")
    elif R>1:
        for r in range(R):
            if r: a(f"s_sleep {sp}")
            a(f"global_load_dwordx4 v[{88+4*r}:{91+4*r}], v{84+r if r else 24}, s[18:19] sc1")
        for r in range(R):
            a(f"s_waitcnt vmcnt({R-1-r})")
            for k in range(4): a(f"v_xor_b32 v{32+k}, s{sTAG}, v{88+4*r+k}")
            a(f"v_or3_b32 v31, v32, v33, v34\nv_or_b32 v31, v31, v35\nv_and_b32 v31, s{sC}, v31")
            a("v_cmp_ne_u32 vcc, 0, v31\ns_and_b64 exec, exec, vcc\ns_cbranch_scc0 L_h2go")
    a("L_h2poll:\nglobal_load_dwordx4 v[32:35], v24, s[18:19] sc1")
    if hoist: a("@PAD@")
    a(f"s_sub_u32 s{sSP}, s{sSP}, 1\ns_cbranch_scc1 L_h2go\ns_waitcnt vmcnt(0)")
    for r in range(4): a(f"v_xor_b32 v{32+r}, s{sTAG}, v{32+r}")
    a(f"v_or3_b32 v31, v32, v33, v34\nv_or_b32 v31, v31, v35\nv_and_b32 v31, s{sC}, v31")
    a("v_cmp_ne_u32 vcc, 0, v31\ns_and_b64 exec, exec, vcc\ns_cbranch_scc1 L_h2poll\nL_h2go:\ns_mov_b64 exec, -1")
    a("v_permlane32_swap_b32 v32, v34\nv_permlane32_swap_b32 v33, v35")
    a("v_add_f32 v32, v32, v34\nv_add_f32 v33, v33, v35")
    a("s_nop 1\nv_permlane16_swap_b32 v32, v33\nv_add_f32 v32, v32, v33")
    for d in ("row_ror:8","row_ror:4","row_ror:2"): a(f"s_nop 1\nv_add_f32_dpp v32, v32, v32 {d} {DPM}")
    a("s_mov_b32 exec_lo, 0x00030003\ns_mov_b32 exec_hi, 0x00030003")
    a("v_cvt_pk_bf16_f32 v32, v32, v32\nglobal_store_short v26, v32, s[14:15]")
    if probe:
        a(f"s_memrealtime s[52:53]\ns_cmp_lg_u32 s2, 224\ns_cbranch_scc1 L_end\ns_cmp_lg_u32 s{sW}, 4\ns_cbranch_scc1 L_end")
        a(f"s_waitcnt lgkmcnt(0)\ns_sub_u32 s51, s52, s{sNOW}\ns_mul_i32 s51, s51, 20\ns_add_u32 s51, s51, 10000")
        a(f"L_pspin:\ns_memrealtime s[52:53]\ns_waitcnt lgkmcnt(0)\ns_sub_u32 s52, s52, s{sNOW}\ns_cmp_lt_u32 s52, s51\ns_cbranch_scc1 L_pspin")
    a("L_end:\ns_endpgm")
    a("L_orem:\nglobal_store_dword v22, v32, s[18:19] sc1\nL_last:\ns_branch L_odone")
    a(f""".section .rodata,"a"
.p2align 6
.amdhsa_kernel {MAIN}
  .amdhsa_next_free_vgpr {NV}
  .amdhsa_next_free_sgpr 56
  .amdhsa_accum_offset {(NV+3)//4*4}
  .amdhsa_group_segment_fixed_size 0
  .amdhsa_kernarg_size 64
  .amdhsa_user_sgpr_count 2
  .amdhsa_user_sgpr_kernarg_segment_ptr 1
  .amdhsa_system_sgpr_workgroup_id_x 1
.end_amdhsa_kernel""")
    if pad:
        out=[]; on=False; acc=0; n=0; prev=""
        def sz(l):
            if l.endswith(":") or not l or l.startswith(";"): return 0
            op=l.split()[0]
            if op.startswith(("global_","ds_","v_mfma","v_max3","v_fma","v_cvt_pk","v_lshl_add","s_memreal","v_pk","v_bfi","v_or3")) or "dpp" in op or "0x" in l: return 8
            return 4
        for l in o:
            if l=="@PAD@":
                out += [f"L_pad{n}:", f"s_cbranch_execz L_pad{n+1}"]; n+=1; continue
            if l in ("L_kloop:","L_tail0:"): on=True; acc=pad
            if l in ("L_helper:","L_end:"): on=False
            if on and acc>=pad and sz(l) and "exec, exec, vcc" not in prev and l!="s_mov_b64 exec, -1":
                out += [f"L_pad{n}:", f"s_cbranch_execz L_pad{n+1}"]; n+=1; acc=4
            out.append(l); acc+=sz(l)
            if sz(l): prev=l
        o=[l.replace("@PADEND@",f"L_pad{n}:") for l in out]
    txt=[]
    incode=False
    for l in o:
        if l==MAIN+":": incode=True
        if l.startswith(".section"): incode=False
        txt.append(("    "+l) if incode and not l.endswith(":") else l)
    open(name,"w").write("\n".join(txt)+"\n")
    return build(name)
if __name__=="__main__":
    hdr=open("standalone__mha_block_cached__decode.s.ref").read().split("; Override")[0]
    print(gen("final8.s",hdr=hdr))
```
